```python
import torch

def _softmax(x, axis=-1):
    return torch.softmax(x, dim=axis)
def _gelu(x):
    return torch.nn.functional.gelu(x, approximate="tanh")
def _silu(x):
    return torch.nn.functional.silu(x)
def _sigmoid(x):
    return torch.sigmoid(x)
def _layernorm(x, axis=-1, eps=1e-5):
    m = x.mean(dim=axis, keepdim=True)
    v = x.var(dim=axis, keepdim=True, unbiased=False)
    return (x - m) / torch.sqrt(v + eps)
def _scatter_add(tgt, idx, src, axis=0):
    return tgt.clone().index_add_(axis, idx, src)
def _segment_sum(src, seg, n):
    out = torch.zeros((n,) + src.shape[1:], dtype=src.dtype)
    return out.index_add_(0, seg, src)
def _pad(x, pw):
    flat = tuple(v for pair in reversed(pw) for v in pair)
    return torch.nn.functional.pad(x, flat)

kernel_name = 'standalone__dense_activation_silu__prompt'

def setup_inputs():

    _w = (lambda a: (lambda t: t.to(torch.bfloat16) if t.is_floating_point() else t)(torch.as_tensor(a)))
    B, S, D, F = 1, 2048, 576, 4608
    return {
        "x": _w((lambda *s: torch.randn(*s, dtype=torch.bfloat16) * 0.1)(B, S, D)),
        "w1": _w((lambda *s: torch.randn(*s, dtype=torch.bfloat16) * 3.2)(D, F) * (D ** -0.5)),
        "w2": _w((lambda *s: torch.randn(*s, dtype=torch.bfloat16) * 3.2)(F, D) * (F ** -0.5)),
    }

def reference(x, w1, w2):
    h = torch.einsum("bsd,df->bsf", x, w1)
    h = _silu(h)
    out = torch.einsum("bsf,fd->bsd", h, w2)
    return out
```

```python
import sys

PROF = "--prof" in sys.argv
WS_PROF = 96 << 20

KNAME = "standalone__dense_activation_silu__prompt_kernel"
L = []
def a(s): L.append("    " + s)
def lab(s): L.append(s + ":")
def cm(s): L.append("    ; " + s)
def stamp(i):
    if PROF:
        r = 100 if i == 0 else 64 + 2*(i-1)
        L.append(f"    s_memtime s[{r}:{r+1}]")

SLOT = 36864
LDS_NONCE = 4 * SLOT
LDS_SIZE = 4 * SLOT + 64
WS_RS = 32 << 20
WS_FLAG_H = 64 << 20
WS_FLAG_RS = (64 << 20) + (1 << 20)
LOG2E_NEG = 0xbfb8aa3b

sX, sW1, sW2, sOUT, sWS, sDBG = 4, 8, 12, 16, 20, 24
sMT, sG, sNB, sJ, sWV, sW, sGRP, sNONCE = 28, 29, 30, 31, 32, 33, 34, 35
sF0B = 36
sXB = 37
sT0, sT1, sT2, sT3, sT4, sT5 = 38, 39, 40, 41, 42, 43
sSLOTN = 44
sSLOTD = 45
sHB = 46
sFLH = 47
sFS = 50
sLOG = 51
sST = 52
sHL = 53
sW2B = 54
sPEND = 55
sPEND2 = 56
sNT = 57
sEX = 58
sFLC = 60
sT6, sT7 = 62, 63
sSPIN = 61
SPIN_MAX = 200000

def srd(r): return f"s[{r}:{r+3}]"

vX = 0
vACC1 = 144
vACC2 = 176
vAF = 208
vXR = 232
vWR = 236
vW1R = 238
vXOFF = 240
vW0OFF = 241
vW1OFF = 242
vLANE = 243
vHST = 244
vCUR = 245
vT = 248
vACCP = 0
vAF2 = 72
vHFC = 96
vHFN = 112
vW2R = 128
vW2C = 129
vW2N = 130
vPOLL = 131
vFLA = 132
vL16 = 133
vP2T = 136

def vr(b, n=4): return f"v[{b}:{b+n-1}]"

lab(KNAME)
a("s_cmp_ge_u32 s2, 256")
a("s_cbranch_scc1 L_end")
stamp(0)
a("s_load_dwordx4 s[80:83], s[0:1], 0")
a("s_load_dwordx4 s[84:87], s[0:1], 16")
a("s_load_dwordx4 s[88:91], s[0:1], 32")
a("s_memrealtime s[92:93]")
a(f"v_and_b32 v{vLANE}, 63, v0")
a(f"v_lshrrev_b32 v{vT}, 6, v0")
a("s_nop 0")
a(f"v_readfirstlane_b32 s{sWV}, v{vT}")
a(f"s_and_b32 s{sT0}, s2, 7")
a(f"s_lshr_b32 s{sT1}, s2, 3")
a(f"s_lshr_b32 s{sG}, s{sT0}, 1")
a(f"s_and_b32 s{sT2}, s{sT0}, 1")
a(f"s_lshl_b32 s{sT2}, s{sT2}, 3")
a(f"s_lshr_b32 s{sT3}, s{sT1}, 2")
a(f"s_add_u32 s{sMT}, s{sT2}, s{sT3}")
a(f"s_and_b32 s{sNB}, s{sT1}, 3")
a(f"s_lshl_b32 s{sJ}, s{sG}, 2")
a(f"s_add_u32 s{sJ}, s{sJ}, s{sNB}")
a(f"s_and_b32 s{sW}, s{sWV}, 3")
a(f"s_lshr_b32 s{sGRP}, s{sWV}, 2")
a(f"s_mul_i32 s{sT0}, s{sJ}, 576")
a(f"s_and_b32 s{sT1}, s{sJ}, 1")
a(f"s_lshl_b32 s{sT2}, s{sT1}, 6")
a(f"s_add_u32 s{sF0B}, s{sT0}, s{sT2}")
a(f"s_xor_b32 s{sT1}, s{sT1}, 1")
a(f"s_lshl_b32 s{sT1}, s{sT1}, 9")
a(f"s_add_u32 s{sFS}, s{sT0}, s{sT1}")
a(f"s_mul_i32 s{sXB}, s{sMT}, {128*1152}")
a(f"s_mov_b32 s{sLOG}, 0x{LOG2E_NEG:08x}")

l = vLANE
t0, t1, t2, t3 = vT, vT+1, vT+2, vT+3
a(f"v_lshrrev_b32 v{t0}, 3, v{l}")
a(f"v_mul_u32_u24 v{vXOFF}, 1152, v{t0}")
a(f"v_and_b32 v{t1}, 7, v{l}")
a(f"v_lshrrev_b32 v{t2}, 4, v{l}")
a(f"v_xor_b32 v{t1}, v{t1}, v{t2}")
a(f"s_and_b32 s{sT0}, s{sWV}, 1")
a(f"s_lshl_b32 s{sT0}, s{sT0}, 2")
a(f"v_xor_b32 v{t1}, s{sT0}, v{t1}")
a(f"v_lshlrev_b32 v{t1}, 4, v{t1}")
a(f"v_add_u32 v{vXOFF}, v{vXOFF}, v{t1}")
a(f"v_lshrrev_b32 v{t0}, 4, v{l}")
a(f"v_mul_u32_u24 v{vW0OFF}, 9216, v{t0}")
a(f"v_bfe_u32 v{t1}, v{l}, 2, 2")
a(f"v_xor_b32 v{t1}, v{t1}, v{t0}")
a(f"v_lshlrev_b32 v{t1}, 6, v{t1}")
a(f"v_and_b32 v{t2}, 3, v{l}")
a(f"v_lshlrev_b32 v{t2}, 4, v{t2}")
a(f"v_add3_u32 v{vW0OFF}, v{vW0OFF}, v{t1}, v{t2}")
a(f"s_mul_i32 s{sT4}, s{sWV}, {8*1152}")
a(f"s_add_u32 s{sT4}, s{sT4}, s{sXB}")
a(f"s_mul_i32 s{sT5}, s{sWV}, {4*9216}")
a(f"s_add_u32 s{sT5}, s{sT5}, s{sF0B}")
a(f"s_lshl_b32 s{sT6}, s{sWV}, 10")
a("s_waitcnt lgkmcnt(0)")
for (r, src, nbytes) in ((sX, 80, 2048*576*2), (sW1, 82, 576*4608*2), (sW2, 84, 4608*576*2), (sOUT, 86, 2048*576*2), (sDBG, 88, 256), (sWS, 90, 256 << 20)):
    a(f"s_mov_b32 s{r}, s{src}")
    a(f"s_mov_b32 s{r+1}, s{src+1}")
    a(f"s_mov_b32 s{r+2}, {nbytes}")
    a(f"s_mov_b32 s{r+3}, 0x20000")

def dma_p0_list(t):
    slot = (t % 4) * SLOT
    G = []
    for k in range(2):
        G.append([f"s_add_u32 m0, s{sT6}, {slot + 8192*k}",
                  f"s_add_u32 s{sT1}, s{sT4}, {128*t + 64*1152*k}",
                  f"buffer_load_dwordx4 v{vXOFF}, {srd(sX)}, s{sT1} offen lds"])
    for k in range(2):
        G.append([f"s_add_u32 m0, s{sT6}, {slot + 16384 + 8192*k}",
                  f"s_add_u32 s{sT1}, s{sT5}, {(64*t + 32*k)*9216}",
                  f"buffer_load_dwordx4 v{vW0OFF}, {srd(sW1)}, s{sT1} offen lds"])
    return G

def emit_groups(G):
    for g in G:
        for ins in g: a(ins)

a(f"s_cmp_lg_u32 s{sWV}, 0")
a("s_cbranch_scc1 L_no_nonce")
a(f"s_or_b32 s{sNT}, s92, 1")
a(f"v_mov_b32 v{vT+4}, s{sNT}")
a(f"v_mov_b32 v{vT+5}, 0")
a(f"s_lshl_b32 s{sT0}, s{sMT}, 2")
a(f"v_mov_b32 v{vT+6}, s{sT0}")
a(f"v_cmp_eq_u32 vcc, 0, v{l}")
a(f"s_and_saveexec_b64 s[{sEX}:{sEX+1}], vcc")
a(f"buffer_atomic_cmpswap v[{vT+4}:{vT+5}], v{vT+6}, {srd(sDBG)}, 0 offen sc0")
a(f"s_mov_b64 exec, s[{sEX}:{sEX+1}]")
lab("L_no_nonce")
emit_groups(dma_p0_list(0))
a("s_barrier")
emit_groups(dma_p0_list(1))


a(f"v_lshrrev_b32 v{t0}, 3, v{l}")
a(f"v_mul_u32_u24 v{vW1OFF}, 9216, v{t0}")
a(f"v_bfe_u32 v{t1}, v{l}, 2, 1")
a(f"v_bfe_u32 v{t2}, v{l}, 4, 1")
a(f"v_xor_b32 v{t1}, v{t1}, v{t2}")
a(f"v_lshlrev_b32 v{t1}, 6, v{t1}")
a(f"v_and_b32 v{t2}, 3, v{l}")
a(f"v_lshlrev_b32 v{t2}, 4, v{t2}")
a(f"v_add3_u32 v{vW1OFF}, v{vW1OFF}, v{t1}, v{t2}")

a(f"v_and_b32 v{t0}, 31, v{l}")
a(f"s_lshl_b32 s{sT0}, s{sW}, 12")
a(f"v_lshlrev_b32 v{t1}, 7, v{t0}")
a(f"v_add_u32 v{t1}, s{sT0}, v{t1}")
a(f"v_bfe_u32 v{t2}, v{l}, 1, 3")
a(f"v_lshrrev_b32 v{t3}, 5, v{l}")
a(f"v_xor_b32 v{t2}, v{t2}, v{t3}")
a(f"v_lshlrev_b32 v{t2}, 4, v{t2}")
a(f"v_add_u32 v{vXR}, v{t1}, v{t2}")
a(f"v_xor_b32 v{vXR+1}, 32, v{vXR}")
a(f"v_xor_b32 v{vXR+2}, 64, v{vXR}")
a(f"v_xor_b32 v{vXR+3}, 0x60, v{vXR}")
a(f"v_lshrrev_b32 v{t0}, 5, v{l}")
a(f"v_bfe_u32 v{t1}, v{l}, 2, 2")
a(f"v_lshl_add_u32 v{t0}, v{t0}, 3, v{t1}")
a(f"v_lshlrev_b32 v{t0}, 8, v{t0}")
a(f"v_bfe_u32 v{t2}, v{l}, 4, 1")
a(f"v_lshlrev_b32 v{t2}, 5, v{t2}")
a(f"v_and_b32 v{t3}, 3, v{l}")
a(f"v_lshlrev_b32 v{t3}, 3, v{t3}")
a(f"v_add3_u32 v{t0}, v{t0}, v{t2}, v{t3}")
a(f"v_add_u32 v{t0}, 16384, v{t0}")
a(f"s_lshl_b32 s{sT0}, s{sGRP}, 1")
a(f"v_xor_b32 v{t2}, s{sT0}, v{t1}")
a(f"v_lshl_add_u32 v{vWR}, v{t2}, 6, v{t0}")
a(f"v_xor_b32 v{vWR+1}, 64, v{vWR}")
a(f"v_lshrrev_b32 v{t0}, 5, v{l}")
a(f"v_lshl_add_u32 v{t0}, v{t0}, 3, v{t1}")
a(f"v_lshlrev_b32 v{t0}, 7, v{t0}")
a(f"v_bfe_u32 v{t2}, v{l}, 4, 1")
a(f"v_lshlrev_b32 v{t2}, 5, v{t2}")
a(f"v_add3_u32 v{t0}, v{t0}, v{t2}, v{t3}")
a(f"v_bfe_u32 v{t2}, v{l}, 3, 1")
a(f"v_lshl_add_u32 v{vW1R}, v{t2}, 6, v{t0}")
a(f"v_xor_b32 v{vW1R+1}, 64, v{vW1R}")
a(f"v_bfe_u32 v{t0}, v{l}, 4, 1")
a(f"v_lshlrev_b32 v{t0}, 10, v{t0}")
a(f"v_lshrrev_b32 v{t1}, 5, v{l}")
a(f"v_lshlrev_b32 v{t1}, 8, v{t1}")
a(f"v_and_b32 v{t2}, 15, v{l}")
a(f"v_lshlrev_b32 v{t2}, 4, v{t2}")
a(f"v_add3_u32 v{vHST}, v{t0}, v{t1}, v{t2}")
a(f"s_lshl_b32 s{sT0}, s{sMT}, 2")
a(f"s_add_u32 s{sT0}, s{sT0}, s{sW}")
a(f"s_mul_i32 s{sT1}, s{sT0}, 144")
a(f"s_mul_i32 s{sT2}, s{sJ}, 9")
a(f"s_add_u32 s{sT2}, s{sT1}, s{sT2}")
a(f"s_lshl_b32 s{sHB}, s{sT2}, 11")
a(f"s_mul_i32 s{sT2}, s{sG}, 36")
a(f"s_add_u32 s{sT2}, s{sT1}, s{sT2}")
a(f"s_mul_i32 s{sT3}, s{sGRP}, 18")
a(f"s_add_u32 s{sT2}, s{sT2}, s{sT3}")
a(f"s_lshl_b32 s{sHL}, s{sT2}, 11")
a(f"s_lshl_b32 s{sT0}, s{sMT}, 2")
a(f"s_add_u32 s{sT0}, s{sT0}, s{sG}")
a(f"s_lshl_b32 s{sT0}, s{sT0}, 2")
a(f"s_add_u32 s{sT0}, s{sT0}, s{sW}")
a(f"s_lshl_b32 s{sT0}, s{sT0}, 8")
a(f"s_add_u32 s{sFLC}, s{sT0}, {WS_FLAG_H}")
a(f"s_lshl_b32 s{sT1}, s{sNB}, 2")
a(f"s_add_u32 s{sFLH}, s{sFLC}, s{sT1}")
a(f"s_mul_i32 s{sT0}, s{sG}, {1152*1152}")
a(f"s_mul_i32 s{sT1}, s{sNB}, 288")
a(f"s_add_u32 s{sW2B}, s{sT0}, s{sT1}")
for r in range(64):
    a(f"v_mov_b32 v{vACC1+r}, 0")

def dma_t1_all(stage, dr0, fcoff):
    slot = (stage % 4) * SLOT
    a(f"s_mul_i32 s{sT2}, s{sWV}, {8*9216}")
    a(f"s_add_u32 s{sT2}, s{sT2}, s{sF0B}")
    for k in range(5):
        if k == 4:
            a(f"s_cmp_ge_u32 s{sWV}, 4")
            a(f"s_cbranch_scc1 L_skip_t1_{stage}")
        a(f"s_add_u32 m0, s{sT6}, {slot + 8192*k}")
        a(f"s_add_u32 s{sT1}, s{sT2}, {(dr0 + 64*k)*9216 + fcoff}")
        a(f"buffer_load_dwordx4 v{vW1OFF}, {srd(sW1)}, s{sT1} offen lds")
    lab(f"L_skip_t1_{stage}")

def p0_reads(ks):
    t, sp = ks // 4, ks % 4
    so = (t % 2) * SLOT
    buf = ks % 3
    R = []
    R.append(f"ds_read_b128 {vr(vX+4*ks)}, v{vXR+sp} offset:{so}")
    for tl in range(2):
        for e4 in range(2):
            d = vAF + buf*8 + tl*4 + e4*2
            R.append(f"ds_read_b64_tr_b16 v[{d}:{d+1}], v{vWR+tl} offset:{so + (16*sp + 4*e4)*256}")
    return R

def toggle_p0(t):
    if t % 2 == 0 and t > 0:
        op = "v_add_u32" if (t % 4) == 2 else "v_subrev_u32"
        for r in list(range(vXR, vXR+4)) + [vWR, vWR+1]:
            a(f"{op} v{r}, {2*SLOT}, v{r}")

a("s_waitcnt vmcnt(4)")
a("s_barrier")
stamp(1)
emit_groups(dma_p0_list(2))
for ins in p0_reads(0): a(ins)
for ins in p0_reads(1): a(ins)
for ks in range(36):
    nxt = ks + 2
    pend = []
    if nxt % 4 == 0:
        t = nxt // 4
        a(f"s_waitcnt vmcnt(4)")
        if t == 4:
            a(f"s_cmp_lg_u32 s{sWV}, 0")
            a("s_cbranch_scc1 L_no_nonce2")
            a(f"v_readfirstlane_b32 s{sT0}, v{vT+4}")
            a(f"s_cmp_eq_u32 s{sT0}, 0")
            a(f"s_cselect_b32 s{sT0}, s{sNT}, s{sT0}")
            a(f"v_mov_b32 v{vT+5}, s{sT0}")
            a(f"v_mov_b32 v{vT+6}, {LDS_NONCE}")
            a(f"ds_write_b32 v{vT+6}, v{vT+5}")
            lab("L_no_nonce2")
        a("s_barrier")
        if t <= 6:
            emit_groups(dma_p0_list(t + 2))
        elif t == 7:
            dma_t1_all(9, 0, 256)
        elif t == 8:
            dma_t1_all(10, 288, 256)
        if t <= 8:
            toggle_p0(t)
    if nxt < 36:
        pend = p0_reads(nxt)
    nout = 5 if ks + 1 < 36 else 0
    a(f"s_waitcnt lgkmcnt({nout})")
    buf = ks % 3
    for tl in range(2):
        acc = vACC1 + 16*tl
        af = vAF + buf*8 + tl*4
        a(f"v_mfma_f32_32x32x16_bf16 {vr(acc,16)}, {vr(af)}, {vr(vX+4*ks)}, {vr(acc,16)}")
        for ins in (pend[:3] if tl == 0 else pend[3:]): a(ins)

stamp(2)
a(f"v_mov_b32 v{vT}, {LDS_NONCE}")
a(f"ds_read_b32 v{vT+1}, v{vT}")
a(f"s_lshl_b32 s{sT6}, s{sW}, 10")
a("s_waitcnt lgkmcnt(0)")
a(f"v_readfirstlane_b32 s{sNONCE}, v{vT+1}")
a(f"s_cmp_lg_u32 s{sGRP}, 0")
a("s_cbranch_scc1 L_pathB")

def epi_tile(A, P, tt):
    for b in range(4):
        rr = [A + 4*b + i for i in range(4)]
        tt_ = [vT + i for i in range(4)]
        for i in range(4): a(f"v_mul_f32 v{tt_[i]}, s{sLOG}, v{rr[i]}")
        for i in range(4): a(f"v_exp_f32 v{tt_[i]}, v{tt_[i]}")
        for i in range(4): a(f"v_add_f32 v{tt_[i]}, 1.0, v{tt_[i]}")
        for i in range(4): a(f"v_rcp_f32 v{tt_[i]}, v{tt_[i]}")
        for i in range(4): a(f"v_mul_f32 v{tt_[i]}, v{rr[i]}, v{tt_[i]}")
        a(f"v_cvt_pk_bf16_f32 v{P+2*b}, v{tt_[0]}, v{tt_[1]}")
        a(f"v_cvt_pk_bf16_f32 v{P+2*b+1}, v{tt_[2]}, v{tt_[3]}")
        if b % 2 == 1:
            p = b // 2
            if p == 0:
                a(f"s_add_u32 s{sT0}, s{sHB}, {tt*2048}")
            a(f"buffer_store_dwordx4 {vr(P+4*p)}, v{vHST}, {srd(sWS)}, s{sT0} offen offset:{512*p} sc1")

_pk = [0]
def epi(acc, ntiles, tt0):
    for ti in range(ntiles):
        epi_tile(acc + 16*ti, vAF + 8*(_pk[0] % 3), tt0 + ti)
        _pk[0] += 1

def flags(tt0, n, tmp=vT+4):
    a(f"v_lshlrev_b32 v{tmp}, 4, v{vLANE}")
    a(f"v_mov_b32 v{tmp+1}, s{sNONCE}")
    a(f"v_cmp_gt_u32 vcc, {n}, v{vLANE}")
    a(f"s_add_u32 s{sT0}, s{sFLH}, {tt0*16}")
    a(f"s_and_saveexec_b64 s[{sEX}:{sEX+1}], vcc")
    a(f"buffer_store_dword v{tmp+1}, v{tmp}, {srd(sWS)}, s{sT0} offen sc1")
    a(f"s_mov_b64 exec, s[{sEX}:{sEX+1}]")

def blk_reads(ks, ntl, rowbytes, steps_per_stage):
    sp = ks % steps_per_stage
    buf = ks % 3
    R = []
    for tl in range(ntl):
        for e4 in range(2):
            d = vAF + buf*8 + tl*4 + e4*2
            R.append(f"ds_read_b64_tr_b16 v[{d}:{d+1}], v{vCUR+tl} offset:{(16*sp + 4*e4)*rowbytes}")
    return R

def dma_t1_4w(stage, dr0, fcoff):
    slot = (stage % 4) * SLOT
    G = [[f"s_mul_i32 s{sT2}, s{sW}, {8*9216}", f"s_add_u32 s{sT2}, s{sT2}, s{sF0B}"]]
    for k in range(9):
        G.append([f"s_add_u32 m0, s{sT6}, {slot + 4096*k}",
                  f"s_add_u32 s{sT1}, s{sT2}, {(dr0 + 32*k)*9216 + fcoff}",
                  f"buffer_load_dwordx4 v{vW1OFF}, {srd(sW1)}, s{sT1} offen lds"])
    return G

def dma_t3_4w(stage):
    slot = (stage % 4) * SLOT
    G = [[f"s_mul_i32 s{sT2}, s{sW}, {16*9216}", f"s_add_u32 s{sT2}, s{sT2}, s{sFS}"]]
    for k in range(9):
        G.append([f"s_add_u32 m0, s{sT6}, {slot + 4096*k}",
                  f"s_add_u32 s{sT1}, s{sT2}, {64*k*9216}",
                  f"buffer_load_dwordx4 v{vXOFF}, {srd(sW1)}, s{sT1} offen lds"])
    return G

TORDER = [2, 3, 0, 1, 4, 5, 6, 7, 8]
def fo_rows(tile, apar):
    if tile < 8: return apar*32 + 32*tile
    return 0 if apar else 256

def dma_p2_4w(stage, offs):
    slot = (stage % 4) * SLOT
    tile = TORDER[stage - 14]
    G = []
    for bi in range(2):
        for aa in range(4):
            G.append([f"s_add_u32 m0, s{sT6}, {slot + aa*9216 + bi*4096}",
                      f"s_add_u32 s{sT1}, s{sW2B}, {(288*aa + fo_rows(tile, aa & 1))*1152}",
                      f"buffer_load_dwordx4 v{offs+bi}, {srd(sW2)}, s{sT1} offen lds"])
    r0, r1 = fo_rows(tile, 0), fo_rows(tile, 1)
    G.append([f"s_mul_i32 s{sT1}, s{sW}, 9216",
              f"s_add_u32 m0, s{sT1}, {slot + 8192}",
              f"s_and_b32 s{sT2}, s{sW}, 1",
              f"s_mul_i32 s{sT2}, s{sT2}, {(r1 - r0)*1152}",
              f"s_mul_i32 s{sT1}, s{sW}, {288*1152}",
              f"s_add_u32 s{sT1}, s{sT1}, s{sT2}",
              f"s_add_u32 s{sT1}, s{sT1}, s{sW2B}",
              f"s_add_u32 s{sT1}, s{sT1}, {r0*1152}",
              f"buffer_load_dwordx4 v{offs+2}, {srd(sW2)}, s{sT1} offen lds"])
    return G

def w2off(dst, bsgpr, tmp):
    a(f"s_lshl_b32 s{sT2}, s{bsgpr}, 6")
    a(f"v_add_u32 v{tmp}, s{sT2}, v{vLANE}")
    a(f"v_mul_u32_u24 v{dst}, 3641, v{tmp}")
    a(f"v_lshrrev_b32 v{dst}, 16, v{dst}")
    a(f"v_mul_u32_u24 v{tmp+1}, 18, v{dst}")
    a(f"v_sub_u32 v{tmp}, v{tmp}, v{tmp+1}")
    a(f"v_mul_u32_u24 v{dst}, 1152, v{dst}")
    a(f"v_lshl_add_u32 v{dst}, v{tmp}, 4, v{dst}")

def w2offs3():
    a(f"s_mov_b32 s{sT3}, s{sW}")
    w2off(vXR, sT3, vT)
    a(f"s_add_u32 s{sT3}, s{sW}, 4")
    w2off(vXR+1, sT3, vT)
    a(f"s_mov_b32 s{sT3}, 8")
    w2off(vXR+2, sT3, vT)

def block2(stA, stB, dma0, dma1):
    a(f"v_add_u32 v{vCUR}, {(stA%4)*SLOT}, v{vW1R}")
    a(f"v_add_u32 v{vCUR+1}, {(stA%4)*SLOT}, v{vW1R+1}")
    for ins in blk_reads(0, 2, 128, 18): a(ins)
    for ins in blk_reads(1, 2, 128, 18): a(ins)
    dq = list(dma0)
    for ks in range(36):
        nxt = ks + 2
        if nxt == 18:
            a("s_waitcnt vmcnt(9)")
            a("s_barrier")
            a(f"v_add_u32 v{vCUR}, {(stB%4)*SLOT}, v{vW1R}")
            a(f"v_add_u32 v{vCUR+1}, {(stB%4)*SLOT}, v{vW1R+1}")
            dq = list(dma1)
        if nxt == 36:
            a("s_waitcnt vmcnt(9)")
            a("s_barrier")
        pend = blk_reads(nxt, 2, 128, 18) if nxt < 36 else []
        a(f"s_waitcnt lgkmcnt({4 if ks+1 < 36 else 0})")
        buf = ks % 3
        for tl in range(2):
            acc = vACC2 + 16*tl
            af = vAF + buf*8 + tl*4
            a(f"v_mfma_f32_32x32x16_bf16 {vr(acc,16)}, {vr(af)}, {vr(vX+4*ks)}, {vr(acc,16)}")
            for ins in (pend[:2] if tl == 0 else pend[2:]): a(ins)
            if tl == 1 and dq:
                for ins in dq.pop(0): a(ins)

_pc = [0]
def poll_issue(tile_sgpr_or_int):
    if isinstance(tile_sgpr_or_int, int):
        a(f"s_add_u32 s{sT0}, s{sFLC}, {tile_sgpr_or_int*16}")
    else:
        a(f"s_lshl_b32 s{sT0}, {tile_sgpr_or_int}, 4")
        a(f"s_add_u32 s{sT0}, s{sT0}, s{sFLC}")
    a(f"buffer_load_dword v{vPOLL}, v{vFLA}, {srd(sWS)}, s{sT0} offen sc1")

def poll_spin(tile_sgpr_or_int):
    _pc[0] += 1
    n = _pc[0]
    a(f"s_mov_b32 s{sSPIN}, 0")
    lab(f"L_spin_{n}")
    poll_issue(tile_sgpr_or_int)
    a(f"s_add_u32 s{sSPIN}, s{sSPIN}, 1")
    a(f"s_cmp_gt_u32 s{sSPIN}, {SPIN_MAX}")
    a(f"s_cbranch_scc1 L_spin_out_{n}")
    a("s_waitcnt vmcnt(0)")
    a(f"v_cmp_ne_u32 vcc, s{sNONCE}, v{vPOLL}")
    a("s_cmp_eq_u64 vcc, 0")
    a(f"s_cbranch_scc0 L_spin_{n}")
    lab(f"L_spin_out_{n}")

def h_issue(tile):
    if isinstance(tile, int):
        a(f"s_add_u32 s{sT0}, s{sHL}, {tile*2048}")
    else:
        a(f"s_lshl_b32 s{sT0}, {tile}, 11")
        a(f"s_add_u32 s{sT0}, s{sT0}, s{sHL}")
    a(f"s_add_u32 s{sT1}, s{sT0}, {9*2048}")
    a(f"buffer_load_dwordx4 {vr(vHFN)}, v{vL16}, {srd(sWS)}, s{sT0} offen sc1")
    a(f"buffer_load_dwordx4 {vr(vHFN+4)}, v{vL16}, {srd(sWS)}, s{sT0} offen offset:1024 sc1")
    a(f"buffer_load_dwordx4 {vr(vHFN+8)}, v{vL16}, {srd(sWS)}, s{sT1} offen sc1")
    a(f"buffer_load_dwordx4 {vr(vHFN+12)}, v{vL16}, {srd(sWS)}, s{sT1} offen offset:1024 sc1")

def p2_preamble():
    a(f"v_lshlrev_b32 v{vL16}, 4, v{vLANE}")
    a(f"v_and_b32 v{vFLA}, 3, v{vLANE}")
    a(f"v_lshlrev_b32 v{vFLA}, 2, v{vFLA}")
    a(f"v_lshrrev_b32 v{vP2T}, 5, v{vLANE}")
    a(f"v_lshlrev_b32 v{vP2T}, 4, v{vP2T}")
    a(f"v_bfe_u32 v{vP2T+1}, v{vLANE}, 4, 1")
    a(f"v_lshl_add_u32 v{vP2T}, v{vP2T+1}, 2, v{vP2T}")
    a(f"v_bfe_u32 v{vP2T+1}, v{vLANE}, 2, 2")
    a(f"v_add_u32 v{vP2T}, v{vP2T}, v{vP2T+1}")
    a(f"v_mul_u32_u24 v{vP2T}, 288, v{vP2T}")
    a(f"v_and_b32 v{vP2T+1}, 3, v{vLANE}")
    a(f"v_lshl_add_u32 v{vP2T}, v{vP2T+1}, 3, v{vP2T}")
    a(f"s_mul_i32 s{sT0}, s{sGRP}, {2*9216}")
    a(f"v_add_u32 v{vW2R}, s{sT0}, v{vP2T}")
    for r in range(72):
        a(f"v_mov_b32 v{vACCP+r}, 0")
    poll_spin(TORDER[0])
    h_issue(TORDER[0])
    poll_issue(TORDER[1])

cm("---- path A")
block2(9, 10, dma_t1_4w(11, 0, 384), dma_t1_4w(12, 288, 384))
stamp(3)
epi(vACC1, 2, 0)
a("s_waitcnt vmcnt(4)")
stamp(4)
a("s_barrier")
epi(vACC2, 2, 4)
a("s_waitcnt vmcnt(4)")
flags(0, 2)
for r in range(16):
    a(f"v_mov_b32 v{vACC1+r}, 0")
w2offs3()
a(f"v_lshrrev_b32 v{vT}, 5, v{vLANE}")
a(f"v_bfe_u32 v{vT+1}, v{vLANE}, 2, 2")
a(f"v_lshl_add_u32 v{vT}, v{vT}, 3, v{vT+1}")
a(f"v_lshlrev_b32 v{vT}, 6, v{vT}")
a(f"v_bfe_u32 v{vT+1}, v{vLANE}, 4, 1")
a(f"v_lshlrev_b32 v{vT+1}, 5, v{vT+1}")
a(f"v_and_b32 v{vT+2}, 3, v{vLANE}")
a(f"v_lshlrev_b32 v{vT+2}, 3, v{vT+2}")
a(f"v_add3_u32 v{vCUR}, v{vT}, v{vT+1}, v{vT+2}")
a(f"v_add_u32 v{vCUR}, {(13%4)*SLOT}, v{vCUR}")
stamp(5)
a("s_barrier")
stamp(6)
def b3_reads(ks):
    d = vAF + (ks % 6)*4
    return [f"ds_read_b64_tr_b16 v[{d+2*e4}:{d+2*e4+1}], v{vCUR} offset:{(16*ks + 4*e4)*64}" for e4 in range(2)]
for k in range(4):
    for ins in b3_reads(k): a(ins)
dq = dma_p2_4w(15, vXR)
for ks in range(36):
    nxt = ks + 4
    if ks == 24:
        a("s_waitcnt vmcnt(9)")
        flags(4, 2)
    if ks == 31:
        a("s_barrier")
    pend = b3_reads(nxt) if nxt < 36 else []
    nout = 2*min(3, 35 - ks)
    a(f"s_waitcnt lgkmcnt({nout})")
    af = vAF + (ks % 6)*4
    a(f"v_mfma_f32_32x32x16_bf16 {vr(vACC1,16)}, {vr(af)}, {vr(vX+4*ks)}, {vr(vACC1,16)}")
    for ins in pend: a(ins)
    if ks % 2 == 1 and dq:
        for ins in dq.pop(0): a(ins)
stamp(7)
a(f"s_mov_b32 s{sPEND}, 8")
a(f"s_mov_b32 s{sPEND2}, 1")
p2_preamble()
epi(vACC1, 1, 8)
a("s_waitcnt vmcnt(2)")
a("s_branch L_p2")

lab("L_pathB")
cm("---- path B")
a(f"v_lshrrev_b32 v{vXOFF}, 2, v{vLANE}")
a(f"v_mul_u32_u24 v{vXOFF}, 9216, v{vXOFF}")
a(f"v_and_b32 v{vT+7}, 3, v{vLANE}")
a(f"v_lshl_add_u32 v{vXOFF}, v{vT+7}, 4, v{vXOFF}")
w2offs3()
epi(vACC1, 2, 2)
a("s_waitcnt vmcnt(4)")
stamp(3)
a("s_barrier")
a("s_waitcnt vmcnt(0)")
flags(2, 2)
stamp(4)
a("s_barrier")
stamp(5)
block2(11, 12, dma_t3_4w(13), dma_p2_4w(14, vXR))
stamp(6)
a(f"s_mov_b32 s{sPEND}, 6")
a(f"s_mov_b32 s{sPEND2}, 2")
p2_preamble()
epi(vACC2, 2, 6)
stamp(7)
a("s_barrier")
a("s_waitcnt vmcnt(4)")

lab("L_p2")
stamp(8)
a(f"s_cmp_eq_u32 s{sGRP}, 0")
a("s_cbranch_scc1 L_p2_offok")
a(f"v_mov_b32 v{vXR}, v{vXR+1}")
lab("L_p2_offok")
a(f"s_lshl_b32 s{sT6}, s{sWV}, 10")

def dma_p2_loop(tile_sgpr, slot_sgpr, uid):
    a(f"s_mul_i32 s{sT2}, s{tile_sgpr}, {32*1152}")
    a(f"s_add_u32 s{sT3}, s{sT2}, {32*1152}")
    a(f"s_cmp_eq_u32 s{tile_sgpr}, 8")
    a(f"s_cselect_b32 s{sT3}, 0, s{sT3}")
    a(f"s_add_u32 s{sT2}, s{sT2}, s{sW2B}")
    a(f"s_add_u32 s{sT3}, s{sT3}, s{sW2B}")
    a(f"s_add_u32 s{sT4}, s{slot_sgpr}, s{sT6}")
    for aa in range(4):
        a(f"s_add_u32 m0, s{sT4}, {aa*9216}")
        a(f"s_add_u32 s{sT1}, s{sT3 if aa & 1 else sT2}, {288*aa*1152}")
        a(f"buffer_load_dwordx4 v{vXR}, {srd(sW2)}, s{sT1} offen lds")
    a(f"s_cmp_ge_u32 s{sWV}, 4")
    a(f"s_cbranch_scc1 L_skip_p2d_{uid}")
    a(f"s_mul_i32 s{sT4}, s{sWV}, 9216")
    a(f"s_add_u32 s{sT4}, s{sT4}, s{slot_sgpr}")
    a(f"s_add_u32 m0, s{sT4}, 8192")
    a(f"s_and_b32 s{sT1}, s{sWV}, 1")
    a(f"s_cselect_b32 s{sT1}, s{sT3}, s{sT2}")
    a(f"s_mul_i32 s{sT4}, s{sWV}, {288*1152}")
    a(f"s_add_u32 s{sT1}, s{sT1}, s{sT4}")
    a(f"buffer_load_dwordx4 v{vXR+2}, {srd(sW2)}, s{sT1} offen lds")
    lab(f"L_skip_p2d_{uid}")

def tile_of(dst, s_sgpr, add):
    a(f"s_add_u32 s{dst}, s{s_sgpr}, {add}")
    a(f"s_min_u32 s{dst}, s{dst}, 8")
    a(f"s_xor_b32 s{sT7}, s{dst}, 2")
    a(f"s_cmp_lt_u32 s{dst}, 4")
    a(f"s_cselect_b32 s{dst}, s{sT7}, s{dst}")

def p2_reads(idx, addr):
    st, jn = idx // 9, idx % 9
    d = vAF2 + (idx % 6)*4
    return [f"ds_read_b64_tr_b16 v[{d+2*e4}:{d+2*e4+1}], v{addr} offset:{st*9216 + e4*8*288 + jn*32}" for e4 in range(2)]

a(f"s_mov_b32 s{sST}, 0")
a(f"s_mov_b32 s{sT5}, {TORDER[2]}")
a(f"s_mov_b32 s{sSLOTD}, {(16%4)*SLOT}")
dma_p2_loop(sT5, sSLOTD, "e")
a(f"s_mov_b32 s{sSLOTD}, {(17%4)*SLOT}")
a(f"s_mov_b32 s{sSLOTN}, {(15%4)*SLOT}")
a(f"v_add_u32 v{vW2C}, {(14%4)*SLOT}, v{vW2R}")
for i in range(4):
    for ins in p2_reads(i, vW2C): a(ins)
a("s_branch L_p2_top_nowait")

lab("L_p2_loop")
a(f"s_cmp_ge_u32 s{sST}, 7")
a("s_cbranch_scc1 L_p2_w0")
a("s_waitcnt vmcnt(4)")
a("s_branch L_p2_wdone")
lab("L_p2_w0")
a("s_waitcnt vmcnt(0)")
lab("L_p2_wdone")
a(f"s_cmp_lg_u32 s{sST}, 1")
a("s_cbranch_scc1 L_p2_top_nowait")
a(f"v_lshlrev_b32 v{vP2T}, 4, v{vLANE}")
a(f"v_mov_b32 v{vP2T+1}, s{sNONCE}")
a(f"v_cmp_gt_u32 vcc, s{sPEND2}, v{vLANE}")
a(f"s_lshl_b32 s{sT0}, s{sPEND}, 4")
a(f"s_add_u32 s{sT0}, s{sT0}, s{sFLH}")
a(f"s_and_saveexec_b64 s[{sEX}:{sEX+1}], vcc")
a(f"buffer_store_dword v{vP2T+1}, v{vP2T}, {srd(sWS)}, s{sT0} offen sc1")
a(f"s_mov_b64 exec, s[{sEX}:{sEX+1}]")
lab("L_p2_top_nowait")
for r in range(16):
    a(f"v_mov_b32 v{vHFC+r}, v{vHFN+r}")
a(f"s_cmp_eq_u32 s{sST}, 8")
a("s_cbranch_scc1 L_p2_nopf")
tile_of(sT5, sST, 1)
a(f"v_cmp_ne_u32 vcc, s{sNONCE}, v{vPOLL}")
a("s_cmp_eq_u64 vcc, 0")
a("s_cbranch_scc1 L_p2_ready")
poll_spin(f"s{sT5}")
lab("L_p2_ready")
h_issue(f"s{sT5}")
tile_of(sT5, sST, 2)
poll_issue(f"s{sT5}")
lab("L_p2_nopf")
for idx in range(18):
    st, jn = idx // 9, idx % 9
    if idx == 14:
        a("s_barrier")
        a(f"v_add_u32 v{vW2N}, s{sSLOTN}, v{vW2R}")
        a(f"s_cmp_ge_u32 s{sST}, 6")
        a("s_cbranch_scc1 L_p2_nodma")
        tile_of(sT5, sST, 3)
        dma_p2_loop(sT5, sSLOTD, "l")
        lab("L_p2_nodma")
    a("s_waitcnt lgkmcnt(6)")
    af = vAF2 + (idx % 6)*4
    for mh in range(2):
        acc = vACCP + (jn*2 + mh)*4
        hf = vHFC + st*8 + mh*4
        a(f"v_mfma_f32_16x16x32_bf16 {vr(acc)}, {vr(af)}, {vr(hf)}, {vr(acc)}")
        nx = idx + 4
        rd = p2_reads(nx, vW2C) if nx < 18 else p2_reads(nx - 18, vW2N)
        a(rd[mh])
a(f"v_mov_b32 v{vW2C}, v{vW2N}")
for sr in (sSLOTN, sSLOTD):
    a(f"s_add_u32 s{sr}, s{sr}, {SLOT}")
    a(f"s_cmp_eq_u32 s{sr}, {4*SLOT}")
    a(f"s_cselect_b32 s{sr}, 0, s{sr}")
a(f"s_add_u32 s{sST}, s{sST}, 1")
a(f"s_cmp_lt_u32 s{sST}, 9")
a("s_cbranch_scc1 L_p2_loop")
stamp(9)

a("s_waitcnt lgkmcnt(0)")
a(f"s_lshl_b32 s{sT0}, s{sW}, 13")
a(f"s_mul_i32 s{sT1}, s{sW}, 10240")
a(f"s_add_u32 s{sT1}, s{sT1}, 32768")
a(f"v_add_u32 v{vP2T}, s{sT0}, v{vL16}")
a(f"v_add_u32 v{vP2T+1}, s{sT1}, v{vL16}")
a(f"s_lshl_b32 s{sT2}, s{sMT}, 2")
a(f"s_add_u32 s{sT2}, s{sT2}, s{sNB}")
a(f"s_lshl_b32 s{sT2}, s{sT2}, 2")
a(f"s_add_u32 s{sT2}, s{sT2}, s{sW}")
a(f"s_lshl_b32 s{sT3}, s{sT2}, 1")
a(f"s_add_u32 s{sT3}, s{sT3}, s{sGRP}")
a(f"s_lshl_b32 s{sT3}, s{sT3}, 4")
a(f"s_add_u32 s{sFLC}, s{sT3}, {WS_FLAG_RS}")
a(f"s_mul_i32 s{sT2}, s{sT2}, {4*18*1024}")
a(f"s_add_u32 s{sHL}, s{sT2}, {WS_RS}")
a(f"s_cmp_lg_u32 s{sGRP}, 0")
a("s_cbranch_scc1 L_rsB")

def rs_path(tag, send, keep, send_addr, recv_addr, tslot0):
    for i, t in enumerate(send):
        a(f"ds_write_b128 v{send_addr}, {vr(vACCP+4*t)} offset:{i*1024}")
    a("s_waitcnt lgkmcnt(0)")
    a("s_barrier")
    for i, t in enumerate(keep):
        a(f"ds_read_b128 {vr(72+4*i)}, v{recv_addr} offset:{i*1024}")
    for i, t in enumerate(keep):
        a(f"s_waitcnt lgkmcnt({len(keep)-1-i})")
        for r in range(4):
            a(f"v_add_f32 v{vACCP+4*t+r}, v{vACCP+4*t+r}, v{72+4*i+r}")
    a(f"s_cmp_eq_u32 s{sW}, s{sG}")
    a(f"s_cbranch_scc1 L_rs_own_{tag}")
    a(f"s_mul_i32 s{sT0}, s{sG}, {18*1024}")
    a(f"s_add_u32 s{sT0}, s{sT0}, s{sHL}")
    for i, t in enumerate(keep):
        o = (tslot0 + i)*1024
        if i % 4 == 0:
            a(f"s_add_u32 s{sT1}, s{sT0}, {o}")
        a(f"buffer_store_dwordx4 {vr(vACCP+4*t)}, v{vL16}, {srd(sWS)}, s{sT1} offen offset:{(i%4)*1024} sc1")
    a(f"v_mov_b32 v{vP2T+2}, s{sNONCE}")
    a(f"s_lshl_b32 s{sT0}, s{sG}, 2")
    a(f"v_mov_b32 v{vP2T+3}, s{sT0}")
    a(f"v_cmp_eq_u32 vcc, 0, v{vLANE}")
    a("s_waitcnt vmcnt(0)")
    a(f"s_and_saveexec_b64 s[{sEX}:{sEX+1}], vcc")
    a(f"buffer_store_dword v{vP2T+2}, v{vP2T+3}, {srd(sWS)}, s{sFLC} offen sc1")
    a("s_branch L_end")
    lab(f"L_rs_own_{tag}")
    a(f"s_mov_b32 s{sSPIN}, 0")
    lab(f"L_rs_spin_{tag}")
    a(f"buffer_load_dword v{vPOLL}, v{vFLA}, {srd(sWS)}, s{sFLC} offen sc1")
    a(f"s_add_u32 s{sSPIN}, s{sSPIN}, 1")
    a(f"s_cmp_gt_u32 s{sSPIN}, {SPIN_MAX}")
    a(f"s_cbranch_scc1 L_rs_spin_out_{tag}")
    a(f"s_lshl_b32 s{sT0}, s{sG}, 2")
    a("s_waitcnt vmcnt(0)")
    a(f"v_cmp_ne_u32 vcc, s{sNONCE}, v{vPOLL}")
    a(f"v_cmp_ne_u32 s[{sT2}:{sT2+1}], s{sT0}, v{vFLA}")
    a(f"s_and_b64 vcc, vcc, s[{sT2}:{sT2+1}]")
    a("s_cmp_eq_u64 vcc, 0")
    a(f"s_cbranch_scc0 L_rs_spin_{tag}")
    lab(f"L_rs_spin_out_{tag}")
    n = len(keep)
    base = 144
    regs = list(range(144, 232, 4)) + list(range(72, 128, 4))
    k = 0
    for p in range(1, 4):
        a(f"s_add_u32 s{sT0}, s{sG}, {p}")
        a(f"s_and_b32 s{sT0}, s{sT0}, 3")
        a(f"s_mul_i32 s{sT0}, s{sT0}, {18*1024}")
        a(f"s_add_u32 s{sT0}, s{sT0}, s{sHL}")
        for i, t in enumerate(keep):
            o = (tslot0 + i)*1024
            if i % 4 == 0:
                a(f"s_add_u32 s{sT1}, s{sT0}, {o}")
            a(f"buffer_load_dwordx4 {vr(regs[k])}, v{vL16}, {srd(sWS)}, s{sT1} offen offset:{(i%4)*1024} sc1")
            k += 1
    a(f"v_and_b32 v{vP2T+2}, 15, v{vLANE}")
    a(f"v_mul_u32_u24 v{vP2T+2}, 1152, v{vP2T+2}")
    a(f"v_lshrrev_b32 v{vP2T+3}, 4, v{vLANE}")
    a(f"v_lshl_add_u32 v{vP2T+2}, v{vP2T+3}, 3, v{vP2T+2}")
    a(f"s_mul_i32 s{sT2}, s{sW}, {32*1152}")
    a(f"s_add_u32 s{sT2}, s{sT2}, s{sXB}")
    a(f"s_mul_i32 s{sT3}, s{sNB}, 288")
    a(f"s_add_u32 s{sT2}, s{sT2}, s{sT3}")
    a(f"s_add_u32 s{sT3}, s{sT2}, {16*1152}")
    k = 0
    tot = 3*n
    for p in range(3):
        for i, t in enumerate(keep):
            a(f"s_waitcnt vmcnt({tot-1-k})")
            for r in range(4):
                a(f"v_add_f32 v{vACCP+4*t+r}, v{vACCP+4*t+r}, v{regs[k]+r}")
            k += 1
    for i, t in enumerate(keep):
        jn, mh = t // 2, t % 2
        d = vP2T + 4 + 2*(i % 2)
        a(f"v_cvt_pk_bf16_f32 v{d}, v{vACCP+4*t}, v{vACCP+4*t+1}")
        a(f"v_cvt_pk_bf16_f32 v{d+1}, v{vACCP+4*t+2}, v{vACCP+4*t+3}")
        a(f"buffer_store_dwordx2 v[{d}:{d+1}], v{vP2T+2}, {srd(sOUT)}, s{sT3 if mh else sT2} offen offset:{jn*32}")
    a("s_branch L_end")

rs_path("A", list(range(10, 18)), list(range(0, 10)), vP2T, vP2T+1, 0)
lab("L_rsB")
rs_path("B", list(range(0, 10)), list(range(10, 18)), vP2T+1, vP2T, 10)

lab("L_end")
if PROF:
    stamp(15)
    a("s_mov_b64 exec, -1")
    a("s_cmp_ge_u32 s2, 256")
    a("s_cbranch_scc1 L_end2")
    a("s_waitcnt lgkmcnt(0)")
    for i in range(1, 16):
        a(f"s_sub_u32 s{64+2*(i-1)}, s{64+2*(i-1)}, s100")
    a(f"v_mov_b32 v0, 0")
    for i in range(1, 16):
        a(f"v_writelane_b32 v0, s{64+2*(i-1)}, {i}")
    a(f"s_lshl_b32 s{sT0}, s2, 3")
    a(f"s_add_u32 s{sT0}, s{sT0}, s{sWV}")
    a(f"s_lshl_b32 s{sT0}, s{sT0}, 6")
    a(f"s_add_u32 s{sT0}, s{sT0}, {WS_PROF}")
    a(f"v_lshlrev_b32 v1, 2, v{vLANE}")
    a(f"v_cmp_gt_u32 vcc, 16, v{vLANE}")
    a(f"s_and_saveexec_b64 s[{sEX}:{sEX+1}], vcc")
    a(f"buffer_store_dword v0, v1, {srd(sWS)}, s{sT0} offen")
    lab("L_end2")
a("s_endpgm")

hdr = [
 f"; @launch grid=(256,1,1) block=(512,1,1) lds={LDS_SIZE}",
 '.amdgcn_target "amdgcn-amd-amdhsa--gfx950"',
 ".text",
 f".globl {KNAME}",
 ".p2align 8",
 f".type {KNAME},@function",
]
ftr = [
 '.section .rodata,"a"',
 ".p2align 6",
 f".amdhsa_kernel {KNAME}",
 "  .amdhsa_next_free_vgpr 256",
 "  .amdhsa_next_free_sgpr 102",
 "  .amdhsa_accum_offset 256",
 "  .amdhsa_group_segment_fixed_size 0",
 "  .amdhsa_kernarg_size 48",
 "  .amdhsa_user_sgpr_count 2",
 "  .amdhsa_user_sgpr_kernarg_segment_ptr 1",
 "  .amdhsa_system_sgpr_workgroup_id_x 1",
 ".end_amdhsa_kernel",
]
print("\n".join(hdr + L + ftr))
```

```python
import sys

PROF = "--prof" in sys.argv
WS_PROF = 96 << 20

KNAME = "standalone__dense_activation_silu__prompt_kernel"
L = []
def a(s): L.append("    " + s)
def lab(s): L.append(s + ":")
def cm(s): L.append("    ; " + s)
def stamp(i):
    if PROF:
        r = 100 if i == 0 else 64 + 2*(i-1)
        L.append(f"    s_memtime s[{r}:{r+1}]")

SLOT = 36864
LDS_NONCE = 4 * SLOT
LDS_SIZE = 4 * SLOT + 64
WS_RS = 32 << 20
WS_FLAG_H = 64 << 20
WS_FLAG_RS = (64 << 20) + (1 << 20)
LOG2E_NEG = 0xbfb8aa3b

sX, sW1, sW2, sOUT, sWS, sDBG = 4, 8, 12, 16, 20, 24
sMT, sG, sNB, sJ, sWV, sW, sGRP, sNONCE = 28, 29, 30, 31, 32, 33, 34, 35
sF0B = 36
sXB = 37
sT0, sT1, sT2, sT3, sT4, sT5 = 38, 39, 40, 41, 42, 43
sSLOTN = 44
sSLOTD = 45
sHB = 46
sFLH = 47
sFS = 50
sLOG = 51
sST = 52
sHL = 53
sW2B = 54
sPEND = 55
sPEND2 = 56
sNT = 57
sEX = 58
sFLC = 60
sT6, sT7 = 62, 63
sSPIN = 61
SPIN_MAX = 200000

def srd(r): return f"s[{r}:{r+3}]"

vX = 0
vACC1 = 144
vACC2 = 176
vAF = 208
vXR = 232
vWR = 236
vW1R = 238
vXOFF = 240
vW0OFF = 241
vW1OFF = 242
vLANE = 243
vHST = 244
vCUR = 245
vT = 248
vACCP = 0
vAF2 = 72
vHFC = 96
vHFN = 112
vW2R = 128
vW2C = 129
vW2N = 130
vPOLL = 131
vFLA = 132
vL16 = 133
vP2T = 136

def vr(b, n=4): return f"v[{b}:{b+n-1}]"

lab(KNAME)
a("s_cmp_ge_u32 s2, 256")
a("s_cbranch_scc1 L_end")
stamp(0)
a("s_load_dwordx4 s[80:83], s[0:1], 0")
a("s_load_dwordx4 s[84:87], s[0:1], 16")
a("s_load_dwordx4 s[88:91], s[0:1], 32")
a("s_memrealtime s[92:93]")
a(f"v_and_b32 v{vLANE}, 63, v0")
a(f"v_lshrrev_b32 v{vT}, 6, v0")
a("s_nop 0")
a(f"v_readfirstlane_b32 s{sWV}, v{vT}")
a(f"s_and_b32 s{sT0}, s2, 7")
a(f"s_lshr_b32 s{sT1}, s2, 3")
a(f"s_lshr_b32 s{sG}, s{sT0}, 1")
a(f"s_and_b32 s{sT2}, s{sT0}, 1")
a(f"s_lshl_b32 s{sT2}, s{sT2}, 3")
a(f"s_lshr_b32 s{sT3}, s{sT1}, 2")
a(f"s_add_u32 s{sMT}, s{sT2}, s{sT3}")
a(f"s_and_b32 s{sNB}, s{sT1}, 3")
a(f"s_lshl_b32 s{sJ}, s{sG}, 2")
a(f"s_add_u32 s{sJ}, s{sJ}, s{sNB}")
a(f"s_and_b32 s{sW}, s{sWV}, 3")
a(f"s_lshr_b32 s{sGRP}, s{sWV}, 2")
a(f"s_mul_i32 s{sT0}, s{sJ}, 576")
a(f"s_and_b32 s{sT1}, s{sJ}, 1")
a(f"s_lshl_b32 s{sT2}, s{sT1}, 6")
a(f"s_add_u32 s{sF0B}, s{sT0}, s{sT2}")
a(f"s_xor_b32 s{sT1}, s{sT1}, 1")
a(f"s_lshl_b32 s{sT1}, s{sT1}, 9")
a(f"s_add_u32 s{sFS}, s{sT0}, s{sT1}")
a(f"s_mul_i32 s{sXB}, s{sMT}, {128*1152}")
a(f"s_mov_b32 s{sLOG}, 0x{LOG2E_NEG:08x}")

l = vLANE
t0, t1, t2, t3 = vT, vT+1, vT+2, vT+3
a(f"v_lshrrev_b32 v{t0}, 3, v{l}")
a(f"v_mul_u32_u24 v{vXOFF}, 1152, v{t0}")
a(f"v_and_b32 v{t1}, 7, v{l}")
a(f"v_lshrrev_b32 v{t2}, 4, v{l}")
a(f"v_xor_b32 v{t1}, v{t1}, v{t2}")
a(f"s_and_b32 s{sT0}, s{sWV}, 1")
a(f"s_lshl_b32 s{sT0}, s{sT0}, 2")
a(f"v_xor_b32 v{t1}, s{sT0}, v{t1}")
a(f"v_lshlrev_b32 v{t1}, 4, v{t1}")
a(f"v_add_u32 v{vXOFF}, v{vXOFF}, v{t1}")
a(f"v_lshrrev_b32 v{t0}, 4, v{l}")
a(f"v_mul_u32_u24 v{vW0OFF}, 9216, v{t0}")
a(f"v_bfe_u32 v{t1}, v{l}, 2, 2")
a(f"v_xor_b32 v{t1}, v{t1}, v{t0}")
a(f"v_lshlrev_b32 v{t1}, 6, v{t1}")
a(f"v_and_b32 v{t2}, 3, v{l}")
a(f"v_lshlrev_b32 v{t2}, 4, v{t2}")
a(f"v_add3_u32 v{vW0OFF}, v{vW0OFF}, v{t1}, v{t2}")
a(f"s_mul_i32 s{sT4}, s{sW}, {8*1152}")
a(f"s_add_u32 s{sT4}, s{sT4}, s{sXB}")
a(f"s_mul_i32 s{sT5}, s{sW}, {4*9216}")
a(f"s_add_u32 s{sT5}, s{sT5}, s{sF0B}")
a(f"s_lshl_b32 s{sT6}, s{sW}, 10")
a("s_waitcnt lgkmcnt(0)")
for (r, src, nbytes) in ((sX, 80, 2048*576*2), (sW1, 82, 576*4608*2), (sW2, 84, 4608*576*2), (sOUT, 86, 2048*576*2), (sDBG, 88, 256), (sWS, 90, 256 << 20)):
    a(f"s_mov_b32 s{r}, s{src}")
    a(f"s_mov_b32 s{r+1}, s{src+1}")
    a(f"s_mov_b32 s{r+2}, {nbytes}")
    a(f"s_mov_b32 s{r+3}, 0x20000")

def dma_p0_list(t):
    slot = (t % 4) * SLOT
    G = []
    for k in range(4):
        G.append([f"s_add_u32 m0, s{sT6}, {slot + 4096*k}",
                  f"s_add_u32 s{sT1}, s{sT4}, {128*t + 32*1152*k}",
                  f"buffer_load_dwordx4 v{vXOFF}, {srd(sX)}, s{sT1} offen lds"])
        G.append([f"s_add_u32 m0, s{sT6}, {slot + 16384 + 4096*k}",
                  f"s_add_u32 s{sT1}, s{sT5}, {(64*t + 16*k)*9216}",
                  f"buffer_load_dwordx4 v{vW0OFF}, {srd(sW1)}, s{sT1} offen lds"])
    return G

_gid = [0]
def emit_groups_A(G):
    _gid[0] += 1
    a(f"s_cmp_lg_u32 s{sGRP}, 0")
    a(f"s_cbranch_scc1 L_gskip_{_gid[0]}")
    emit_groups(G)
    lab(f"L_gskip_{_gid[0]}")

def emit_groups(G):
    for g in G:
        for ins in g: a(ins)

a(f"s_cmp_lg_u32 s{sWV}, 0")
a("s_cbranch_scc1 L_no_nonce")
a(f"s_or_b32 s{sNT}, s92, 1")
a(f"v_mov_b32 v{vT+4}, s{sNT}")
a(f"v_mov_b32 v{vT+5}, 0")
a(f"s_lshl_b32 s{sT0}, s{sMT}, 2")
a(f"v_mov_b32 v{vT+6}, s{sT0}")
a(f"v_cmp_eq_u32 vcc, 0, v{l}")
a(f"s_and_saveexec_b64 s[{sEX}:{sEX+1}], vcc")
a(f"buffer_atomic_cmpswap v[{vT+4}:{vT+5}], v{vT+6}, {srd(sDBG)}, 0 offen sc0")
a(f"s_mov_b64 exec, s[{sEX}:{sEX+1}]")
lab("L_no_nonce")
a(f"s_cmp_lg_u32 s{sGRP}, 0")
a("s_cbranch_scc1 L_pf")
emit_groups(dma_p0_list(0))
emit_groups(dma_p0_list(1))
a("s_branch L_pf_done")
lab("L_pf")
a(f"s_lshl_b32 s{sT0}, s2, 13")
a(f"v_lshlrev_b32 v{vT}, 7, v{l}")
a(f"v_add_u32 v{vT}, s{sT0}, v{vT}")
for wv, lst in ((0, [(sX, 0), (sW1, 0)]), (1, [(sW1, 1), (sX, 1)]), (2, [(sW1, 2), (sW2, 0)]), (3, [(sW2, 1), (sW2, 2)])):
    a(f"s_cmp_lg_u32 s{sW}, {wv}")
    a(f"s_cbranch_scc1 L_pf_{wv}")
    for i, (sr, k) in enumerate(lst):
        a(f"s_mov_b32 s{sT1}, {k << 21}")
        a(f"buffer_load_dword v247, v{vT}, {srd(sr)}, s{sT1} offen")
    lab(f"L_pf_{wv}")
lab("L_pf_done")


a(f"v_lshrrev_b32 v{t0}, 3, v{l}")
a(f"v_mul_u32_u24 v{vW1OFF}, 9216, v{t0}")
a(f"v_bfe_u32 v{t1}, v{l}, 2, 1")
a(f"v_bfe_u32 v{t2}, v{l}, 4, 1")
a(f"v_xor_b32 v{t1}, v{t1}, v{t2}")
a(f"v_lshlrev_b32 v{t1}, 6, v{t1}")
a(f"v_and_b32 v{t2}, 3, v{l}")
a(f"v_lshlrev_b32 v{t2}, 4, v{t2}")
a(f"v_add3_u32 v{vW1OFF}, v{vW1OFF}, v{t1}, v{t2}")

a(f"v_and_b32 v{t0}, 31, v{l}")
a(f"s_lshl_b32 s{sT0}, s{sW}, 12")
a(f"v_lshlrev_b32 v{t1}, 7, v{t0}")
a(f"v_add_u32 v{t1}, s{sT0}, v{t1}")
a(f"v_bfe_u32 v{t2}, v{l}, 1, 3")
a(f"v_lshrrev_b32 v{t3}, 5, v{l}")
a(f"v_xor_b32 v{t2}, v{t2}, v{t3}")
a(f"v_lshlrev_b32 v{t2}, 4, v{t2}")
a(f"v_add_u32 v{vXR}, v{t1}, v{t2}")
a(f"v_xor_b32 v{vXR+1}, 32, v{vXR}")
a(f"v_xor_b32 v{vXR+2}, 64, v{vXR}")
a(f"v_xor_b32 v{vXR+3}, 0x60, v{vXR}")
a(f"v_lshrrev_b32 v{t0}, 5, v{l}")
a(f"v_bfe_u32 v{t1}, v{l}, 2, 2")
a(f"v_lshl_add_u32 v{t0}, v{t0}, 3, v{t1}")
a(f"v_lshlrev_b32 v{t0}, 8, v{t0}")
a(f"v_bfe_u32 v{t2}, v{l}, 4, 1")
a(f"v_lshlrev_b32 v{t2}, 5, v{t2}")
a(f"v_and_b32 v{t3}, 3, v{l}")
a(f"v_lshlrev_b32 v{t3}, 3, v{t3}")
a(f"v_add3_u32 v{t0}, v{t0}, v{t2}, v{t3}")
a(f"v_add_u32 v{t0}, 16384, v{t0}")
a(f"s_lshl_b32 s{sT0}, s{sGRP}, 1")
a(f"v_xor_b32 v{t2}, s{sT0}, v{t1}")
a(f"v_lshl_add_u32 v{vWR}, v{t2}, 6, v{t0}")
a(f"v_xor_b32 v{vWR+1}, 64, v{vWR}")
a(f"v_lshrrev_b32 v{t0}, 5, v{l}")
a(f"v_lshl_add_u32 v{t0}, v{t0}, 3, v{t1}")
a(f"v_lshlrev_b32 v{t0}, 7, v{t0}")
a(f"v_bfe_u32 v{t2}, v{l}, 4, 1")
a(f"v_lshlrev_b32 v{t2}, 5, v{t2}")
a(f"v_add3_u32 v{t0}, v{t0}, v{t2}, v{t3}")
a(f"v_bfe_u32 v{t2}, v{l}, 3, 1")
a(f"v_lshl_add_u32 v{vW1R}, v{t2}, 6, v{t0}")
a(f"v_xor_b32 v{vW1R+1}, 64, v{vW1R}")
a(f"v_bfe_u32 v{t0}, v{l}, 4, 1")
a(f"v_lshlrev_b32 v{t0}, 10, v{t0}")
a(f"v_lshrrev_b32 v{t1}, 5, v{l}")
a(f"v_lshlrev_b32 v{t1}, 8, v{t1}")
a(f"v_and_b32 v{t2}, 15, v{l}")
a(f"v_lshlrev_b32 v{t2}, 4, v{t2}")
a(f"v_add3_u32 v{vHST}, v{t0}, v{t1}, v{t2}")
a(f"s_lshl_b32 s{sT0}, s{sMT}, 2")
a(f"s_add_u32 s{sT0}, s{sT0}, s{sW}")
a(f"s_mul_i32 s{sT1}, s{sT0}, 144")
a(f"s_mul_i32 s{sT2}, s{sJ}, 9")
a(f"s_add_u32 s{sT2}, s{sT1}, s{sT2}")
a(f"s_lshl_b32 s{sHB}, s{sT2}, 11")
a(f"s_mul_i32 s{sT2}, s{sG}, 36")
a(f"s_add_u32 s{sT2}, s{sT1}, s{sT2}")
a(f"s_mul_i32 s{sT3}, s{sGRP}, 18")
a(f"s_add_u32 s{sT2}, s{sT2}, s{sT3}")
a(f"s_lshl_b32 s{sHL}, s{sT2}, 11")
a(f"s_lshl_b32 s{sT0}, s{sMT}, 2")
a(f"s_add_u32 s{sT0}, s{sT0}, s{sG}")
a(f"s_lshl_b32 s{sT0}, s{sT0}, 2")
a(f"s_add_u32 s{sT0}, s{sT0}, s{sW}")
a(f"s_lshl_b32 s{sT0}, s{sT0}, 8")
a(f"s_add_u32 s{sFLC}, s{sT0}, {WS_FLAG_H}")
a(f"s_lshl_b32 s{sT1}, s{sNB}, 2")
a(f"s_add_u32 s{sFLH}, s{sFLC}, s{sT1}")
a(f"s_mul_i32 s{sT0}, s{sG}, {1152*1152}")
a(f"s_mul_i32 s{sT1}, s{sNB}, 288")
a(f"s_add_u32 s{sW2B}, s{sT0}, s{sT1}")
for r in range(64):
    a(f"v_mov_b32 v{vACC1+r}, 0")

def dma_t1_all(stage, dr0, fcoff):
    slot = (stage % 4) * SLOT
    a(f"s_mul_i32 s{sT2}, s{sWV}, {8*9216}")
    a(f"s_add_u32 s{sT2}, s{sT2}, s{sF0B}")
    for k in range(5):
        if k == 4:
            a(f"s_cmp_ge_u32 s{sWV}, 4")
            a(f"s_cbranch_scc1 L_skip_t1_{stage}")
        a(f"s_add_u32 m0, s{sT6}, {slot + 8192*k}")
        a(f"s_add_u32 s{sT1}, s{sT2}, {(dr0 + 64*k)*9216 + fcoff}")
        a(f"buffer_load_dwordx4 v{vW1OFF}, {srd(sW1)}, s{sT1} offen lds")
    lab(f"L_skip_t1_{stage}")

def dma_t1_4w(stage, dr0, fcoff):
    slot = (stage % 4) * SLOT
    G = [[f"s_mul_i32 s{sT2}, s{sW}, {8*9216}", f"s_add_u32 s{sT2}, s{sT2}, s{sF0B}"]]
    for k in range(9):
        G.append([f"s_add_u32 m0, s{sT6}, {slot + 4096*k}",
                  f"s_add_u32 s{sT1}, s{sT2}, {(dr0 + 32*k)*9216 + fcoff}",
                  f"buffer_load_dwordx4 v{vW1OFF}, {srd(sW1)}, s{sT1} offen lds"])
    return G

def p0_reads(ks):
    t, sp = ks // 4, ks % 4
    so = (t % 2) * SLOT
    buf = ks % 3
    R = []
    R.append(f"ds_read_b128 {vr(vX+4*ks)}, v{vXR+sp} offset:{so}")
    for tl in range(2):
        for e4 in range(2):
            d = vAF + buf*8 + tl*4 + e4*2
            R.append(f"ds_read_b64_tr_b16 v[{d}:{d+1}], v{vWR+tl} offset:{so + (16*sp + 4*e4)*256}")
    return R

def toggle_p0(t):
    if t % 2 == 0 and t > 0:
        op = "v_add_u32" if (t % 4) == 2 else "v_subrev_u32"
        for r in list(range(vXR, vXR+4)) + [vWR, vWR+1]:
            a(f"{op} v{r}, {2*SLOT}, v{r}")

a(f"s_cmp_lg_u32 s{sGRP}, 0")
a("s_cbranch_scc1 L_w0skip")
a("s_waitcnt vmcnt(8)")
lab("L_w0skip")
a("s_barrier")
stamp(1)
emit_groups_A(dma_p0_list(2))
for ins in p0_reads(0): a(ins)
for ins in p0_reads(1): a(ins)
for ks in range(36):
    nxt = ks + 2
    pend = []
    if nxt % 4 == 0:
        t = nxt // 4
        a(f"s_cmp_lg_u32 s{sGRP}, 0")
        a(f"s_cbranch_scc1 L_wskip_{t}")
        a(f"s_waitcnt vmcnt({8 if t <= 7 else 9})")
        lab(f"L_wskip_{t}")
        if t == 4:
            a(f"s_cmp_lg_u32 s{sWV}, 0")
            a("s_cbranch_scc1 L_no_nonce2")
            a(f"v_readfirstlane_b32 s{sT0}, v{vT+4}")
            a(f"s_cmp_eq_u32 s{sT0}, 0")
            a(f"s_cselect_b32 s{sT0}, s{sNT}, s{sT0}")
            a(f"v_mov_b32 v{vT+5}, s{sT0}")
            a(f"v_mov_b32 v{vT+6}, {LDS_NONCE}")
            a(f"ds_write_b32 v{vT+6}, v{vT+5}")
            lab("L_no_nonce2")
        a("s_barrier")
        if t <= 6:
            emit_groups_A(dma_p0_list(t + 2))
        elif t == 7:
            emit_groups_A(dma_t1_4w(9, 0, 256))
        elif t == 8:
            emit_groups_A(dma_t1_4w(10, 288, 256))
        if t <= 8:
            toggle_p0(t)
    if nxt < 36:
        pend = p0_reads(nxt)
    nout = 5 if ks + 1 < 36 else 0
    a(f"s_waitcnt lgkmcnt({nout})")
    buf = ks % 3
    for tl in range(2):
        acc = vACC1 + 16*tl
        af = vAF + buf*8 + tl*4
        a(f"v_mfma_f32_32x32x16_bf16 {vr(acc,16)}, {vr(af)}, {vr(vX+4*ks)}, {vr(acc,16)}")
        for ins in (pend[:3] if tl == 0 else pend[3:]): a(ins)

stamp(2)
a(f"v_mov_b32 v{vT}, {LDS_NONCE}")
a(f"ds_read_b32 v{vT+1}, v{vT}")
a(f"s_lshl_b32 s{sT6}, s{sW}, 10")
a("s_waitcnt lgkmcnt(0)")
a(f"v_readfirstlane_b32 s{sNONCE}, v{vT+1}")
a(f"s_cmp_lg_u32 s{sGRP}, 0")
a("s_cbranch_scc1 L_pathB")

def epi_tile(A, P, tt):
    for b in range(4):
        rr = [A + 4*b + i for i in range(4)]
        tt_ = [vT + i for i in range(4)]
        for i in range(4): a(f"v_mul_f32 v{tt_[i]}, s{sLOG}, v{rr[i]}")
        for i in range(4): a(f"v_exp_f32 v{tt_[i]}, v{tt_[i]}")
        for i in range(4): a(f"v_add_f32 v{tt_[i]}, 1.0, v{tt_[i]}")
        for i in range(4): a(f"v_rcp_f32 v{tt_[i]}, v{tt_[i]}")
        for i in range(4): a(f"v_mul_f32 v{tt_[i]}, v{rr[i]}, v{tt_[i]}")
        a(f"v_cvt_pk_bf16_f32 v{P+2*b}, v{tt_[0]}, v{tt_[1]}")
        a(f"v_cvt_pk_bf16_f32 v{P+2*b+1}, v{tt_[2]}, v{tt_[3]}")
        if b % 2 == 1:
            p = b // 2
            if p == 0:
                a(f"s_add_u32 s{sT0}, s{sHB}, {tt*2048}")
            a(f"buffer_store_dwordx4 {vr(P+4*p)}, v{vHST}, {srd(sWS)}, s{sT0} offen offset:{512*p} sc1")

_pk = [0]
def epi(acc, ntiles, tt0):
    for ti in range(ntiles):
        epi_tile(acc + 16*ti, vAF + 8*(_pk[0] % 3), tt0 + ti)
        _pk[0] += 1

def flags(tt0, n, tmp=vT+4):
    a(f"v_lshlrev_b32 v{tmp}, 4, v{vLANE}")
    a(f"v_mov_b32 v{tmp+1}, s{sNONCE}")
    a(f"v_cmp_gt_u32 vcc, {n}, v{vLANE}")
    a(f"s_add_u32 s{sT0}, s{sFLH}, {tt0*16}")
    a(f"s_and_saveexec_b64 s[{sEX}:{sEX+1}], vcc")
    a(f"buffer_store_dword v{tmp+1}, v{tmp}, {srd(sWS)}, s{sT0} offen sc1")
    a(f"s_mov_b64 exec, s[{sEX}:{sEX+1}]")

def blk_reads(ks, ntl, rowbytes, steps_per_stage):
    sp = ks % steps_per_stage
    buf = ks % 3
    R = []
    for tl in range(ntl):
        for e4 in range(2):
            d = vAF + buf*8 + tl*4 + e4*2
            R.append(f"ds_read_b64_tr_b16 v[{d}:{d+1}], v{vCUR+tl} offset:{(16*sp + 4*e4)*rowbytes}")
    return R

def dma_t3_4w(stage):
    slot = (stage % 4) * SLOT
    G = [[f"s_mul_i32 s{sT2}, s{sW}, {16*9216}", f"s_add_u32 s{sT2}, s{sT2}, s{sFS}"]]
    for k in range(9):
        G.append([f"s_add_u32 m0, s{sT6}, {slot + 4096*k}",
                  f"s_add_u32 s{sT1}, s{sT2}, {64*k*9216}",
                  f"buffer_load_dwordx4 v{vXOFF}, {srd(sW1)}, s{sT1} offen lds"])
    return G

TORDER = [2, 3, 0, 1, 4, 5, 6, 7, 8]
def fo_rows(tile, apar):
    if tile < 8: return apar*32 + 32*tile
    return 0 if apar else 256

def dma_p2_4w(stage, offs):
    slot = (stage % 4) * SLOT
    tile = TORDER[stage - 14]
    G = []
    for bi in range(2):
        for aa in range(4):
            G.append([f"s_add_u32 m0, s{sT6}, {slot + aa*9216 + bi*4096}",
                      f"s_add_u32 s{sT1}, s{sW2B}, {(288*aa + fo_rows(tile, aa & 1))*1152}",
                      f"buffer_load_dwordx4 v{offs+bi}, {srd(sW2)}, s{sT1} offen lds"])
    r0, r1 = fo_rows(tile, 0), fo_rows(tile, 1)
    G.append([f"s_mul_i32 s{sT1}, s{sW}, 9216",
              f"s_add_u32 m0, s{sT1}, {slot + 8192}",
              f"s_and_b32 s{sT2}, s{sW}, 1",
              f"s_mul_i32 s{sT2}, s{sT2}, {(r1 - r0)*1152}",
              f"s_mul_i32 s{sT1}, s{sW}, {288*1152}",
              f"s_add_u32 s{sT1}, s{sT1}, s{sT2}",
              f"s_add_u32 s{sT1}, s{sT1}, s{sW2B}",
              f"s_add_u32 s{sT1}, s{sT1}, {r0*1152}",
              f"buffer_load_dwordx4 v{offs+2}, {srd(sW2)}, s{sT1} offen lds"])
    return G

def w2off(dst, bsgpr, tmp):
    a(f"s_lshl_b32 s{sT2}, s{bsgpr}, 6")
    a(f"v_add_u32 v{tmp}, s{sT2}, v{vLANE}")
    a(f"v_mul_u32_u24 v{dst}, 3641, v{tmp}")
    a(f"v_lshrrev_b32 v{dst}, 16, v{dst}")
    a(f"v_mul_u32_u24 v{tmp+1}, 18, v{dst}")
    a(f"v_sub_u32 v{tmp}, v{tmp}, v{tmp+1}")
    a(f"v_mul_u32_u24 v{dst}, 1152, v{dst}")
    a(f"v_lshl_add_u32 v{dst}, v{tmp}, 4, v{dst}")

def w2offs3():
    a(f"s_mov_b32 s{sT3}, s{sW}")
    w2off(vXR, sT3, vT)
    a(f"s_add_u32 s{sT3}, s{sW}, 4")
    w2off(vXR+1, sT3, vT)
    a(f"s_mov_b32 s{sT3}, 8")
    w2off(vXR+2, sT3, vT)

def block2(stA, stB, dma0, dma1):
    a(f"v_add_u32 v{vCUR}, {(stA%4)*SLOT}, v{vW1R}")
    a(f"v_add_u32 v{vCUR+1}, {(stA%4)*SLOT}, v{vW1R+1}")
    for ins in blk_reads(0, 2, 128, 18): a(ins)
    for ins in blk_reads(1, 2, 128, 18): a(ins)
    dq = list(dma0)
    for ks in range(36):
        nxt = ks + 2
        if nxt == 18:
            a("s_waitcnt vmcnt(9)")
            a("s_barrier")
            a(f"v_add_u32 v{vCUR}, {(stB%4)*SLOT}, v{vW1R}")
            a(f"v_add_u32 v{vCUR+1}, {(stB%4)*SLOT}, v{vW1R+1}")
            dq = list(dma1)
        if nxt == 36:
            a("s_waitcnt vmcnt(9)")
            a("s_barrier")
        pend = blk_reads(nxt, 2, 128, 18) if nxt < 36 else []
        a(f"s_waitcnt lgkmcnt({4 if ks+1 < 36 else 0})")
        buf = ks % 3
        for tl in range(2):
            acc = vACC2 + 16*tl
            af = vAF + buf*8 + tl*4
            a(f"v_mfma_f32_32x32x16_bf16 {vr(acc,16)}, {vr(af)}, {vr(vX+4*ks)}, {vr(acc,16)}")
            for ins in (pend[:2] if tl == 0 else pend[2:]): a(ins)
            if tl == 1 and dq:
                for ins in dq.pop(0): a(ins)

_pc = [0]
def poll_issue(tile_sgpr_or_int):
    if isinstance(tile_sgpr_or_int, int):
        a(f"s_add_u32 s{sT0}, s{sFLC}, {tile_sgpr_or_int*16}")
    else:
        a(f"s_lshl_b32 s{sT0}, {tile_sgpr_or_int}, 4")
        a(f"s_add_u32 s{sT0}, s{sT0}, s{sFLC}")
    a(f"buffer_load_dword v{vPOLL}, v{vFLA}, {srd(sWS)}, s{sT0} offen sc1")

def poll_spin(tile_sgpr_or_int):
    _pc[0] += 1
    n = _pc[0]
    a(f"s_mov_b32 s{sSPIN}, 0")
    lab(f"L_spin_{n}")
    poll_issue(tile_sgpr_or_int)
    a(f"s_add_u32 s{sSPIN}, s{sSPIN}, 1")
    a(f"s_cmp_gt_u32 s{sSPIN}, {SPIN_MAX}")
    a(f"s_cbranch_scc1 L_spin_out_{n}")
    a("s_waitcnt vmcnt(0)")
    a(f"v_cmp_ne_u32 vcc, s{sNONCE}, v{vPOLL}")
    a("s_cmp_eq_u64 vcc, 0")
    a(f"s_cbranch_scc0 L_spin_{n}")
    lab(f"L_spin_out_{n}")

def h_issue(tile):
    if isinstance(tile, int):
        a(f"s_add_u32 s{sT0}, s{sHL}, {tile*2048}")
    else:
        a(f"s_lshl_b32 s{sT0}, {tile}, 11")
        a(f"s_add_u32 s{sT0}, s{sT0}, s{sHL}")
    a(f"s_add_u32 s{sT1}, s{sT0}, {9*2048}")
    a(f"buffer_load_dwordx4 {vr(vHFN)}, v{vL16}, {srd(sWS)}, s{sT0} offen sc1")
    a(f"buffer_load_dwordx4 {vr(vHFN+4)}, v{vL16}, {srd(sWS)}, s{sT0} offen offset:1024 sc1")
    a(f"buffer_load_dwordx4 {vr(vHFN+8)}, v{vL16}, {srd(sWS)}, s{sT1} offen sc1")
    a(f"buffer_load_dwordx4 {vr(vHFN+12)}, v{vL16}, {srd(sWS)}, s{sT1} offen offset:1024 sc1")

def p2_preamble():
    a(f"v_lshlrev_b32 v{vL16}, 4, v{vLANE}")
    a(f"v_and_b32 v{vFLA}, 3, v{vLANE}")
    a(f"v_lshlrev_b32 v{vFLA}, 2, v{vFLA}")
    a(f"v_lshrrev_b32 v{vP2T}, 5, v{vLANE}")
    a(f"v_lshlrev_b32 v{vP2T}, 4, v{vP2T}")
    a(f"v_bfe_u32 v{vP2T+1}, v{vLANE}, 4, 1")
    a(f"v_lshl_add_u32 v{vP2T}, v{vP2T+1}, 2, v{vP2T}")
    a(f"v_bfe_u32 v{vP2T+1}, v{vLANE}, 2, 2")
    a(f"v_add_u32 v{vP2T}, v{vP2T}, v{vP2T+1}")
    a(f"v_mul_u32_u24 v{vP2T}, 288, v{vP2T}")
    a(f"v_and_b32 v{vP2T+1}, 3, v{vLANE}")
    a(f"v_lshl_add_u32 v{vP2T}, v{vP2T+1}, 3, v{vP2T}")
    a(f"s_mul_i32 s{sT0}, s{sGRP}, {2*9216}")
    a(f"v_add_u32 v{vW2R}, s{sT0}, v{vP2T}")
    for r in range(72):
        a(f"v_mov_b32 v{vACCP+r}, 0")
    poll_spin(TORDER[0])
    h_issue(TORDER[0])
    poll_issue(TORDER[1])

cm("---- path A")
block2(9, 10, dma_t1_4w(11, 0, 384), dma_t1_4w(12, 288, 384))
stamp(3)
epi(vACC1, 2, 0)
a("s_waitcnt vmcnt(4)")
stamp(4)
a("s_barrier")
epi(vACC2, 2, 4)
a("s_waitcnt vmcnt(4)")
flags(0, 2)
for r in range(16):
    a(f"v_mov_b32 v{vACC1+r}, 0")
w2offs3()
a(f"v_lshrrev_b32 v{vT}, 5, v{vLANE}")
a(f"v_bfe_u32 v{vT+1}, v{vLANE}, 2, 2")
a(f"v_lshl_add_u32 v{vT}, v{vT}, 3, v{vT+1}")
a(f"v_lshlrev_b32 v{vT}, 6, v{vT}")
a(f"v_bfe_u32 v{vT+1}, v{vLANE}, 4, 1")
a(f"v_lshlrev_b32 v{vT+1}, 5, v{vT+1}")
a(f"v_and_b32 v{vT+2}, 3, v{vLANE}")
a(f"v_lshlrev_b32 v{vT+2}, 3, v{vT+2}")
a(f"v_add3_u32 v{vCUR}, v{vT}, v{vT+1}, v{vT+2}")
a(f"v_add_u32 v{vCUR}, {(13%4)*SLOT}, v{vCUR}")
stamp(5)
a("s_barrier")
stamp(6)
def b3_reads(ks):
    d = vAF + (ks % 6)*4
    return [f"ds_read_b64_tr_b16 v[{d+2*e4}:{d+2*e4+1}], v{vCUR} offset:{(16*ks + 4*e4)*64}" for e4 in range(2)]
for k in range(4):
    for ins in b3_reads(k): a(ins)
dq = dma_p2_4w(15, vXR)
for ks in range(36):
    nxt = ks + 4
    if ks == 24:
        a("s_waitcnt vmcnt(9)")
        flags(4, 2)
    if ks == 31:
        a("s_barrier")
    pend = b3_reads(nxt) if nxt < 36 else []
    nout = 2*min(3, 35 - ks)
    a(f"s_waitcnt lgkmcnt({nout})")
    af = vAF + (ks % 6)*4
    a(f"v_mfma_f32_32x32x16_bf16 {vr(vACC1,16)}, {vr(af)}, {vr(vX+4*ks)}, {vr(vACC1,16)}")
    for ins in pend: a(ins)
    if ks % 2 == 1 and dq:
        for ins in dq.pop(0): a(ins)
stamp(7)
a(f"s_mov_b32 s{sPEND}, 8")
a(f"s_mov_b32 s{sPEND2}, 1")
p2_preamble()
epi(vACC1, 1, 8)
a("s_waitcnt vmcnt(2)")
a("s_branch L_p2")

lab("L_pathB")
cm("---- path B")
a(f"v_lshrrev_b32 v{vXOFF}, 2, v{vLANE}")
a(f"v_mul_u32_u24 v{vXOFF}, 9216, v{vXOFF}")
a(f"v_and_b32 v{vT+7}, 3, v{vLANE}")
a(f"v_lshl_add_u32 v{vXOFF}, v{vT+7}, 4, v{vXOFF}")
w2offs3()
epi(vACC1, 2, 2)
stamp(3)
a("s_barrier")
a("s_waitcnt vmcnt(0)")
flags(2, 2)
stamp(4)
a("s_barrier")
stamp(5)
block2(11, 12, dma_t3_4w(13), dma_p2_4w(14, vXR))
stamp(6)
a(f"s_mov_b32 s{sPEND}, 6")
a(f"s_mov_b32 s{sPEND2}, 2")
p2_preamble()
epi(vACC2, 2, 6)
stamp(7)
a("s_barrier")
a("s_waitcnt vmcnt(4)")

lab("L_p2")
stamp(8)
a(f"s_cmp_eq_u32 s{sGRP}, 0")
a("s_cbranch_scc1 L_p2_offok")
a(f"v_mov_b32 v{vXR}, v{vXR+1}")
lab("L_p2_offok")
a(f"s_lshl_b32 s{sT6}, s{sWV}, 10")

def dma_p2_loop(tile_sgpr, slot_sgpr, uid):
    a(f"s_mul_i32 s{sT2}, s{tile_sgpr}, {32*1152}")
    a(f"s_add_u32 s{sT3}, s{sT2}, {32*1152}")
    a(f"s_cmp_eq_u32 s{tile_sgpr}, 8")
    a(f"s_cselect_b32 s{sT3}, 0, s{sT3}")
    a(f"s_add_u32 s{sT2}, s{sT2}, s{sW2B}")
    a(f"s_add_u32 s{sT3}, s{sT3}, s{sW2B}")
    a(f"s_add_u32 s{sT4}, s{slot_sgpr}, s{sT6}")
    for aa in range(4):
        a(f"s_add_u32 m0, s{sT4}, {aa*9216}")
        a(f"s_add_u32 s{sT1}, s{sT3 if aa & 1 else sT2}, {288*aa*1152}")
        a(f"buffer_load_dwordx4 v{vXR}, {srd(sW2)}, s{sT1} offen lds")
    a(f"s_cmp_ge_u32 s{sWV}, 4")
    a(f"s_cbranch_scc1 L_skip_p2d_{uid}")
    a(f"s_mul_i32 s{sT4}, s{sWV}, 9216")
    a(f"s_add_u32 s{sT4}, s{sT4}, s{slot_sgpr}")
    a(f"s_add_u32 m0, s{sT4}, 8192")
    a(f"s_and_b32 s{sT1}, s{sWV}, 1")
    a(f"s_cselect_b32 s{sT1}, s{sT3}, s{sT2}")
    a(f"s_mul_i32 s{sT4}, s{sWV}, {288*1152}")
    a(f"s_add_u32 s{sT1}, s{sT1}, s{sT4}")
    a(f"buffer_load_dwordx4 v{vXR+2}, {srd(sW2)}, s{sT1} offen lds")
    lab(f"L_skip_p2d_{uid}")

def tile_of(dst, s_sgpr, add):
    a(f"s_add_u32 s{dst}, s{s_sgpr}, {add}")
    a(f"s_min_u32 s{dst}, s{dst}, 8")
    a(f"s_xor_b32 s{sT7}, s{dst}, 2")
    a(f"s_cmp_lt_u32 s{dst}, 4")
    a(f"s_cselect_b32 s{dst}, s{sT7}, s{dst}")

def p2_reads(idx, addr):
    st, jn = idx // 9, idx % 9
    d = vAF2 + (idx % 6)*4
    return [f"ds_read_b64_tr_b16 v[{d+2*e4}:{d+2*e4+1}], v{addr} offset:{st*9216 + e4*8*288 + jn*32}" for e4 in range(2)]

a(f"s_mov_b32 s{sST}, 0")
a(f"s_mov_b32 s{sT5}, {TORDER[2]}")
a(f"s_mov_b32 s{sSLOTD}, {(16%4)*SLOT}")
dma_p2_loop(sT5, sSLOTD, "e")
a(f"s_mov_b32 s{sSLOTD}, {(17%4)*SLOT}")
a(f"s_mov_b32 s{sSLOTN}, {(15%4)*SLOT}")
a(f"v_add_u32 v{vW2C}, {(14%4)*SLOT}, v{vW2R}")
for i in range(4):
    for ins in p2_reads(i, vW2C): a(ins)
a("s_branch L_p2_top_nowait")

lab("L_p2_loop")
a(f"s_cmp_ge_u32 s{sST}, 7")
a("s_cbranch_scc1 L_p2_w0")
a("s_waitcnt vmcnt(4)")
a("s_branch L_p2_wdone")
lab("L_p2_w0")
a("s_waitcnt vmcnt(0)")
lab("L_p2_wdone")
a(f"s_cmp_lg_u32 s{sST}, 1")
a("s_cbranch_scc1 L_p2_top_nowait")
a(f"v_lshlrev_b32 v{vP2T}, 4, v{vLANE}")
a(f"v_mov_b32 v{vP2T+1}, s{sNONCE}")
a(f"v_cmp_gt_u32 vcc, s{sPEND2}, v{vLANE}")
a(f"s_lshl_b32 s{sT0}, s{sPEND}, 4")
a(f"s_add_u32 s{sT0}, s{sT0}, s{sFLH}")
a(f"s_and_saveexec_b64 s[{sEX}:{sEX+1}], vcc")
a(f"buffer_store_dword v{vP2T+1}, v{vP2T}, {srd(sWS)}, s{sT0} offen sc1")
a(f"s_mov_b64 exec, s[{sEX}:{sEX+1}]")
lab("L_p2_top_nowait")
for r in range(16):
    a(f"v_mov_b32 v{vHFC+r}, v{vHFN+r}")
a(f"s_cmp_eq_u32 s{sST}, 8")
a("s_cbranch_scc1 L_p2_nopf")
tile_of(sT5, sST, 1)
a(f"v_cmp_ne_u32 vcc, s{sNONCE}, v{vPOLL}")
a("s_cmp_eq_u64 vcc, 0")
a("s_cbranch_scc1 L_p2_ready")
poll_spin(f"s{sT5}")
lab("L_p2_ready")
h_issue(f"s{sT5}")
tile_of(sT5, sST, 2)
poll_issue(f"s{sT5}")
lab("L_p2_nopf")
for idx in range(18):
    st, jn = idx // 9, idx % 9
    if idx == 14:
        a("s_barrier")
        a(f"v_add_u32 v{vW2N}, s{sSLOTN}, v{vW2R}")
        a(f"s_cmp_ge_u32 s{sST}, 6")
        a("s_cbranch_scc1 L_p2_nodma")
        tile_of(sT5, sST, 3)
        dma_p2_loop(sT5, sSLOTD, "l")
        lab("L_p2_nodma")
    a("s_waitcnt lgkmcnt(6)")
    af = vAF2 + (idx % 6)*4
    for mh in range(2):
        acc = vACCP + (jn*2 + mh)*4
        hf = vHFC + st*8 + mh*4
        a(f"v_mfma_f32_16x16x32_bf16 {vr(acc)}, {vr(af)}, {vr(hf)}, {vr(acc)}")
        nx = idx + 4
        rd = p2_reads(nx, vW2C) if nx < 18 else p2_reads(nx - 18, vW2N)
        a(rd[mh])
a(f"v_mov_b32 v{vW2C}, v{vW2N}")
for sr in (sSLOTN, sSLOTD):
    a(f"s_add_u32 s{sr}, s{sr}, {SLOT}")
    a(f"s_cmp_eq_u32 s{sr}, {4*SLOT}")
    a(f"s_cselect_b32 s{sr}, 0, s{sr}")
a(f"s_add_u32 s{sST}, s{sST}, 1")
a(f"s_cmp_lt_u32 s{sST}, 9")
a("s_cbranch_scc1 L_p2_loop")
stamp(9)

a("s_waitcnt lgkmcnt(0)")
a(f"s_lshl_b32 s{sT0}, s{sW}, 13")
a(f"s_mul_i32 s{sT1}, s{sW}, 10240")
a(f"s_add_u32 s{sT1}, s{sT1}, 32768")
a(f"v_add_u32 v{vP2T}, s{sT0}, v{vL16}")
a(f"v_add_u32 v{vP2T+1}, s{sT1}, v{vL16}")
a(f"s_lshl_b32 s{sT2}, s{sMT}, 2")
a(f"s_add_u32 s{sT2}, s{sT2}, s{sNB}")
a(f"s_lshl_b32 s{sT2}, s{sT2}, 2")
a(f"s_add_u32 s{sT2}, s{sT2}, s{sW}")
a(f"s_lshl_b32 s{sT3}, s{sT2}, 1")
a(f"s_add_u32 s{sT3}, s{sT3}, s{sGRP}")
a(f"s_lshl_b32 s{sT3}, s{sT3}, 4")
a(f"s_add_u32 s{sFLC}, s{sT3}, {WS_FLAG_RS}")
a(f"s_mul_i32 s{sT2}, s{sT2}, {4*18*1024}")
a(f"s_add_u32 s{sHL}, s{sT2}, {WS_RS}")
a(f"s_cmp_lg_u32 s{sGRP}, 0")
a("s_cbranch_scc1 L_rsB")

def rs_path(tag, send, keep, send_addr, recv_addr, tslot0):
    for i, t in enumerate(send):
        a(f"ds_write_b128 v{send_addr}, {vr(vACCP+4*t)} offset:{i*1024}")
    a("s_waitcnt lgkmcnt(0)")
    a("s_barrier")
    for i, t in enumerate(keep):
        a(f"ds_read_b128 {vr(72+4*i)}, v{recv_addr} offset:{i*1024}")
    for i, t in enumerate(keep):
        a(f"s_waitcnt lgkmcnt({len(keep)-1-i})")
        for r in range(4):
            a(f"v_add_f32 v{vACCP+4*t+r}, v{vACCP+4*t+r}, v{72+4*i+r}")
    a(f"s_cmp_eq_u32 s{sW}, s{sG}")
    a(f"s_cbranch_scc1 L_rs_own_{tag}")
    a(f"s_mul_i32 s{sT0}, s{sG}, {18*1024}")
    a(f"s_add_u32 s{sT0}, s{sT0}, s{sHL}")
    for i, t in enumerate(keep):
        o = (tslot0 + i)*1024
        if i % 4 == 0:
            a(f"s_add_u32 s{sT1}, s{sT0}, {o}")
        a(f"buffer_store_dwordx4 {vr(vACCP+4*t)}, v{vL16}, {srd(sWS)}, s{sT1} offen offset:{(i%4)*1024} sc1")
    a(f"v_mov_b32 v{vP2T+2}, s{sNONCE}")
    a(f"s_lshl_b32 s{sT0}, s{sG}, 2")
    a(f"v_mov_b32 v{vP2T+3}, s{sT0}")
    a(f"v_cmp_eq_u32 vcc, 0, v{vLANE}")
    a("s_waitcnt vmcnt(0)")
    a(f"s_and_saveexec_b64 s[{sEX}:{sEX+1}], vcc")
    a(f"buffer_store_dword v{vP2T+2}, v{vP2T+3}, {srd(sWS)}, s{sFLC} offen sc1")
    a("s_branch L_end")
    lab(f"L_rs_own_{tag}")
    a(f"s_mov_b32 s{sSPIN}, 0")
    lab(f"L_rs_spin_{tag}")
    a(f"buffer_load_dword v{vPOLL}, v{vFLA}, {srd(sWS)}, s{sFLC} offen sc1")
    a(f"s_add_u32 s{sSPIN}, s{sSPIN}, 1")
    a(f"s_cmp_gt_u32 s{sSPIN}, {SPIN_MAX}")
    a(f"s_cbranch_scc1 L_rs_spin_out_{tag}")
    a(f"s_lshl_b32 s{sT0}, s{sG}, 2")
    a("s_waitcnt vmcnt(0)")
    a(f"v_cmp_ne_u32 vcc, s{sNONCE}, v{vPOLL}")
    a(f"v_cmp_ne_u32 s[{sT2}:{sT2+1}], s{sT0}, v{vFLA}")
    a(f"s_and_b64 vcc, vcc, s[{sT2}:{sT2+1}]")
    a("s_cmp_eq_u64 vcc, 0")
    a(f"s_cbranch_scc0 L_rs_spin_{tag}")
    lab(f"L_rs_spin_out_{tag}")
    n = len(keep)
    base = 144
    regs = list(range(144, 232, 4)) + list(range(72, 128, 4))
    k = 0
    for p in range(1, 4):
        a(f"s_add_u32 s{sT0}, s{sG}, {p}")
        a(f"s_and_b32 s{sT0}, s{sT0}, 3")
        a(f"s_mul_i32 s{sT0}, s{sT0}, {18*1024}")
        a(f"s_add_u32 s{sT0}, s{sT0}, s{sHL}")
        for i, t in enumerate(keep):
            o = (tslot0 + i)*1024
            if i % 4 == 0:
                a(f"s_add_u32 s{sT1}, s{sT0}, {o}")
            a(f"buffer_load_dwordx4 {vr(regs[k])}, v{vL16}, {srd(sWS)}, s{sT1} offen offset:{(i%4)*1024} sc1")
            k += 1
    a(f"v_and_b32 v{vP2T+2}, 15, v{vLANE}")
    a(f"v_mul_u32_u24 v{vP2T+2}, 1152, v{vP2T+2}")
    a(f"v_lshrrev_b32 v{vP2T+3}, 4, v{vLANE}")
    a(f"v_lshl_add_u32 v{vP2T+2}, v{vP2T+3}, 3, v{vP2T+2}")
    a(f"s_mul_i32 s{sT2}, s{sW}, {32*1152}")
    a(f"s_add_u32 s{sT2}, s{sT2}, s{sXB}")
    a(f"s_mul_i32 s{sT3}, s{sNB}, 288")
    a(f"s_add_u32 s{sT2}, s{sT2}, s{sT3}")
    a(f"s_add_u32 s{sT3}, s{sT2}, {16*1152}")
    k = 0
    tot = 3*n
    for p in range(3):
        for i, t in enumerate(keep):
            a(f"s_waitcnt vmcnt({tot-1-k})")
            for r in range(4):
                a(f"v_add_f32 v{vACCP+4*t+r}, v{vACCP+4*t+r}, v{regs[k]+r}")
            k += 1
    for i, t in enumerate(keep):
        jn, mh = t // 2, t % 2
        d = vP2T + 4 + 2*(i % 2)
        a(f"v_cvt_pk_bf16_f32 v{d}, v{vACCP+4*t}, v{vACCP+4*t+1}")
        a(f"v_cvt_pk_bf16_f32 v{d+1}, v{vACCP+4*t+2}, v{vACCP+4*t+3}")
        a(f"buffer_store_dwordx2 v[{d}:{d+1}], v{vP2T+2}, {srd(sOUT)}, s{sT3 if mh else sT2} offen offset:{jn*32}")
    a("s_branch L_end")

rs_path("A", list(range(10, 18)), list(range(0, 10)), vP2T, vP2T+1, 0)
lab("L_rsB")
rs_path("B", list(range(0, 10)), list(range(10, 18)), vP2T+1, vP2T, 10)

lab("L_end")
if PROF:
    stamp(15)
    a("s_mov_b64 exec, -1")
    a("s_cmp_ge_u32 s2, 256")
    a("s_cbranch_scc1 L_end2")
    a("s_waitcnt lgkmcnt(0)")
    for i in range(1, 16):
        a(f"s_sub_u32 s{64+2*(i-1)}, s{64+2*(i-1)}, s100")
    a(f"v_mov_b32 v0, 0")
    for i in range(1, 16):
        a(f"v_writelane_b32 v0, s{64+2*(i-1)}, {i}")
    a(f"s_lshl_b32 s{sT0}, s2, 3")
    a(f"s_add_u32 s{sT0}, s{sT0}, s{sWV}")
    a(f"s_lshl_b32 s{sT0}, s{sT0}, 6")
    a(f"s_add_u32 s{sT0}, s{sT0}, {WS_PROF}")
    a(f"v_lshlrev_b32 v1, 2, v{vLANE}")
    a(f"v_cmp_gt_u32 vcc, 16, v{vLANE}")
    a(f"s_and_saveexec_b64 s[{sEX}:{sEX+1}], vcc")
    a(f"buffer_store_dword v0, v1, {srd(sWS)}, s{sT0} offen")
    lab("L_end2")
a("s_endpgm")

hdr = [
 f"; @launch grid=(256,1,1) block=(512,1,1) lds={LDS_SIZE}",
 '.amdgcn_target "amdgcn-amd-amdhsa--gfx950"',
 ".text",
 f".globl {KNAME}",
 ".p2align 8",
 f".type {KNAME},@function",
]
ftr = [
 '.section .rodata,"a"',
 ".p2align 6",
 f".amdhsa_kernel {KNAME}",
 "  .amdhsa_next_free_vgpr 256",
 "  .amdhsa_next_free_sgpr 102",
 "  .amdhsa_accum_offset 256",
 "  .amdhsa_group_segment_fixed_size 0",
 "  .amdhsa_kernarg_size 48",
 "  .amdhsa_user_sgpr_count 2",
 "  .amdhsa_user_sgpr_kernarg_segment_ptr 1",
 "  .amdhsa_system_sgpr_workgroup_id_x 1",
 ".end_amdhsa_kernel",
]
print("\n".join(hdr + L + ftr))
```

```python
import sys

PROF = "--prof" in sys.argv or "--prof0" in sys.argv
PROF0 = "--prof0" in sys.argv
PROFDBG = "--dbgout" in sys.argv
WS_PROF = 96 << 20

KNAME = "standalone__dense_activation_silu__prompt_kernel"
L = []
def a(s): L.append("    " + s)
def lab(s): L.append(s + ":")
def cm(s): L.append("    ; " + s)
def stamp(i, p0=False):
    if PROF0 and not p0 and i not in (0, 15): return
    if PROF:
        r = 100 if i == 0 else 64 + 2*(i-1)
        L.append(f"    s_memtime s[{r}:{r+1}]")

SLOT = 36864
LDS_NONCE = 4 * SLOT
LDS_SIZE = 4 * SLOT + 64
WS_RS = 32 << 20
WS_FLAG_H = 64 << 20
WS_FLAG_RS = (64 << 20) + (1 << 20)
LOG2E_NEG = 0xbfb8aa3b

sX, sW1, sW2, sOUT, sWS, sDBG = 4, 8, 12, 16, 20, 24
sMT, sG, sNB, sJ, sWV, sW, sGRP, sNONCE = 28, 29, 30, 31, 32, 33, 34, 35
sF0B = 36
sXB = 37
sT0, sT1, sT2, sT3, sT4, sT5 = 38, 39, 40, 41, 42, 43
sSLOTN = 44
sSLOTD = 45
sHB = 46
sFLH = 47
sFS = 50
sLOG = 51
sST = 52
sHL = 53
sW2B = 54
sPEND = 55
sPEND2 = 56
sNT = 57
sEX = 58
sFLC = 60
sT6, sT7 = 62, 63
sSPIN = 61
SPIN_MAX = 200000

def srd(r): return f"s[{r}:{r+3}]"

vX = 0
vACC1 = 144
vACC2 = 176
vAF = 208
vXR = 232
vWR = 236
vW1R = 238
vXOFF = 240
vW0OFF = 241
vW1OFF = 242
vLANE = 243
vHST = 244
vCUR = 245
vT = 248
vACCP = 0
vAF2 = 72
vHFC = 96
vHFN = 112
vW2R = 160
vW2C = 161
vW2N = 162
vPOLL = 163
vFLA = 164
vL16 = 165
vP2T = 168
sS0, sS1 = 48, 49
sPK1 = 94
sPK2 = 96

def vr(b, n=4): return f"v[{b}:{b+n-1}]"

lab(KNAME)
a("s_cmp_ge_u32 s2, 256")
a("s_cbranch_scc1 L_end")
stamp(0)
a("s_load_dwordx4 s[80:83], s[0:1], 0")
a("s_load_dwordx4 s[84:87], s[0:1], 16")
a("s_load_dwordx4 s[88:91], s[0:1], 32")
a("s_memrealtime s[92:93]")
a(f"v_and_b32 v{vLANE}, 63, v0")
a(f"v_lshrrev_b32 v{vT}, 6, v0")
a("s_nop 0")
a(f"v_readfirstlane_b32 s{sWV}, v{vT}")
a(f"s_and_b32 s{sT0}, s2, 7")
a(f"s_lshr_b32 s{sT1}, s2, 3")
a(f"s_lshr_b32 s{sG}, s{sT0}, 1")
a(f"s_and_b32 s{sT2}, s{sT0}, 1")
a(f"s_lshl_b32 s{sT2}, s{sT2}, 3")
a(f"s_lshr_b32 s{sT3}, s{sT1}, 2")
a(f"s_add_u32 s{sMT}, s{sT2}, s{sT3}")
a(f"s_and_b32 s{sNB}, s{sT1}, 3")
a(f"s_lshl_b32 s{sJ}, s{sG}, 2")
a(f"s_add_u32 s{sJ}, s{sJ}, s{sNB}")
a(f"s_and_b32 s{sW}, s{sWV}, 3")
a(f"s_lshr_b32 s{sGRP}, s{sWV}, 2")
a(f"s_mul_i32 s{sT0}, s{sJ}, 576")
a(f"s_and_b32 s{sT1}, s{sJ}, 1")
a(f"s_lshl_b32 s{sT2}, s{sT1}, 6")
a(f"s_add_u32 s{sF0B}, s{sT0}, s{sT2}")
a(f"s_xor_b32 s{sT1}, s{sT1}, 1")
a(f"s_lshl_b32 s{sT1}, s{sT1}, 9")
a(f"s_add_u32 s{sFS}, s{sT0}, s{sT1}")
a(f"s_mul_i32 s{sXB}, s{sMT}, {128*1152}")
a(f"s_mov_b32 s{sLOG}, 0x{LOG2E_NEG:08x}")

l = vLANE
t0, t1, t2, t3 = vT, vT+1, vT+2, vT+3
a(f"v_lshrrev_b32 v{t0}, 3, v{l}")
a(f"v_mul_u32_u24 v{vXOFF}, 1152, v{t0}")
a(f"v_and_b32 v{t1}, 7, v{l}")
a(f"v_lshrrev_b32 v{t2}, 4, v{l}")
a(f"v_xor_b32 v{t1}, v{t1}, v{t2}")
a(f"s_and_b32 s{sT0}, s{sWV}, 1")
a(f"s_lshl_b32 s{sT0}, s{sT0}, 2")
a(f"v_xor_b32 v{t1}, s{sT0}, v{t1}")
a(f"v_lshlrev_b32 v{t1}, 4, v{t1}")
a(f"v_add_u32 v{vXOFF}, v{vXOFF}, v{t1}")
a(f"v_lshrrev_b32 v{t0}, 4, v{l}")
a(f"v_mul_u32_u24 v{vW0OFF}, 9216, v{t0}")
a(f"v_bfe_u32 v{t1}, v{l}, 2, 2")
a(f"v_xor_b32 v{t1}, v{t1}, v{t0}")
a(f"v_lshlrev_b32 v{t1}, 6, v{t1}")
a(f"v_and_b32 v{t2}, 3, v{l}")
a(f"v_lshlrev_b32 v{t2}, 4, v{t2}")
a(f"v_add3_u32 v{vW0OFF}, v{vW0OFF}, v{t1}, v{t2}")
a(f"s_mul_i32 s{sT4}, s{sW}, {8*1152}")
a(f"s_add_u32 s{sT4}, s{sT4}, s{sXB}")
a(f"s_mul_i32 s{sT5}, s{sW}, {4*9216}")
a(f"s_add_u32 s{sT5}, s{sT5}, s{sF0B}")
a(f"s_lshl_b32 s{sT6}, s{sW}, 10")
a("s_waitcnt lgkmcnt(0)")
for (r, src, nbytes) in ((sX, 80, 2048*576*2), (sW1, 82, 576*4608*2), (sW2, 84, 4608*576*2), (sOUT, 86, 2048*576*2), (sDBG, 88, 256), (sWS, 90, 256 << 20)):
    a(f"s_mov_b32 s{r}, s{src}")
    a(f"s_mov_b32 s{r+1}, s{src+1}")
    a(f"s_mov_b32 s{r+2}, {nbytes}")
    a(f"s_mov_b32 s{r+3}, 0x20000")

def dma_p0_list(t):
    slot = (t % 4) * SLOT
    G = []
    for k in range(4):
        G.append([f"s_add_u32 m0, s{sT6}, {slot + 4096*k}",
                  f"s_add_u32 s{sT1}, s{sT4}, {128*t + 32*1152*k}",
                  f"buffer_load_dwordx4 v{vXOFF}, {srd(sX)}, s{sT1} offen lds"])
        G.append([f"s_add_u32 m0, s{sT6}, {slot + 16384 + 4096*k}",
                  f"s_add_u32 s{sT1}, s{sT5}, {(64*t + 16*k)*9216}",
                  f"buffer_load_dwordx4 v{vW0OFF}, {srd(sW1)}, s{sT1} offen lds"])
    return G

_gid = [0]
def emit_groups_A(G):
    _gid[0] += 1
    a(f"s_cmp_lg_u32 s{sGRP}, 0")
    a(f"s_cbranch_scc1 L_gskip_{_gid[0]}")
    emit_groups(G)
    lab(f"L_gskip_{_gid[0]}")

vPFX, vPFA, vPFB, vPFC = 176, 177, 178, 179
sPFX, sPFW1, sPFW2 = 94, 95, 96
def PFx(k): return (sX, vPFX, sPFX, k*256)
def PFa(k): return (sW1, vPFA, sPFW1, k*256*9216)
def PFb(k): return (sW1, vPFB, sPFW1, k*128*9216)
def PFc(k): return (sW2, vPFC, sPFW2, k*2048*128)
PF_SCHED = {
  "start": [PFa(0), PFx(1), PFx(2), PFa(1)],
  1: [PFx(3)], 2: [PFx(4), PFa(2)], 3: [PFb(0)], 4: [PFb(1)], 5: [PFb(2)], 6: [PFb(3)], 7: [PFb(4)], 8: [PFc(0)],
  "b10": [PFc(1), PFc(2), PFc(3), PFc(4), PFc(5)],
}
_pfn = [0]
def pf_emit(key, guard_grp=False):
    items = PF_SCHED.get(key, [])
    for (sr, vo, sb, off) in items:
        wv = 4 + (_pfn[0] % 4)
        _pfn[0] += 1
        a(f"s_cmp_lg_u32 s{sWV}, {wv}")
        a(f"s_cbranch_scc1 L_pfs_{_pfn[0]}")
        a(f"s_add_u32 s{sS0}, s{sb}, {off}")
        a(f"buffer_load_dword v247, v{vo}, {srd(sr)}, s{sS0} offen")
        lab(f"L_pfs_{_pfn[0]}")

def emit_groups(G):
    for g in G:
        for ins in g: a(ins)

a(f"s_cmp_lg_u32 s{sWV}, 4")
a("s_cbranch_scc1 L_no_nonce")
a(f"s_or_b32 s{sNT}, s92, 1")
a(f"v_mov_b32 v{vT+4}, s{sNT}")
a(f"v_mov_b32 v{vT+5}, 0")
a(f"s_lshl_b32 s{sT0}, s{sMT}, 2")
if PROFDBG: a(f"s_add_u32 s{sT0}, s{sT0}, 64")
a(f"v_mov_b32 v{vT+6}, s{sT0}")
a(f"v_cmp_eq_u32 vcc, 0, v{l}")
a(f"s_and_saveexec_b64 s[{sEX}:{sEX+1}], vcc")
a(f"buffer_atomic_cmpswap v[{vT+4}:{vT+5}], v{vT+6}, {srd(sDBG)}, 0 offen sc0")
a(f"s_mov_b64 exec, s[{sEX}:{sEX+1}]")
lab("L_no_nonce")
for r in (vPFX, vPFA, vPFB, vPFC): a(f"v_mov_b32 v{r}, 0")
a(f"s_cmp_lg_u32 s{sGRP}, 0")
a("s_cbranch_scc1 L_pf")
emit_groups(dma_p0_list(0))
emit_groups(dma_p0_list(1))
a("s_branch L_pf_done")
lab("L_pf")
a(f"s_lshr_b32 s{sT0}, s2, 3")
a(f"s_lshl_b32 s{sT0}, s{sT0}, 6")
a(f"v_add_u32 v{vT}, s{sT0}, v{l}")
a(f"v_and_b32 v{vPFX}, 1023, v{vT}")
a(f"v_mul_u32_u24 v{vPFX}, 1152, v{vPFX}")
a(f"v_lshrrev_b32 v{vT+2}, 10, v{vT}")
a(f"v_lshl_add_u32 v{vPFX}, v{vT+2}, 7, v{vPFX}")
a(f"s_lshr_b32 s{sPFX}, s{sMT}, 3")
a(f"s_mul_i32 s{sPFX}, s{sPFX}, {1024*1152}")
a(f"v_lshrrev_b32 v{vPFA}, 3, v{vT}")
a(f"v_mul_u32_u24 v{vPFA}, 9216, v{vPFA}")
a(f"v_and_b32 v{vT+3}, 3, v{vT}")
a(f"v_bfe_u32 v{vT+7}, v{vT}, 1, 1")
a(f"v_mul_u32_u24 v{vT+7}, 3, v{vT+7}")
a(f"v_add_u32 v{vT+3}, v{vT+3}, v{vT+7}")
a(f"v_bfe_u32 v{vT+7}, v{vT}, 2, 1")
a(f"v_mul_u32_u24 v{vT+7}, 9, v{vT+7}")
a(f"v_add_u32 v{vT+3}, v{vT+3}, v{vT+7}")
a(f"v_lshl_add_u32 v{vPFA}, v{vT+3}, 7, v{vPFA}")
a(f"s_mul_i32 s{sPFW1}, s{sG}, 2304")
a(f"v_lshrrev_b32 v{vPFB}, 4, v{vT}")
a(f"v_mul_u32_u24 v{vPFB}, 9216, v{vPFB}")
a(f"v_and_b32 v{vT+7}, 7, v{vT}")
a(f"v_min_u32 v{vT+7}, 4, v{vT+7}")
a(f"v_cmp_le_u32 vcc, 3, v{vT+7}")
a(f"v_add_u32 v{vT+7}, 2, v{vT+7}")
a("s_nop 1")
a(f"v_cndmask_b32 v{vT+3}, 0, 2, vcc")
a(f"v_add_u32 v{vT+7}, v{vT+7}, v{vT+3}")
a(f"v_bfe_u32 v{vT+3}, v{vT}, 3, 1")
a(f"v_mul_u32_u24 v{vT+3}, 9, v{vT+3}")
a(f"v_add_u32 v{vT+7}, v{vT+7}, v{vT+3}")
a(f"v_lshl_add_u32 v{vPFB}, v{vT+7}, 7, v{vPFB}")
a(f"v_lshlrev_b32 v{vPFC}, 7, v{vT}")
a(f"s_mul_i32 s{sPFW2}, s{sG}, {1152*1152}")
pf_emit("start")
lab("L_pf_done")


a(f"v_lshrrev_b32 v{t0}, 3, v{l}")
a(f"v_mul_u32_u24 v{vW1OFF}, 9216, v{t0}")
a(f"v_bfe_u32 v{t1}, v{l}, 2, 1")
a(f"v_bfe_u32 v{t2}, v{l}, 4, 1")
a(f"v_xor_b32 v{t1}, v{t1}, v{t2}")
a(f"v_lshlrev_b32 v{t1}, 6, v{t1}")
a(f"v_and_b32 v{t2}, 3, v{l}")
a(f"v_lshlrev_b32 v{t2}, 4, v{t2}")
a(f"v_add3_u32 v{vW1OFF}, v{vW1OFF}, v{t1}, v{t2}")

a(f"v_and_b32 v{t0}, 31, v{l}")
a(f"s_lshl_b32 s{sT0}, s{sW}, 12")
a(f"v_lshlrev_b32 v{t1}, 7, v{t0}")
a(f"v_add_u32 v{t1}, s{sT0}, v{t1}")
a(f"v_bfe_u32 v{t2}, v{l}, 1, 3")
a(f"v_lshrrev_b32 v{t3}, 5, v{l}")
a(f"v_xor_b32 v{t2}, v{t2}, v{t3}")
a(f"v_lshlrev_b32 v{t2}, 4, v{t2}")
a(f"v_add_u32 v{vXR}, v{t1}, v{t2}")
a(f"v_xor_b32 v{vXR+1}, 32, v{vXR}")
a(f"v_xor_b32 v{vXR+2}, 64, v{vXR}")
a(f"v_xor_b32 v{vXR+3}, 0x60, v{vXR}")
a(f"v_lshrrev_b32 v{t0}, 5, v{l}")
a(f"v_bfe_u32 v{t1}, v{l}, 2, 2")
a(f"v_lshl_add_u32 v{t0}, v{t0}, 3, v{t1}")
a(f"v_lshlrev_b32 v{t0}, 8, v{t0}")
a(f"v_bfe_u32 v{t2}, v{l}, 4, 1")
a(f"v_lshlrev_b32 v{t2}, 5, v{t2}")
a(f"v_and_b32 v{t3}, 3, v{l}")
a(f"v_lshlrev_b32 v{t3}, 3, v{t3}")
a(f"v_add3_u32 v{t0}, v{t0}, v{t2}, v{t3}")
a(f"v_add_u32 v{t0}, 16384, v{t0}")
a(f"s_lshl_b32 s{sT0}, s{sGRP}, 1")
a(f"v_xor_b32 v{t2}, s{sT0}, v{t1}")
a(f"v_lshl_add_u32 v{vWR}, v{t2}, 6, v{t0}")
a(f"v_xor_b32 v{vWR+1}, 64, v{vWR}")
a(f"v_lshrrev_b32 v{t0}, 5, v{l}")
a(f"v_lshl_add_u32 v{t0}, v{t0}, 3, v{t1}")
a(f"v_lshlrev_b32 v{t0}, 7, v{t0}")
a(f"v_bfe_u32 v{t2}, v{l}, 4, 1")
a(f"v_lshlrev_b32 v{t2}, 5, v{t2}")
a(f"v_add3_u32 v{t0}, v{t0}, v{t2}, v{t3}")
a(f"v_bfe_u32 v{t2}, v{l}, 3, 1")
a(f"v_lshl_add_u32 v{vW1R}, v{t2}, 6, v{t0}")
a(f"v_xor_b32 v{vW1R+1}, 64, v{vW1R}")
a(f"v_bfe_u32 v{t0}, v{l}, 4, 1")
a(f"v_lshlrev_b32 v{t0}, 10, v{t0}")
a(f"v_lshrrev_b32 v{t1}, 5, v{l}")
a(f"v_lshlrev_b32 v{t1}, 8, v{t1}")
a(f"v_and_b32 v{t2}, 15, v{l}")
a(f"v_lshlrev_b32 v{t2}, 4, v{t2}")
a(f"v_add3_u32 v{vHST}, v{t0}, v{t1}, v{t2}")
a(f"s_lshl_b32 s{sT0}, s{sMT}, 2")
a(f"s_add_u32 s{sT0}, s{sT0}, s{sW}")
a(f"s_mul_i32 s{sT1}, s{sT0}, 144")
a(f"s_mul_i32 s{sT2}, s{sJ}, 9")
a(f"s_add_u32 s{sT2}, s{sT1}, s{sT2}")
a(f"s_lshl_b32 s{sHB}, s{sT2}, 11")
a(f"s_mul_i32 s{sT2}, s{sG}, 36")
a(f"s_add_u32 s{sT2}, s{sT1}, s{sT2}")
a(f"s_mul_i32 s{sT3}, s{sGRP}, 18")
a(f"s_add_u32 s{sT2}, s{sT2}, s{sT3}")
a(f"s_lshl_b32 s{sHL}, s{sT2}, 11")
a(f"s_lshl_b32 s{sT0}, s{sMT}, 2")
a(f"s_add_u32 s{sT0}, s{sT0}, s{sG}")
a(f"s_lshl_b32 s{sT0}, s{sT0}, 2")
a(f"s_add_u32 s{sT0}, s{sT0}, s{sW}")
a(f"s_lshl_b32 s{sT0}, s{sT0}, 8")
a(f"s_add_u32 s{sFLC}, s{sT0}, {WS_FLAG_H}")
a(f"s_lshl_b32 s{sT1}, s{sNB}, 2")
a(f"s_add_u32 s{sFLH}, s{sFLC}, s{sT1}")
a(f"s_mul_i32 s{sT0}, s{sG}, {1152*1152}")
a(f"s_mul_i32 s{sT1}, s{sNB}, 288")
a(f"s_add_u32 s{sW2B}, s{sT0}, s{sT1}")

def dma_t1_all(stage, dr0, fcoff):
    slot = (stage % 4) * SLOT
    a(f"s_mul_i32 s{sT2}, s{sWV}, {8*9216}")
    a(f"s_add_u32 s{sT2}, s{sT2}, s{sF0B}")
    for k in range(5):
        if k == 4:
            a(f"s_cmp_ge_u32 s{sWV}, 4")
            a(f"s_cbranch_scc1 L_skip_t1_{stage}")
        a(f"s_add_u32 m0, s{sT6}, {slot + 8192*k}")
        a(f"s_add_u32 s{sT1}, s{sT2}, {(dr0 + 64*k)*9216 + fcoff}")
        a(f"buffer_load_dwordx4 v{vW1OFF}, {srd(sW1)}, s{sT1} offen lds")
    lab(f"L_skip_t1_{stage}")

def dma_t1_4w(stage, dr0, fcoff):
    slot = (stage % 4) * SLOT
    G = [[f"s_mul_i32 s{sT2}, s{sW}, {8*9216}", f"s_add_u32 s{sT2}, s{sT2}, s{sF0B}"]]
    for k in range(9):
        G.append([f"s_add_u32 m0, s{sT6}, {slot + 4096*k}",
                  f"s_add_u32 s{sT1}, s{sT2}, {(dr0 + 32*k)*9216 + fcoff}",
                  f"buffer_load_dwordx4 v{vW1OFF}, {srd(sW1)}, s{sT1} offen lds"])
    return G

def p0_reads(ks):
    t, sp = ks // 4, ks % 4
    so = (t % 2) * SLOT
    buf = ks % 3
    R = []
    R.append(f"ds_read_b128 {vr(vX+4*ks)}, v{vXR+sp} offset:{so}")
    for tl in range(2):
        for e4 in range(2):
            d = vAF + buf*8 + tl*4 + e4*2
            R.append(f"ds_read_b64_tr_b16 v[{d}:{d+1}], v{vWR+tl} offset:{so + (16*sp + 4*e4)*256}")
    return R

def toggle_p0(t):
    if t % 2 == 0 and t > 0:
        op = "v_add_u32" if (t % 4) == 2 else "v_subrev_u32"
        for r in list(range(vXR, vXR+4)) + [vWR, vWR+1]:
            a(f"{op} v{r}, {2*SLOT}, v{r}")

a(f"s_cmp_lg_u32 s{sGRP}, 0")
a("s_cbranch_scc1 L_w0skip")
a("s_waitcnt vmcnt(8)")
lab("L_w0skip")
a("s_barrier")
stamp(1, True)
dq0 = dma_p0_list(2)
for ins in p0_reads(0): a(ins)
for ins in p0_reads(1): a(ins)
for ks in range(36):
    nxt = ks + 2
    pend = []
    if nxt % 4 == 0:
        t = nxt // 4
        a(f"s_cmp_lg_u32 s{sGRP}, 0")
        a(f"s_cbranch_scc1 L_wskip_{t}")
        a(f"s_waitcnt vmcnt({8 if t <= 7 else 9})")
        lab(f"L_wskip_{t}")
        if t == 8:
            a(f"s_cmp_lg_u32 s{sWV}, 4")
            a("s_cbranch_scc1 L_no_nonce2")
            a("s_waitcnt vmcnt(1)")
            a(f"v_readfirstlane_b32 s{sT0}, v{vT+4}")
            a(f"s_cmp_eq_u32 s{sT0}, 0")
            a(f"s_cselect_b32 s{sT0}, s{sNT}, s{sT0}")
            a(f"v_mov_b32 v{vT+5}, s{sT0}")
            a(f"v_mov_b32 v{vT+6}, {LDS_NONCE}")
            a(f"ds_write_b32 v{vT+6}, v{vT+5}")
            lab("L_no_nonce2")
        a("s_barrier")
        stamp(1 + t, True) if PROF0 else None
        pf_emit(t)
        assert not dq0
        if t <= 6:
            dq0 = dma_p0_list(t + 2)
        elif t == 7:
            dq0 = dma_t1_4w(9, 0, 256)
        elif t == 8:
            dq0 = dma_t1_4w(10, 288, 256)
        if t <= 8:
            toggle_p0(t)
    if nxt < 36:
        pend = p0_reads(nxt)
    nout = 5 if ks + 1 < 36 else 0
    a(f"s_waitcnt lgkmcnt({nout})")
    buf = ks % 3
    for tl in range(2):
        acc = vACC1 + 16*tl
        af = vAF + buf*8 + tl*4
        a(f"v_mfma_f32_32x32x16_bf16 {vr(acc,16)}, {vr(af)}, {vr(vX+4*ks)}, {vr(acc,16) if ks else 0}")
        for ins in (pend[:3] if tl == 0 else pend[3:]): a(ins)
        nb_ = next(k for k in range(ks+1, 40) if (k + 2) % 4 == 0)
        slots = (nb_ - ks)*2 - tl
        if dq0:
            ng = -(-len(dq0) // slots)
            emit_groups_A([dq0.pop(0) for _ in range(ng)])

stamp(2)
a(f"v_mov_b32 v{vT}, {LDS_NONCE}")
a(f"ds_read_b32 v{vT+1}, v{vT}")
a(f"s_lshl_b32 s{sT6}, s{sW}, 10")
a("s_waitcnt lgkmcnt(0)")
a(f"v_readfirstlane_b32 s{sNONCE}, v{vT+1}")
a(f"s_cmp_lg_u32 s{sGRP}, 0")
a("s_cbranch_scc1 L_pathB")

def epi_tile(A, P, tt):
    for b in range(4):
        rr = [A + 4*b + i for i in range(4)]
        tt_ = [vT + i for i in range(4)]
        for i in range(4): a(f"v_mul_f32 v{tt_[i]}, s{sLOG}, v{rr[i]}")
        for i in range(4): a(f"v_exp_f32 v{tt_[i]}, v{tt_[i]}")
        for i in range(4): a(f"v_add_f32 v{tt_[i]}, 1.0, v{tt_[i]}")
        for i in range(4): a(f"v_rcp_f32 v{tt_[i]}, v{tt_[i]}")
        for i in range(4): a(f"v_mul_f32 v{tt_[i]}, v{rr[i]}, v{tt_[i]}")
        a(f"v_cvt_pk_bf16_f32 v{P+2*b}, v{tt_[0]}, v{tt_[1]}")
        a(f"v_cvt_pk_bf16_f32 v{P+2*b+1}, v{tt_[2]}, v{tt_[3]}")
        if b % 2 == 1:
            p = b // 2
            if p == 0:
                a(f"s_add_u32 s{sT0}, s{sHB}, {tt*2048}")
            a(f"buffer_store_dwordx4 {vr(P+4*p)}, v{vHST}, {srd(sWS)}, s{sT0} offen offset:{512*p} sc1")

_pk = [0]
def epi(acc, ntiles, tt0):
    for ti in range(ntiles):
        epi_tile(acc + 16*ti, vAF + 8*(_pk[0] % 3), tt0 + ti)
        _pk[0] += 1

def flags(tt0, n, tmp=vT+4):
    a(f"v_lshlrev_b32 v{tmp}, 4, v{vLANE}")
    a(f"v_mov_b32 v{tmp+1}, s{sNONCE}")
    a(f"v_cmp_gt_u32 vcc, {n}, v{vLANE}")
    a(f"s_add_u32 s{sT0}, s{sFLH}, {tt0*16}")
    a(f"s_and_saveexec_b64 s[{sEX}:{sEX+1}], vcc")
    a(f"buffer_store_dword v{tmp+1}, v{tmp}, {srd(sWS)}, s{sT0} offen sc1")
    a(f"s_mov_b64 exec, s[{sEX}:{sEX+1}]")

def blk_reads(ks, ntl, rowbytes, steps_per_stage):
    sp = ks % steps_per_stage
    buf = ks % 3
    R = []
    for tl in range(ntl):
        for e4 in range(2):
            d = vAF + buf*8 + tl*4 + e4*2
            R.append(f"ds_read_b64_tr_b16 v[{d}:{d+1}], v{vCUR+tl} offset:{(16*sp + 4*e4)*rowbytes}")
    return R

def dma_t3_4w(stage):
    slot = (stage % 4) * SLOT
    G = [[f"s_mul_i32 s{sT2}, s{sW}, {16*9216}", f"s_add_u32 s{sT2}, s{sT2}, s{sFS}"]]
    for k in range(9):
        G.append([f"s_add_u32 m0, s{sT6}, {slot + 4096*k}",
                  f"s_add_u32 s{sT1}, s{sT2}, {64*k*9216}",
                  f"buffer_load_dwordx4 v{vXOFF}, {srd(sW1)}, s{sT1} offen lds"])
    return G

TORDER = [2, 3, 0, 1, 4, 5, 6, 7, 8]
def fo_rows(tile, apar):
    if tile < 8: return apar*32 + 32*tile
    return 0 if apar else 256

def dma_p2_4w(stage, offs):
    slot = (stage % 4) * SLOT
    tile = TORDER[stage - 14]
    G = []
    for bi in range(2):
        for aa in range(4):
            G.append([f"s_add_u32 m0, s{sT6}, {slot + aa*9216 + bi*4096}",
                      f"s_add_u32 s{sT1}, s{sW2B}, {(288*aa + fo_rows(tile, aa & 1))*1152}",
                      f"buffer_load_dwordx4 v{offs+bi}, {srd(sW2)}, s{sT1} offen lds"])
    r0, r1 = fo_rows(tile, 0), fo_rows(tile, 1)
    G.append([f"s_mul_i32 s{sT1}, s{sW}, 9216",
              f"s_add_u32 m0, s{sT1}, {slot + 8192}",
              f"s_and_b32 s{sT2}, s{sW}, 1",
              f"s_mul_i32 s{sT2}, s{sT2}, {(r1 - r0)*1152}",
              f"s_mul_i32 s{sT1}, s{sW}, {288*1152}",
              f"s_add_u32 s{sT1}, s{sT1}, s{sT2}",
              f"s_add_u32 s{sT1}, s{sT1}, s{sW2B}",
              f"s_add_u32 s{sT1}, s{sT1}, {r0*1152}",
              f"buffer_load_dwordx4 v{offs+2}, {srd(sW2)}, s{sT1} offen lds"])
    return G

def w2off_l(dst, badd, tmp):
    R = []
    if badd is None:
        R.append(f"v_add_u32 v{tmp}, 512, v{vLANE}")
    else:
        R.append(f"s_lshl_b32 s{sS0}, s{sW}, 6")
        R.append(f"s_add_u32 s{sS0}, s{sS0}, {64*badd}")
        R.append(f"v_add_u32 v{tmp}, s{sS0}, v{vLANE}")
    R += [f"v_mul_u32_u24 v{dst}, 3641, v{tmp}",
          f"v_lshrrev_b32 v{dst}, 16, v{dst}",
          f"v_mul_u32_u24 v{tmp+1}, 18, v{dst}",
          f"v_sub_u32 v{tmp}, v{tmp}, v{tmp+1}",
          f"v_mul_u32_u24 v{dst}, 1152, v{dst}",
          f"v_lshl_add_u32 v{dst}, v{tmp}, 4, v{dst}"]
    return R

def w2offs3_l():
    return w2off_l(vXR, 0, vT) + w2off_l(vXR+1, 4, vT) + w2off_l(vXR+2, None, vT)

def p2_misc_l():
    return [
     f"v_lshlrev_b32 v{vL16}, 4, v{vLANE}",
     f"v_and_b32 v{vFLA}, 3, v{vLANE}",
     f"v_lshlrev_b32 v{vFLA}, 2, v{vFLA}",
     f"v_lshrrev_b32 v{vP2T}, 5, v{vLANE}",
     f"v_lshlrev_b32 v{vP2T}, 4, v{vP2T}",
     f"v_bfe_u32 v{vP2T+1}, v{vLANE}, 4, 1",
     f"v_lshl_add_u32 v{vP2T}, v{vP2T+1}, 2, v{vP2T}",
     f"v_bfe_u32 v{vP2T+1}, v{vLANE}, 2, 2",
     f"v_add_u32 v{vP2T}, v{vP2T}, v{vP2T+1}",
     f"v_mul_u32_u24 v{vP2T}, 288, v{vP2T}",
     f"v_and_b32 v{vP2T+1}, 3, v{vLANE}",
     f"v_lshl_add_u32 v{vP2T}, v{vP2T+1}, 3, v{vP2T}",
     f"s_mul_i32 s{sS0}, s{sGRP}, {2*9216}",
     f"v_add_u32 v{vW2R}, s{sS0}, v{vP2T}"]

def poll0_l():
    return [f"s_add_u32 s{sS0}, s{sFLC}, {TORDER[0]*16}",
            f"buffer_load_dword v{vPOLL}, v{vFLA}, {srd(sWS)}, s{sS0} offen sc1"]

class Side:
    def __init__(self): self.q = []
    def add(self, min_step, instrs):
        for i in instrs: self.q.append((min_step, i))
    def emit(self, step, n):
        k = 0
        while self.q and k < n and self.q[0][0] <= step:
            a(self.q.pop(0)[1]); k += 1
    def flush(self):
        while self.q: a(self.q.pop(0)[1])

def block2(stA, stB, dma0, dma1, side, at={}):
    a(f"v_add_u32 v{vCUR}, {(stA%4)*SLOT}, v{vW1R}")
    a(f"v_add_u32 v{vCUR+1}, {(stA%4)*SLOT}, v{vW1R+1}")
    for ins in blk_reads(0, 2, 128, 18): a(ins)
    for ins in blk_reads(1, 2, 128, 18): a(ins)
    dq = list(dma0)
    for ks in range(36):
        nxt = ks + 2
        if nxt == 18:
            a("s_waitcnt vmcnt(9)")
            a("s_barrier")
            a(f"v_add_u32 v{vCUR}, {(stB%4)*SLOT}, v{vW1R}")
            a(f"v_add_u32 v{vCUR+1}, {(stB%4)*SLOT}, v{vW1R+1}")
            dq = list(dma1)
        if nxt == 36:
            a("s_waitcnt vmcnt(9)")
            a("s_barrier")
        for ins in at.get(ks, []): a(ins)
        pend = blk_reads(nxt, 2, 128, 18) if nxt < 36 else []
        a(f"s_waitcnt lgkmcnt({4 if ks+1 < 36 else 0})")
        buf = ks % 3
        for tl in range(2):
            acc = vACC2 + 16*tl
            af = vAF + buf*8 + tl*4
            a(f"v_mfma_f32_32x32x16_bf16 {vr(acc,16)}, {vr(af)}, {vr(vX+4*ks)}, {vr(acc,16) if ks else 0}")
            for ins in (pend[:2] if tl == 0 else pend[2:]): a(ins)
            if tl == 1 and dq:
                for ins in dq.pop(0): a(ins)
            else:
                side.emit(ks, 3)
    side.flush()

_pc = [0]
def poll_issue(tile_sgpr_or_int):
    if isinstance(tile_sgpr_or_int, int):
        a(f"s_add_u32 s{sT0}, s{sFLC}, {tile_sgpr_or_int*16}")
    else:
        a(f"s_lshl_b32 s{sT0}, {tile_sgpr_or_int}, 4")
        a(f"s_add_u32 s{sT0}, s{sT0}, s{sFLC}")
    a(f"buffer_load_dword v{vPOLL}, v{vFLA}, {srd(sWS)}, s{sT0} offen sc1")

def poll_spin(tile_sgpr_or_int):
    _pc[0] += 1
    n = _pc[0]
    a(f"s_mov_b32 s{sSPIN}, 0")
    lab(f"L_spin_{n}")
    poll_issue(tile_sgpr_or_int)
    a(f"s_add_u32 s{sSPIN}, s{sSPIN}, 1")
    a(f"s_cmp_gt_u32 s{sSPIN}, {SPIN_MAX}")
    a(f"s_cbranch_scc1 L_spin_out_{n}")
    a("s_waitcnt vmcnt(0)")
    a(f"v_cmp_ne_u32 vcc, s{sNONCE}, v{vPOLL}")
    a("s_cmp_eq_u64 vcc, 0")
    a(f"s_cbranch_scc0 L_spin_{n}")
    lab(f"L_spin_out_{n}")

def h_issue(tile):
    if isinstance(tile, int):
        a(f"s_add_u32 s{sT0}, s{sHL}, {tile*2048}")
    else:
        a(f"s_lshl_b32 s{sT0}, {tile}, 11")
        a(f"s_add_u32 s{sT0}, s{sT0}, s{sHL}")
    a(f"s_add_u32 s{sT1}, s{sT0}, {9*2048}")
    a(f"buffer_load_dwordx4 {vr(vHFN)}, v{vL16}, {srd(sWS)}, s{sT0} offen sc1")
    a(f"buffer_load_dwordx4 {vr(vHFN+4)}, v{vL16}, {srd(sWS)}, s{sT0} offen offset:1024 sc1")
    a(f"buffer_load_dwordx4 {vr(vHFN+8)}, v{vL16}, {srd(sWS)}, s{sT1} offen sc1")
    a(f"buffer_load_dwordx4 {vr(vHFN+12)}, v{vL16}, {srd(sWS)}, s{sT1} offen offset:1024 sc1")

def p2_preamble():
    _pc[0] += 1
    n = _pc[0]
    a("s_waitcnt vmcnt(0)")
    a(f"v_cmp_ne_u32 vcc, s{sNONCE}, v{vPOLL}")
    a("s_cmp_eq_u64 vcc, 0")
    a(f"s_cbranch_scc1 L_pre_ok_{n}")
    poll_spin(TORDER[0])
    lab(f"L_pre_ok_{n}")
    h_issue(TORDER[0])
    poll_issue(TORDER[1])

def zero_accp_l():
    return [f"v_mov_b32 v{vACCP+r}, 0" for r in range(72)]

cm("---- path A")
sd = Side()
sd.add(0, w2offs3_l())
sd.add(0, [f"v_lshrrev_b32 v{vT}, 5, v{vLANE}",
           f"v_bfe_u32 v{vT+1}, v{vLANE}, 2, 2",
           f"v_lshl_add_u32 v{vT}, v{vT}, 3, v{vT+1}",
           f"v_lshlrev_b32 v{vT}, 6, v{vT}",
           f"v_bfe_u32 v{vT+1}, v{vLANE}, 4, 1",
           f"v_lshlrev_b32 v{vT+1}, 5, v{vT+1}",
           f"v_and_b32 v{vT+2}, 3, v{vLANE}",
           f"v_lshlrev_b32 v{vT+2}, 3, v{vT+2}",
           f"v_add3_u32 v{vWR}, v{vT}, v{vT+1}, v{vT+2}",
           f"v_add_u32 v{vWR}, {(13%4)*SLOT}, v{vWR}"])
block2(9, 10, dma_t1_4w(11, 0, 384), dma_t1_4w(12, 288, 384), sd)
stamp(3)
epi(vACC1, 2, 0)
a("s_waitcnt vmcnt(4)")
stamp(4)
a("s_barrier")
epi(vACC2, 2, 4)
a("s_waitcnt vmcnt(4)")
flags(0, 2)
stamp(5)
a("s_barrier")
stamp(6)
def b3_reads(ks):
    d = vAF + (ks % 6)*4
    return [f"ds_read_b64_tr_b16 v[{d+2*e4}:{d+2*e4+1}], v{vWR} offset:{(16*ks + 4*e4)*64}" for e4 in range(2)]
for k in range(4):
    for ins in b3_reads(k): a(ins)
dq = dma_p2_4w(15, vXR)
sd = Side()
sd.add(0, p2_misc_l())
sd.add(18, zero_accp_l())
for ks in range(36):
    nxt = ks + 4
    if ks == 22:
        a("s_waitcnt vmcnt(9)")
        flags(4, 2)
        for ins in poll0_l(): a(ins)
    if ks == 31:
        a("s_barrier")
    pend = b3_reads(nxt) if nxt < 36 else []
    nout = 2*min(3, 35 - ks)
    a(f"s_waitcnt lgkmcnt({nout})")
    af = vAF + (ks % 6)*4
    a(f"v_mfma_f32_32x32x16_bf16 {vr(vACC1,16)}, {vr(af)}, {vr(vX+4*ks)}, {vr(vACC1,16) if ks else 0}")
    for ins in pend: a(ins)
    if ks % 2 == 1 and dq:
        for ins in dq.pop(0): a(ins)
    else:
        sd.emit(ks, 4)
sd.flush()
stamp(7)
a(f"s_mov_b32 s{sPEND}, 8")
a(f"s_mov_b32 s{sPEND2}, 1")
p2_preamble()
epi(vACC1, 1, 8)
a("s_waitcnt vmcnt(2)")
a("s_branch L_p2")

lab("L_pathB")
cm("---- path B")
a("s_nop 7")
epi(vACC1, 2, 2)
stamp(3)
a("s_barrier")
a(f"v_lshrrev_b32 v{vXOFF}, 2, v{vLANE}")
a(f"v_mul_u32_u24 v{vXOFF}, 9216, v{vXOFF}")
a(f"v_and_b32 v{vT+7}, 3, v{vLANE}")
a(f"v_lshl_add_u32 v{vXOFF}, v{vT+7}, 4, v{vXOFF}")
for ins in w2offs3_l(): a(ins)
for ins in p2_misc_l(): a(ins)
a("s_waitcnt vmcnt(0)")
flags(2, 2)
pf_emit("b10")
stamp(4)
a("s_barrier")
stamp(5)
sd = Side()
sd.add(18, zero_accp_l())
block2(11, 12, dma_t3_4w(13), dma_p2_4w(14, vXR), sd, at={27: poll0_l()})
stamp(6)
a(f"s_mov_b32 s{sPEND}, 6")
a(f"s_mov_b32 s{sPEND2}, 2")
p2_preamble()
epi(vACC2, 2, 6)
stamp(7)
a("s_barrier")
a("s_waitcnt vmcnt(4)")

lab("L_p2")
stamp(8)
a(f"s_cmp_eq_u32 s{sGRP}, 0")
a("s_cbranch_scc1 L_p2_offok")
a(f"v_mov_b32 v{vXR}, v{vXR+1}")
lab("L_p2_offok")
a(f"s_lshl_b32 s{sT6}, s{sWV}, 10")

def dma_p2_loop(tile_sgpr, slot_sgpr, uid):
    a(f"s_mul_i32 s{sT2}, s{tile_sgpr}, {32*1152}")
    a(f"s_add_u32 s{sT3}, s{sT2}, {32*1152}")
    a(f"s_cmp_eq_u32 s{tile_sgpr}, 8")
    a(f"s_cselect_b32 s{sT3}, 0, s{sT3}")
    a(f"s_add_u32 s{sT2}, s{sT2}, s{sW2B}")
    a(f"s_add_u32 s{sT3}, s{sT3}, s{sW2B}")
    a(f"s_add_u32 s{sT4}, s{slot_sgpr}, s{sT6}")
    for aa in range(4):
        a(f"s_add_u32 m0, s{sT4}, {aa*9216}")
        a(f"s_add_u32 s{sT1}, s{sT3 if aa & 1 else sT2}, {288*aa*1152}")
        a(f"buffer_load_dwordx4 v{vXR}, {srd(sW2)}, s{sT1} offen lds")
    a(f"s_cmp_ge_u32 s{sWV}, 4")
    a(f"s_cbranch_scc1 L_skip_p2d_{uid}")
    a(f"s_mul_i32 s{sT4}, s{sWV}, 9216")
    a(f"s_add_u32 s{sT4}, s{sT4}, s{slot_sgpr}")
    a(f"s_add_u32 m0, s{sT4}, 8192")
    a(f"s_and_b32 s{sT1}, s{sWV}, 1")
    a(f"s_cselect_b32 s{sT1}, s{sT3}, s{sT2}")
    a(f"s_mul_i32 s{sT4}, s{sWV}, {288*1152}")
    a(f"s_add_u32 s{sT1}, s{sT1}, s{sT4}")
    a(f"buffer_load_dwordx4 v{vXR+2}, {srd(sW2)}, s{sT1} offen lds")
    lab(f"L_skip_p2d_{uid}")

def tile_of(dst, s_sgpr, add):
    a(f"s_add_u32 s{dst}, s{s_sgpr}, {add}")
    a(f"s_min_u32 s{dst}, s{dst}, 8")
    a(f"s_xor_b32 s{sT7}, s{dst}, 2")
    a(f"s_cmp_lt_u32 s{dst}, 4")
    a(f"s_cselect_b32 s{dst}, s{sT7}, s{dst}")

def p2_reads(idx, addr):
    st, jn = idx // 9, idx % 9
    d = vAF2 + (idx % 6)*4
    return [f"ds_read_b64_tr_b16 v[{d+2*e4}:{d+2*e4+1}], v{addr} offset:{st*9216 + e4*8*288 + jn*32}" for e4 in range(2)]

a(f"s_mov_b32 s{sST}, 0")
a(f"s_mov_b32 s{sT5}, {TORDER[2]}")
a(f"s_mov_b32 s{sSLOTD}, {(16%4)*SLOT}")
dma_p2_loop(sT5, sSLOTD, "e")
a(f"s_mov_b32 s{sSLOTD}, {(17%4)*SLOT}")
a(f"s_mov_b32 s{sSLOTN}, {(15%4)*SLOT}")
a(f"v_add_u32 v{vW2C}, {(14%4)*SLOT}, v{vW2R}")
for i in range(4):
    for ins in p2_reads(i, vW2C): a(ins)
a("s_branch L_p2_top_nowait")

lab("L_p2_loop")
a(f"s_cmp_ge_u32 s{sST}, 7")
a("s_cbranch_scc1 L_p2_w0")
a("s_waitcnt vmcnt(4)")
a("s_branch L_p2_wdone")
lab("L_p2_w0")
a("s_waitcnt vmcnt(0)")
lab("L_p2_wdone")
a(f"s_cmp_lg_u32 s{sST}, 1")
a("s_cbranch_scc1 L_p2_top_nowait")
a(f"v_lshlrev_b32 v{vP2T}, 4, v{vLANE}")
a(f"v_mov_b32 v{vP2T+1}, s{sNONCE}")
a(f"v_cmp_gt_u32 vcc, s{sPEND2}, v{vLANE}")
a(f"s_lshl_b32 s{sT0}, s{sPEND}, 4")
a(f"s_add_u32 s{sT0}, s{sT0}, s{sFLH}")
a(f"s_and_saveexec_b64 s[{sEX}:{sEX+1}], vcc")
a(f"buffer_store_dword v{vP2T+1}, v{vP2T}, {srd(sWS)}, s{sT0} offen sc1")
a(f"s_mov_b64 exec, s[{sEX}:{sEX+1}]")
lab("L_p2_top_nowait")
for r in range(16):
    a(f"v_mov_b32 v{vHFC+r}, v{vHFN+r}")
a(f"s_cmp_eq_u32 s{sST}, 8")
a("s_cbranch_scc1 L_p2_nopf")
tile_of(sT5, sST, 1)
a(f"v_cmp_ne_u32 vcc, s{sNONCE}, v{vPOLL}")
a("s_cmp_eq_u64 vcc, 0")
a("s_cbranch_scc1 L_p2_ready")
poll_spin(f"s{sT5}")
lab("L_p2_ready")
h_issue(f"s{sT5}")
tile_of(sT5, sST, 2)
poll_issue(f"s{sT5}")
lab("L_p2_nopf")
for idx in range(18):
    st, jn = idx // 9, idx % 9
    if idx == 14:
        a("s_barrier")
        a(f"v_add_u32 v{vW2N}, s{sSLOTN}, v{vW2R}")
        a(f"s_cmp_ge_u32 s{sST}, 6")
        a("s_cbranch_scc1 L_p2_nodma")
        tile_of(sT5, sST, 3)
        dma_p2_loop(sT5, sSLOTD, "l")
        lab("L_p2_nodma")
    a("s_waitcnt lgkmcnt(6)")
    af = vAF2 + (idx % 6)*4
    for mh in range(2):
        acc = vACCP + (jn*2 + mh)*4
        hf = vHFC + st*8 + mh*4
        a(f"v_mfma_f32_16x16x32_bf16 {vr(acc)}, {vr(af)}, {vr(hf)}, {vr(acc)}")
        nx = idx + 4
        rd = p2_reads(nx, vW2C) if nx < 18 else p2_reads(nx - 18, vW2N)
        a(rd[mh])
a(f"v_mov_b32 v{vW2C}, v{vW2N}")
for sr in (sSLOTN, sSLOTD):
    a(f"s_add_u32 s{sr}, s{sr}, {SLOT}")
    a(f"s_cmp_eq_u32 s{sr}, {4*SLOT}")
    a(f"s_cselect_b32 s{sr}, 0, s{sr}")
a(f"s_add_u32 s{sST}, s{sST}, 1")
a(f"s_cmp_lt_u32 s{sST}, 9")
a("s_cbranch_scc1 L_p2_loop")
stamp(9)

a("s_waitcnt lgkmcnt(0)")
a(f"s_lshl_b32 s{sT0}, s{sW}, 13")
a(f"s_mul_i32 s{sT1}, s{sW}, 10240")
a(f"s_add_u32 s{sT1}, s{sT1}, 32768")
a(f"v_add_u32 v{vP2T}, s{sT0}, v{vL16}")
a(f"v_add_u32 v{vP2T+1}, s{sT1}, v{vL16}")
a(f"s_lshl_b32 s{sT2}, s{sMT}, 2")
a(f"s_add_u32 s{sT2}, s{sT2}, s{sNB}")
a(f"s_lshl_b32 s{sT2}, s{sT2}, 2")
a(f"s_add_u32 s{sT2}, s{sT2}, s{sW}")
a(f"s_lshl_b32 s{sT3}, s{sT2}, 1")
a(f"s_add_u32 s{sT3}, s{sT3}, s{sGRP}")
a(f"s_lshl_b32 s{sT3}, s{sT3}, 4")
a(f"s_add_u32 s{sFLC}, s{sT3}, {WS_FLAG_RS}")
a(f"s_mul_i32 s{sT2}, s{sT2}, {4*18*1024}")
a(f"s_add_u32 s{sHL}, s{sT2}, {WS_RS}")
a(f"s_cmp_lg_u32 s{sGRP}, 0")
a("s_cbranch_scc1 L_rsB")

def rs_path(tag, send, keep, send_addr, recv_addr, tslot0):
    for i, t in enumerate(send):
        a(f"ds_write_b128 v{send_addr}, {vr(vACCP+4*t)} offset:{i*1024}")
    a("s_waitcnt lgkmcnt(0)")
    a("s_barrier")
    for i, t in enumerate(keep):
        a(f"ds_read_b128 {vr(72+4*i)}, v{recv_addr} offset:{i*1024}")
    for i, t in enumerate(keep):
        a(f"s_waitcnt lgkmcnt({len(keep)-1-i})")
        for r in range(4):
            a(f"v_add_f32 v{vACCP+4*t+r}, v{vACCP+4*t+r}, v{72+4*i+r}")
    a(f"s_cmp_eq_u32 s{sW}, s{sG}")
    a(f"s_cbranch_scc1 L_rs_own_{tag}")
    a(f"s_mul_i32 s{sT0}, s{sG}, {18*1024}")
    a(f"s_add_u32 s{sT0}, s{sT0}, s{sHL}")
    for i, t in enumerate(keep):
        o = (tslot0 + i)*1024
        if i % 4 == 0:
            a(f"s_add_u32 s{sT1}, s{sT0}, {o}")
        a(f"buffer_store_dwordx4 {vr(vACCP+4*t)}, v{vL16}, {srd(sWS)}, s{sT1} offen offset:{(i%4)*1024} sc1")
    a(f"v_mov_b32 v{vP2T+2}, s{sNONCE}")
    a(f"s_lshl_b32 s{sT0}, s{sG}, 2")
    a(f"v_mov_b32 v{vP2T+3}, s{sT0}")
    a(f"v_cmp_eq_u32 vcc, 0, v{vLANE}")
    a("s_waitcnt vmcnt(0)")
    a(f"s_and_saveexec_b64 s[{sEX}:{sEX+1}], vcc")
    a(f"buffer_store_dword v{vP2T+2}, v{vP2T+3}, {srd(sWS)}, s{sFLC} offen sc1")
    a("s_branch L_end")
    lab(f"L_rs_own_{tag}")
    a(f"s_mov_b32 s{sSPIN}, 0")
    lab(f"L_rs_spin_{tag}")
    a(f"buffer_load_dword v{vPOLL}, v{vFLA}, {srd(sWS)}, s{sFLC} offen sc1")
    a(f"s_add_u32 s{sSPIN}, s{sSPIN}, 1")
    a(f"s_cmp_gt_u32 s{sSPIN}, {SPIN_MAX}")
    a(f"s_cbranch_scc1 L_rs_spin_out_{tag}")
    a(f"s_lshl_b32 s{sT0}, s{sG}, 2")
    a("s_waitcnt vmcnt(0)")
    a(f"v_cmp_ne_u32 vcc, s{sNONCE}, v{vPOLL}")
    a(f"v_cmp_ne_u32 s[{sT2}:{sT2+1}], s{sT0}, v{vFLA}")
    a(f"s_and_b64 vcc, vcc, s[{sT2}:{sT2+1}]")
    a("s_cmp_eq_u64 vcc, 0")
    a(f"s_cbranch_scc0 L_rs_spin_{tag}")
    lab(f"L_rs_spin_out_{tag}")
    n = len(keep)
    base = 144
    regs = list(range(176, 232, 4)) + list(range(72, 160, 4))
    k = 0
    for p in range(1, 4):
        a(f"s_add_u32 s{sT0}, s{sG}, {p}")
        a(f"s_and_b32 s{sT0}, s{sT0}, 3")
        a(f"s_mul_i32 s{sT0}, s{sT0}, {18*1024}")
        a(f"s_add_u32 s{sT0}, s{sT0}, s{sHL}")
        for i, t in enumerate(keep):
            o = (tslot0 + i)*1024
            if i % 4 == 0:
                a(f"s_add_u32 s{sT1}, s{sT0}, {o}")
            a(f"buffer_load_dwordx4 {vr(regs[k])}, v{vL16}, {srd(sWS)}, s{sT1} offen offset:{(i%4)*1024} sc1")
            k += 1
    a(f"v_and_b32 v{vP2T+2}, 15, v{vLANE}")
    a(f"v_mul_u32_u24 v{vP2T+2}, 1152, v{vP2T+2}")
    a(f"v_lshrrev_b32 v{vP2T+3}, 4, v{vLANE}")
    a(f"v_lshl_add_u32 v{vP2T+2}, v{vP2T+3}, 3, v{vP2T+2}")
    a(f"s_mul_i32 s{sT2}, s{sW}, {32*1152}")
    a(f"s_add_u32 s{sT2}, s{sT2}, s{sXB}")
    a(f"s_mul_i32 s{sT3}, s{sNB}, 288")
    a(f"s_add_u32 s{sT2}, s{sT2}, s{sT3}")
    a(f"s_add_u32 s{sT3}, s{sT2}, {16*1152}")
    k = 0
    tot = 3*n
    for p in range(3):
        for i, t in enumerate(keep):
            a(f"s_waitcnt vmcnt({tot-1-k})")
            for r in range(4):
                a(f"v_add_f32 v{vACCP+4*t+r}, v{vACCP+4*t+r}, v{regs[k]+r}")
            k += 1
    for i, t in enumerate(keep):
        jn, mh = t // 2, t % 2
        d = vP2T + 4 + 2*(i % 2)
        a(f"v_cvt_pk_bf16_f32 v{d}, v{vACCP+4*t}, v{vACCP+4*t+1}")
        a(f"v_cvt_pk_bf16_f32 v{d+1}, v{vACCP+4*t+2}, v{vACCP+4*t+3}")
        a(f"buffer_store_dwordx2 v[{d}:{d+1}], v{vP2T+2}, {srd(sOUT)}, s{sT3 if mh else sT2} offen offset:{jn*32}")
    a("s_branch L_end")

rs_path("A", list(range(10, 18)), list(range(0, 10)), vP2T, vP2T+1, 0)
lab("L_rsB")
rs_path("B", list(range(0, 10)), list(range(10, 18)), vP2T+1, vP2T, 10)

lab("L_end")
if PROF:
    stamp(15)
    a("s_mov_b64 exec, -1")
    a("s_cmp_ge_u32 s2, 256")
    a("s_cbranch_scc1 L_end2")
    a("s_waitcnt lgkmcnt(0)")
    for i in range(1, 16):
        a(f"s_sub_u32 s{64+2*(i-1)}, s{64+2*(i-1)}, s100")
    a(f"v_mov_b32 v0, 0")
    for i in range(1, 16):
        a(f"v_writelane_b32 v0, s{64+2*(i-1)}, {i}")
    a(f"s_lshl_b32 s{sT0}, s2, 3")
    a(f"s_add_u32 s{sT0}, s{sT0}, s{sWV}")
    a(f"s_lshl_b32 s{sT0}, s{sT0}, 6")
    a(f"s_add_u32 s{sT0}, s{sT0}, {WS_PROF}")
    a(f"v_lshlrev_b32 v1, 2, v{vLANE}")
    a(f"v_cmp_gt_u32 vcc, 16, v{vLANE}")
    a(f"s_and_saveexec_b64 s[{sEX}:{sEX+1}], vcc")
    a(f"buffer_store_dword v0, v1, {srd(sWS)}, s{sT0} offen")
    if PROFDBG:
        a(f"s_cmp_lg_u32 s{sT0}, {WS_PROF}")
        a("s_cbranch_scc1 L_end2")
        a(f"buffer_store_dword v0, v1, {srd(sDBG)}, 0 offen")
    lab("L_end2")
a("s_endpgm")

hdr = [
 f"; @launch grid=(256,1,1) block=(512,1,1) lds={LDS_SIZE}",
 '.amdgcn_target "amdgcn-amd-amdhsa--gfx950"',
 ".text",
 f".globl {KNAME}",
 ".p2align 8",
 f".type {KNAME},@function",
]
ftr = [
 '.section .rodata,"a"',
 ".p2align 6",
 f".amdhsa_kernel {KNAME}",
 "  .amdhsa_next_free_vgpr 256",
 "  .amdhsa_next_free_sgpr 102",
 "  .amdhsa_accum_offset 256",
 "  .amdhsa_group_segment_fixed_size 0",
 "  .amdhsa_kernarg_size 48",
 "  .amdhsa_user_sgpr_count 2",
 "  .amdhsa_user_sgpr_kernarg_segment_ptr 1",
 "  .amdhsa_system_sgpr_workgroup_id_x 1",
 ".end_amdhsa_kernel",
]
print("\n".join(hdr + L + ftr))
```

```python
import sys

PROF = "--prof" in sys.argv or "--prof0" in sys.argv
PROF0 = "--prof0" in sys.argv
PROFDBG = "--dbgout" in sys.argv
WS_PROF = 96 << 20

KNAME = "standalone__dense_activation_silu__prompt_kernel"
L = []
def a(s): L.append("    " + s)
def lab(s): L.append(s + ":")
def cm(s): L.append("    ; " + s)
def stamp(i, p0=False):
    if PROF0 and not p0 and i not in (0, 15): return
    if PROF:
        r = 100 if i == 0 else 64 + 2*(i-1)
        L.append(f"    s_memtime s[{r}:{r+1}]")

SLOT = 36864
LDS_NONCE = 4 * SLOT
LDS_SIZE = 4 * SLOT + 64
WS_RS = 32 << 20
WS_FLAG_H = 64 << 20
WS_FLAG_RS = (64 << 20) + (1 << 20)
LOG2E_NEG = 0xbfb8aa3b

sX, sW1, sW2, sOUT, sWS, sDBG = 4, 8, 12, 16, 20, 24
sMT, sG, sNB, sJ, sWV, sW, sGRP, sNONCE = 28, 29, 30, 31, 32, 33, 34, 35
sF0B = 36
sXB = 37
sT0, sT1, sT2, sT3, sT4, sT5 = 38, 39, 40, 41, 42, 43
sSLOTN = 44
sSLOTD = 45
sHB = 46
sFLH = 47
sFS = 50
sLOG = 51
sST = 52
sHL = 53
sW2B = 54
sPEND = 55
sPEND2 = 56
sNT = 57
sEX = 58
sFLC = 60
sT6, sT7 = 62, 63
sSPIN = 61
SPIN_MAX = 200000

def srd(r): return f"s[{r}:{r+3}]"

vX = 0
vACC1 = 144
vACC2 = 176
vAF = 208
vXR = 232
vWR = 236
vW1R = 238
vXOFF = 240
vW0OFF = 241
vW1OFF = 242
vLANE = 243
vHST = 244
vCUR = 245
vT = 248
vACCP = 0
vAF2 = 72
vHFC = 96
vHFN = 112
vW2R = 160
vW2C = 161
vW2N = 162
vPOLL = 163
vFLA = 164
vL16 = 165
vP2T = 168
sS0, sS1 = 48, 49
sPK1 = 94
sPK2 = 96

def vr(b, n=4): return f"v[{b}:{b+n-1}]"

lab(KNAME)
a("s_cmp_ge_u32 s2, 256")
a("s_cbranch_scc1 L_end")
stamp(0)
a("s_load_dwordx4 s[80:83], s[0:1], 0")
a("s_load_dwordx4 s[84:87], s[0:1], 16")
a("s_load_dwordx4 s[88:91], s[0:1], 32")
a("s_memrealtime s[92:93]")
if PROF: a("s_memrealtime s[98:99]")
a(f"v_and_b32 v{vLANE}, 63, v0")
a(f"v_lshrrev_b32 v{vT}, 6, v0")
a("s_nop 0")
a(f"v_readfirstlane_b32 s{sWV}, v{vT}")
a(f"s_and_b32 s{sT0}, s2, 7")
a(f"s_lshr_b32 s{sT1}, s2, 3")
a(f"s_lshr_b32 s{sG}, s{sT0}, 1")
a(f"s_and_b32 s{sT2}, s{sT0}, 1")
a(f"s_lshl_b32 s{sT2}, s{sT2}, 3")
a(f"s_lshr_b32 s{sT3}, s{sT1}, 2")
a(f"s_add_u32 s{sMT}, s{sT2}, s{sT3}")
a(f"s_and_b32 s{sNB}, s{sT1}, 3")
a(f"s_lshl_b32 s{sJ}, s{sG}, 2")
a(f"s_add_u32 s{sJ}, s{sJ}, s{sNB}")
a(f"s_and_b32 s{sW}, s{sWV}, 3")
a(f"s_lshr_b32 s{sGRP}, s{sWV}, 2")
a(f"s_mul_i32 s{sT0}, s{sJ}, 576")
a(f"s_and_b32 s{sT1}, s{sJ}, 1")
a(f"s_lshl_b32 s{sT2}, s{sT1}, 6")
a(f"s_add_u32 s{sF0B}, s{sT0}, s{sT2}")
a(f"s_xor_b32 s{sT1}, s{sT1}, 1")
a(f"s_lshl_b32 s{sT1}, s{sT1}, 9")
a(f"s_add_u32 s{sFS}, s{sT0}, s{sT1}")
a(f"s_mul_i32 s{sXB}, s{sMT}, {128*1152}")
a(f"s_mov_b32 s{sLOG}, 0x{LOG2E_NEG:08x}")

l = vLANE
t0, t1, t2, t3 = vT, vT+1, vT+2, vT+3
a(f"v_lshrrev_b32 v{t0}, 3, v{l}")
a(f"v_mul_u32_u24 v{vXOFF}, 1152, v{t0}")
a(f"v_and_b32 v{t1}, 7, v{l}")
a(f"v_lshrrev_b32 v{t2}, 4, v{l}")
a(f"v_xor_b32 v{t1}, v{t1}, v{t2}")
a(f"s_and_b32 s{sT0}, s{sWV}, 1")
a(f"s_lshl_b32 s{sT0}, s{sT0}, 2")
a(f"v_xor_b32 v{t1}, s{sT0}, v{t1}")
a(f"v_lshlrev_b32 v{t1}, 4, v{t1}")
a(f"v_add_u32 v{vXOFF}, v{vXOFF}, v{t1}")
a(f"v_lshrrev_b32 v{t0}, 4, v{l}")
a(f"v_mul_u32_u24 v{vW0OFF}, 9216, v{t0}")
a(f"v_bfe_u32 v{t1}, v{l}, 2, 2")
a(f"v_xor_b32 v{t1}, v{t1}, v{t0}")
a(f"v_lshlrev_b32 v{t1}, 6, v{t1}")
a(f"v_and_b32 v{t2}, 3, v{l}")
a(f"v_lshlrev_b32 v{t2}, 4, v{t2}")
a(f"v_add3_u32 v{vW0OFF}, v{vW0OFF}, v{t1}, v{t2}")
a(f"s_mul_i32 s{sT4}, s{sW}, {8*1152}")
a(f"s_add_u32 s{sT4}, s{sT4}, s{sXB}")
a(f"s_mul_i32 s{sT5}, s{sW}, {4*9216}")
a(f"s_add_u32 s{sT5}, s{sT5}, s{sF0B}")
a(f"s_lshl_b32 s{sT6}, s{sW}, 10")
a("s_waitcnt lgkmcnt(0)")
for (r, src, nbytes) in ((sX, 80, 2048*576*2), (sW1, 82, 576*4608*2), (sW2, 84, 4608*576*2), (sOUT, 86, 2048*576*2), (sDBG, 88, 256), (sWS, 90, 256 << 20)):
    a(f"s_mov_b32 s{r}, s{src}")
    a(f"s_mov_b32 s{r+1}, s{src+1}")
    a(f"s_mov_b32 s{r+2}, {nbytes}")
    a(f"s_mov_b32 s{r+3}, 0x20000")

def dma_p0_list(t):
    slot = (t % 4) * SLOT
    G = []
    for k in range(4):
        G.append([f"s_add_u32 m0, s{sT6}, {slot + 4096*k}",
                  f"s_add_u32 s{sT1}, s{sT4}, {128*t + 32*1152*k}",
                  f"buffer_load_dwordx4 v{vXOFF}, {srd(sX)}, s{sT1} offen lds"])
        G.append([f"s_add_u32 m0, s{sT6}, {slot + 16384 + 4096*k}",
                  f"s_add_u32 s{sT1}, s{sT5}, {(64*t + 16*k)*9216}",
                  f"buffer_load_dwordx4 v{vW0OFF}, {srd(sW1)}, s{sT1} offen lds"])
    return G

_gid = [0]
def emit_groups_A(G):
    _gid[0] += 1
    a(f"s_cmp_lg_u32 s{sGRP}, 0")
    a(f"s_cbranch_scc1 L_gskip_{_gid[0]}")
    emit_groups(G)
    lab(f"L_gskip_{_gid[0]}")

vPFX, vPFA, vPFB, vPFC = 176, 177, 178, 179
sPFX, sPFW1, sPFW2 = 94, 95, 96
def PFx(k): return (sX, vPFX, sPFX, k*256)
def PFa(k): return (sW1, vPFA, sPFW1, k*256*9216)
def PFb(k): return (sW1, vPFB, sPFW1, k*128*9216)
def PFc(k): return (sW2, vPFC, sPFW2, k*2048*128)
PF_SCHED = {
  "start": [PFa(0), PFx(1), PFx(2), PFa(1)],
  1: [PFx(3)], 2: [PFx(4), PFa(2)], 3: [PFb(0)], 4: [PFb(1)], 5: [PFb(2)], 6: [PFb(3)], 7: [PFb(4)], 8: [PFc(0)],
  "b10": [PFc(1), PFc(2), PFc(3), PFc(4), PFc(5)],
}
_pfn = [0]
def pf_emit(key, guard_grp=False):
    items = PF_SCHED.get(key, [])
    for (sr, vo, sb, off) in items:
        wv = 4 + (_pfn[0] % 4)
        _pfn[0] += 1
        a(f"s_cmp_lg_u32 s{sWV}, {wv}")
        a(f"s_cbranch_scc1 L_pfs_{_pfn[0]}")
        a(f"s_add_u32 s{sS0}, s{sb}, {off}")
        a(f"buffer_load_dword v247, v{vo}, {srd(sr)}, s{sS0} offen")
        lab(f"L_pfs_{_pfn[0]}")

def emit_groups(G):
    for g in G:
        for ins in g: a(ins)

a(f"s_cmp_lg_u32 s{sWV}, 4")
a("s_cbranch_scc1 L_no_nonce")
a(f"s_or_b32 s{sNT}, s92, 1")
a(f"v_mov_b32 v{vT+4}, s{sNT}")
a(f"v_mov_b32 v{vT+5}, 0")
a(f"s_lshl_b32 s{sT0}, s{sMT}, 2")
if PROFDBG: a(f"s_add_u32 s{sT0}, s{sT0}, 64")
a(f"v_mov_b32 v{vT+6}, s{sT0}")
a(f"v_cmp_eq_u32 vcc, 0, v{l}")
a(f"s_and_saveexec_b64 s[{sEX}:{sEX+1}], vcc")
a(f"buffer_atomic_cmpswap v[{vT+4}:{vT+5}], v{vT+6}, {srd(sDBG)}, 0 offen sc0")
a(f"s_mov_b64 exec, s[{sEX}:{sEX+1}]")
lab("L_no_nonce")
for r in (vPFX, vPFA, vPFB, vPFC): a(f"v_mov_b32 v{r}, 0")
a(f"s_cmp_lg_u32 s{sGRP}, 0")
a("s_cbranch_scc1 L_pf")
emit_groups(dma_p0_list(0))
emit_groups(dma_p0_list(1))
a("s_branch L_pf_done")
lab("L_pf")
a(f"s_lshr_b32 s{sT0}, s2, 3")
a(f"s_lshl_b32 s{sT0}, s{sT0}, 6")
a(f"v_add_u32 v{vT}, s{sT0}, v{l}")
a(f"v_and_b32 v{vPFX}, 1023, v{vT}")
a(f"v_mul_u32_u24 v{vPFX}, 1152, v{vPFX}")
a(f"v_lshrrev_b32 v{vT+2}, 10, v{vT}")
a(f"v_lshl_add_u32 v{vPFX}, v{vT+2}, 7, v{vPFX}")
a(f"s_lshr_b32 s{sPFX}, s{sMT}, 3")
a(f"s_mul_i32 s{sPFX}, s{sPFX}, {1024*1152}")
a(f"v_lshrrev_b32 v{vPFA}, 3, v{vT}")
a(f"v_mul_u32_u24 v{vPFA}, 9216, v{vPFA}")
a(f"v_and_b32 v{vT+3}, 3, v{vT}")
a(f"v_bfe_u32 v{vT+7}, v{vT}, 1, 1")
a(f"v_mul_u32_u24 v{vT+7}, 3, v{vT+7}")
a(f"v_add_u32 v{vT+3}, v{vT+3}, v{vT+7}")
a(f"v_bfe_u32 v{vT+7}, v{vT}, 2, 1")
a(f"v_mul_u32_u24 v{vT+7}, 9, v{vT+7}")
a(f"v_add_u32 v{vT+3}, v{vT+3}, v{vT+7}")
a(f"v_lshl_add_u32 v{vPFA}, v{vT+3}, 7, v{vPFA}")
a(f"s_mul_i32 s{sPFW1}, s{sG}, 2304")
a(f"v_lshrrev_b32 v{vPFB}, 4, v{vT}")
a(f"v_mul_u32_u24 v{vPFB}, 9216, v{vPFB}")
a(f"v_and_b32 v{vT+7}, 7, v{vT}")
a(f"v_min_u32 v{vT+7}, 4, v{vT+7}")
a(f"v_cmp_le_u32 vcc, 3, v{vT+7}")
a(f"v_add_u32 v{vT+7}, 2, v{vT+7}")
a("s_nop 1")
a(f"v_cndmask_b32 v{vT+3}, 0, 2, vcc")
a(f"v_add_u32 v{vT+7}, v{vT+7}, v{vT+3}")
a(f"v_bfe_u32 v{vT+3}, v{vT}, 3, 1")
a(f"v_mul_u32_u24 v{vT+3}, 9, v{vT+3}")
a(f"v_add_u32 v{vT+7}, v{vT+7}, v{vT+3}")
a(f"v_lshl_add_u32 v{vPFB}, v{vT+7}, 7, v{vPFB}")
a(f"v_lshlrev_b32 v{vPFC}, 7, v{vT}")
a(f"s_mul_i32 s{sPFW2}, s{sG}, {1152*1152}")
pf_emit("start")
lab("L_pf_done")


a(f"v_lshrrev_b32 v{t0}, 3, v{l}")
a(f"v_mul_u32_u24 v{vW1OFF}, 9216, v{t0}")
a(f"v_bfe_u32 v{t1}, v{l}, 2, 1")
a(f"v_bfe_u32 v{t2}, v{l}, 4, 1")
a(f"v_xor_b32 v{t1}, v{t1}, v{t2}")
a(f"v_lshlrev_b32 v{t1}, 6, v{t1}")
a(f"v_and_b32 v{t2}, 3, v{l}")
a(f"v_lshlrev_b32 v{t2}, 4, v{t2}")
a(f"v_add3_u32 v{vW1OFF}, v{vW1OFF}, v{t1}, v{t2}")

a(f"v_and_b32 v{t0}, 31, v{l}")
a(f"s_lshl_b32 s{sT0}, s{sW}, 12")
a(f"v_lshlrev_b32 v{t1}, 7, v{t0}")
a(f"v_add_u32 v{t1}, s{sT0}, v{t1}")
a(f"v_bfe_u32 v{t2}, v{l}, 1, 3")
a(f"v_lshrrev_b32 v{t3}, 5, v{l}")
a(f"v_xor_b32 v{t2}, v{t2}, v{t3}")
a(f"v_lshlrev_b32 v{t2}, 4, v{t2}")
a(f"v_add_u32 v{vXR}, v{t1}, v{t2}")
a(f"v_xor_b32 v{vXR+1}, 32, v{vXR}")
a(f"v_xor_b32 v{vXR+2}, 64, v{vXR}")
a(f"v_xor_b32 v{vXR+3}, 0x60, v{vXR}")
a(f"v_lshrrev_b32 v{t0}, 5, v{l}")
a(f"v_bfe_u32 v{t1}, v{l}, 2, 2")
a(f"v_lshl_add_u32 v{t0}, v{t0}, 3, v{t1}")
a(f"v_lshlrev_b32 v{t0}, 8, v{t0}")
a(f"v_bfe_u32 v{t2}, v{l}, 4, 1")
a(f"v_lshlrev_b32 v{t2}, 5, v{t2}")
a(f"v_and_b32 v{t3}, 3, v{l}")
a(f"v_lshlrev_b32 v{t3}, 3, v{t3}")
a(f"v_add3_u32 v{t0}, v{t0}, v{t2}, v{t3}")
a(f"v_add_u32 v{t0}, 16384, v{t0}")
a(f"s_lshl_b32 s{sT0}, s{sGRP}, 1")
a(f"v_xor_b32 v{t2}, s{sT0}, v{t1}")
a(f"v_lshl_add_u32 v{vWR}, v{t2}, 6, v{t0}")
a(f"v_xor_b32 v{vWR+1}, 64, v{vWR}")
a(f"v_lshrrev_b32 v{t0}, 5, v{l}")
a(f"v_lshl_add_u32 v{t0}, v{t0}, 3, v{t1}")
a(f"v_lshlrev_b32 v{t0}, 7, v{t0}")
a(f"v_bfe_u32 v{t2}, v{l}, 4, 1")
a(f"v_lshlrev_b32 v{t2}, 5, v{t2}")
a(f"v_add3_u32 v{t0}, v{t0}, v{t2}, v{t3}")
a(f"v_bfe_u32 v{t2}, v{l}, 3, 1")
a(f"v_lshl_add_u32 v{vW1R}, v{t2}, 6, v{t0}")
a(f"v_xor_b32 v{vW1R+1}, 64, v{vW1R}")
a(f"v_bfe_u32 v{t0}, v{l}, 4, 1")
a(f"v_lshlrev_b32 v{t0}, 10, v{t0}")
a(f"v_lshrrev_b32 v{t1}, 5, v{l}")
a(f"v_lshlrev_b32 v{t1}, 8, v{t1}")
a(f"v_and_b32 v{t2}, 15, v{l}")
a(f"v_lshlrev_b32 v{t2}, 4, v{t2}")
a(f"v_add3_u32 v{vHST}, v{t0}, v{t1}, v{t2}")
a(f"s_lshl_b32 s{sT0}, s{sMT}, 2")
a(f"s_add_u32 s{sT0}, s{sT0}, s{sW}")
a(f"s_mul_i32 s{sT1}, s{sT0}, 144")
a(f"s_mul_i32 s{sT2}, s{sJ}, 9")
a(f"s_add_u32 s{sT2}, s{sT1}, s{sT2}")
a(f"s_lshl_b32 s{sHB}, s{sT2}, 11")
a(f"s_mul_i32 s{sT2}, s{sG}, 36")
a(f"s_add_u32 s{sT2}, s{sT1}, s{sT2}")
a(f"s_mul_i32 s{sT3}, s{sGRP}, 18")
a(f"s_add_u32 s{sT2}, s{sT2}, s{sT3}")
a(f"s_lshl_b32 s{sHL}, s{sT2}, 11")
a(f"s_lshl_b32 s{sT0}, s{sMT}, 2")
a(f"s_add_u32 s{sT0}, s{sT0}, s{sG}")
a(f"s_lshl_b32 s{sT0}, s{sT0}, 2")
a(f"s_add_u32 s{sT0}, s{sT0}, s{sW}")
a(f"s_lshl_b32 s{sT0}, s{sT0}, 8")
a(f"s_add_u32 s{sFLC}, s{sT0}, {WS_FLAG_H}")
a(f"s_lshl_b32 s{sT1}, s{sNB}, 2")
a(f"s_add_u32 s{sFLH}, s{sFLC}, s{sT1}")
a(f"s_mul_i32 s{sT0}, s{sG}, {1152*1152}")
a(f"s_mul_i32 s{sT1}, s{sNB}, 288")
a(f"s_add_u32 s{sW2B}, s{sT0}, s{sT1}")

def dma_t1_all(stage, dr0, fcoff):
    slot = (stage % 4) * SLOT
    a(f"s_mul_i32 s{sT2}, s{sWV}, {8*9216}")
    a(f"s_add_u32 s{sT2}, s{sT2}, s{sF0B}")
    for k in range(5):
        if k == 4:
            a(f"s_cmp_ge_u32 s{sWV}, 4")
            a(f"s_cbranch_scc1 L_skip_t1_{stage}")
        a(f"s_add_u32 m0, s{sT6}, {slot + 8192*k}")
        a(f"s_add_u32 s{sT1}, s{sT2}, {(dr0 + 64*k)*9216 + fcoff}")
        a(f"buffer_load_dwordx4 v{vW1OFF}, {srd(sW1)}, s{sT1} offen lds")
    lab(f"L_skip_t1_{stage}")

def dma_t1_4w(stage, dr0, fcoff):
    slot = (stage % 4) * SLOT
    G = [[f"s_mul_i32 s{sT2}, s{sW}, {8*9216}", f"s_add_u32 s{sT2}, s{sT2}, s{sF0B}"]]
    for k in range(9):
        G.append([f"s_add_u32 m0, s{sT6}, {slot + 4096*k}",
                  f"s_add_u32 s{sT1}, s{sT2}, {(dr0 + 32*k)*9216 + fcoff}",
                  f"buffer_load_dwordx4 v{vW1OFF}, {srd(sW1)}, s{sT1} offen lds"])
    return G

def p0_reads(ks):
    t, sp = ks // 4, ks % 4
    so = (t % 2) * SLOT
    buf = ks % 3
    R = []
    R.append(f"ds_read_b128 {vr(vX+4*ks)}, v{vXR+sp} offset:{so}")
    for tl in range(2):
        for e4 in range(2):
            d = vAF + buf*8 + tl*4 + e4*2
            R.append(f"ds_read_b64_tr_b16 v[{d}:{d+1}], v{vWR+tl} offset:{so + (16*sp + 4*e4)*256}")
    return R

def toggle_p0(t):
    if t % 2 == 0 and t > 0:
        op = "v_add_u32" if (t % 4) == 2 else "v_subrev_u32"
        for r in list(range(vXR, vXR+4)) + [vWR, vWR+1]:
            a(f"{op} v{r}, {2*SLOT}, v{r}")

a(f"s_cmp_lg_u32 s{sGRP}, 0")
a("s_cbranch_scc1 L_w0skip")
a("s_waitcnt vmcnt(8)")
lab("L_w0skip")
a("s_barrier")
stamp(1, True)
dq0 = dma_p0_list(2)
for ins in p0_reads(0): a(ins)
for ins in p0_reads(1): a(ins)
for ks in range(36):
    nxt = ks + 2
    pend = []
    if nxt % 4 == 0:
        t = nxt // 4
        a(f"s_cmp_lg_u32 s{sGRP}, 0")
        a(f"s_cbranch_scc1 L_wskip_{t}")
        a(f"s_waitcnt vmcnt({8 if t <= 7 else 9})")
        lab(f"L_wskip_{t}")
        if t == 8:
            a(f"s_cmp_lg_u32 s{sWV}, 4")
            a("s_cbranch_scc1 L_no_nonce2")
            a("s_waitcnt vmcnt(1)")
            a(f"v_readfirstlane_b32 s{sT0}, v{vT+4}")
            a(f"s_cmp_eq_u32 s{sT0}, 0")
            a(f"s_cselect_b32 s{sT0}, s{sNT}, s{sT0}")
            a(f"v_mov_b32 v{vT+5}, s{sT0}")
            a(f"v_mov_b32 v{vT+6}, {LDS_NONCE}")
            a(f"ds_write_b32 v{vT+6}, v{vT+5}")
            lab("L_no_nonce2")
        a("s_barrier")
        stamp(1 + t, True) if PROF0 else None
        pf_emit(t)
        assert not dq0
        if t <= 6:
            dq0 = dma_p0_list(t + 2)
        elif t == 7:
            dq0 = dma_t1_4w(9, 0, 256)
        elif t == 8:
            dq0 = dma_t1_4w(10, 288, 256)
        if t <= 8:
            toggle_p0(t)
    if nxt < 36:
        pend = p0_reads(nxt)
    nout = 5 if ks + 1 < 36 else 0
    a(f"s_waitcnt lgkmcnt({nout})")
    buf = ks % 3
    for tl in range(2):
        acc = vACC1 + 16*tl
        af = vAF + buf*8 + tl*4
        a(f"v_mfma_f32_32x32x16_bf16 {vr(acc,16)}, {vr(af)}, {vr(vX+4*ks)}, {vr(acc,16) if ks else 0}")
        for ins in (pend[:3] if tl == 0 else pend[3:]): a(ins)
        nb_ = next(k for k in range(ks+1, 40) if (k + 2) % 4 == 0)
        slots = (nb_ - ks)*2 - tl
        if dq0:
            ng = -(-len(dq0) // slots)
            emit_groups_A([dq0.pop(0) for _ in range(ng)])

stamp(2)
a(f"v_mov_b32 v{vT}, {LDS_NONCE}")
a(f"ds_read_b32 v{vT+1}, v{vT}")
a(f"s_lshl_b32 s{sT6}, s{sW}, 10")
a("s_waitcnt lgkmcnt(0)")
a(f"v_readfirstlane_b32 s{sNONCE}, v{vT+1}")
a(f"s_cmp_lg_u32 s{sGRP}, 0")
a("s_cbranch_scc1 L_pathB")

def epi_tile(A, P, tt):
    for b in range(4):
        rr = [A + 4*b + i for i in range(4)]
        tt_ = [vT + i for i in range(4)]
        for i in range(4): a(f"v_mul_f32 v{tt_[i]}, s{sLOG}, v{rr[i]}")
        for i in range(4): a(f"v_exp_f32 v{tt_[i]}, v{tt_[i]}")
        for i in range(4): a(f"v_add_f32 v{tt_[i]}, 1.0, v{tt_[i]}")
        for i in range(4): a(f"v_rcp_f32 v{tt_[i]}, v{tt_[i]}")
        for i in range(4): a(f"v_mul_f32 v{tt_[i]}, v{rr[i]}, v{tt_[i]}")
        a(f"v_cvt_pk_bf16_f32 v{P+2*b}, v{tt_[0]}, v{tt_[1]}")
        a(f"v_cvt_pk_bf16_f32 v{P+2*b+1}, v{tt_[2]}, v{tt_[3]}")
        if b % 2 == 1:
            p = b // 2
            if p == 0:
                a(f"s_add_u32 s{sT0}, s{sHB}, {tt*2048}")
            a(f"buffer_store_dwordx4 {vr(P+4*p)}, v{vHST}, {srd(sWS)}, s{sT0} offen offset:{512*p} sc1")

_pk = [0]
def epi(acc, ntiles, tt0):
    for ti in range(ntiles):
        epi_tile(acc + 16*ti, vAF + 8*(_pk[0] % 3), tt0 + ti)
        _pk[0] += 1

def flags(tt0, n, tmp=vT+4):
    a(f"v_lshlrev_b32 v{tmp}, 4, v{vLANE}")
    a(f"v_mov_b32 v{tmp+1}, s{sNONCE}")
    a(f"v_cmp_gt_u32 vcc, {n}, v{vLANE}")
    a(f"s_add_u32 s{sT0}, s{sFLH}, {tt0*16}")
    a(f"s_and_saveexec_b64 s[{sEX}:{sEX+1}], vcc")
    a(f"buffer_store_dword v{tmp+1}, v{tmp}, {srd(sWS)}, s{sT0} offen sc1")
    a(f"s_mov_b64 exec, s[{sEX}:{sEX+1}]")

def blk_reads(ks, ntl, rowbytes, steps_per_stage):
    sp = ks % steps_per_stage
    buf = ks % 3
    R = []
    for tl in range(ntl):
        for e4 in range(2):
            d = vAF + buf*8 + tl*4 + e4*2
            R.append(f"ds_read_b64_tr_b16 v[{d}:{d+1}], v{vCUR+tl} offset:{(16*sp + 4*e4)*rowbytes}")
    return R

def dma_t3_4w(stage):
    slot = (stage % 4) * SLOT
    G = [[f"s_mul_i32 s{sT2}, s{sW}, {16*9216}", f"s_add_u32 s{sT2}, s{sT2}, s{sFS}"]]
    for k in range(9):
        G.append([f"s_add_u32 m0, s{sT6}, {slot + 4096*k}",
                  f"s_add_u32 s{sT1}, s{sT2}, {64*k*9216}",
                  f"buffer_load_dwordx4 v{vXOFF}, {srd(sW1)}, s{sT1} offen lds"])
    return G

TORDER = [2, 3, 0, 1, 4, 5, 6, 7, 8]
def fo_rows(tile, apar):
    if tile < 8: return apar*32 + 32*tile
    return 0 if apar else 256

def dma_p2_4w(stage, offs):
    slot = (stage % 4) * SLOT
    tile = TORDER[stage - 14]
    G = []
    for bi in range(2):
        for aa in range(4):
            G.append([f"s_add_u32 m0, s{sT6}, {slot + aa*9216 + bi*4096}",
                      f"s_add_u32 s{sT1}, s{sW2B}, {(288*aa + fo_rows(tile, aa & 1))*1152}",
                      f"buffer_load_dwordx4 v{offs+bi}, {srd(sW2)}, s{sT1} offen lds"])
    r0, r1 = fo_rows(tile, 0), fo_rows(tile, 1)
    G.append([f"s_mul_i32 s{sT1}, s{sW}, 9216",
              f"s_add_u32 m0, s{sT1}, {slot + 8192}",
              f"s_and_b32 s{sT2}, s{sW}, 1",
              f"s_mul_i32 s{sT2}, s{sT2}, {(r1 - r0)*1152}",
              f"s_mul_i32 s{sT1}, s{sW}, {288*1152}",
              f"s_add_u32 s{sT1}, s{sT1}, s{sT2}",
              f"s_add_u32 s{sT1}, s{sT1}, s{sW2B}",
              f"s_add_u32 s{sT1}, s{sT1}, {r0*1152}",
              f"buffer_load_dwordx4 v{offs+2}, {srd(sW2)}, s{sT1} offen lds"])
    return G

def w2off_l(dst, badd, tmp):
    R = []
    if badd is None:
        R.append(f"v_add_u32 v{tmp}, 512, v{vLANE}")
    else:
        R.append(f"s_lshl_b32 s{sS0}, s{sW}, 6")
        R.append(f"s_add_u32 s{sS0}, s{sS0}, {64*badd}")
        R.append(f"v_add_u32 v{tmp}, s{sS0}, v{vLANE}")
    R += [f"v_mul_u32_u24 v{dst}, 3641, v{tmp}",
          f"v_lshrrev_b32 v{dst}, 16, v{dst}",
          f"v_mul_u32_u24 v{tmp+1}, 18, v{dst}",
          f"v_sub_u32 v{tmp}, v{tmp}, v{tmp+1}",
          f"v_mul_u32_u24 v{dst}, 1152, v{dst}",
          f"v_lshl_add_u32 v{dst}, v{tmp}, 4, v{dst}"]
    return R

def w2offs3_l():
    return w2off_l(vXR, 0, vT) + w2off_l(vXR+1, 4, vT) + w2off_l(vXR+2, None, vT)

def p2_misc_l():
    return [
     f"v_lshlrev_b32 v{vL16}, 4, v{vLANE}",
     f"v_and_b32 v{vFLA}, 3, v{vLANE}",
     f"v_lshlrev_b32 v{vFLA}, 2, v{vFLA}",
     f"v_lshrrev_b32 v{vP2T}, 5, v{vLANE}",
     f"v_lshlrev_b32 v{vP2T}, 4, v{vP2T}",
     f"v_bfe_u32 v{vP2T+1}, v{vLANE}, 4, 1",
     f"v_lshl_add_u32 v{vP2T}, v{vP2T+1}, 2, v{vP2T}",
     f"v_bfe_u32 v{vP2T+1}, v{vLANE}, 2, 2",
     f"v_add_u32 v{vP2T}, v{vP2T}, v{vP2T+1}",
     f"v_mul_u32_u24 v{vP2T}, 288, v{vP2T}",
     f"v_and_b32 v{vP2T+1}, 3, v{vLANE}",
     f"v_lshl_add_u32 v{vP2T}, v{vP2T+1}, 3, v{vP2T}",
     f"s_mul_i32 s{sS0}, s{sGRP}, {2*9216}",
     f"v_add_u32 v{vW2R}, s{sS0}, v{vP2T}"]

def poll0_l():
    return [f"s_add_u32 s{sS0}, s{sFLC}, {TORDER[0]*16}",
            f"buffer_load_dword v{vPOLL}, v{vFLA}, {srd(sWS)}, s{sS0} offen sc1"]

class Side:
    def __init__(self): self.q = []
    def add(self, min_step, instrs):
        for i in instrs: self.q.append((min_step, i))
    def emit(self, step, n):
        k = 0
        while self.q and k < n and self.q[0][0] <= step:
            a(self.q.pop(0)[1]); k += 1
    def flush(self):
        while self.q: a(self.q.pop(0)[1])

def block2(stA, stB, dma0, dma1, side, at={}):
    a(f"v_add_u32 v{vCUR}, {(stA%4)*SLOT}, v{vW1R}")
    a(f"v_add_u32 v{vCUR+1}, {(stA%4)*SLOT}, v{vW1R+1}")
    for ins in blk_reads(0, 2, 128, 18): a(ins)
    for ins in blk_reads(1, 2, 128, 18): a(ins)
    dq = list(dma0)
    for ks in range(36):
        nxt = ks + 2
        if nxt == 18:
            a("s_waitcnt vmcnt(9)")
            a("s_barrier")
            a(f"v_add_u32 v{vCUR}, {(stB%4)*SLOT}, v{vW1R}")
            a(f"v_add_u32 v{vCUR+1}, {(stB%4)*SLOT}, v{vW1R+1}")
            dq = list(dma1)
        if nxt == 36:
            a("s_waitcnt vmcnt(9)")
            a("s_barrier")
        for ins in at.get(ks, []): a(ins)
        pend = blk_reads(nxt, 2, 128, 18) if nxt < 36 else []
        a(f"s_waitcnt lgkmcnt({4 if ks+1 < 36 else 0})")
        buf = ks % 3
        for tl in range(2):
            acc = vACC2 + 16*tl
            af = vAF + buf*8 + tl*4
            a(f"v_mfma_f32_32x32x16_bf16 {vr(acc,16)}, {vr(af)}, {vr(vX+4*ks)}, {vr(acc,16) if ks else 0}")
            for ins in (pend[:2] if tl == 0 else pend[2:]): a(ins)
            if tl == 1 and dq:
                for ins in dq.pop(0): a(ins)
            else:
                side.emit(ks, 3)
    side.flush()

_pc = [0]
def poll_issue(tile_sgpr_or_int):
    if isinstance(tile_sgpr_or_int, int):
        a(f"s_add_u32 s{sT0}, s{sFLC}, {tile_sgpr_or_int*16}")
    else:
        a(f"s_lshl_b32 s{sT0}, {tile_sgpr_or_int}, 4")
        a(f"s_add_u32 s{sT0}, s{sT0}, s{sFLC}")
    a(f"buffer_load_dword v{vPOLL}, v{vFLA}, {srd(sWS)}, s{sT0} offen sc1")

def poll_spin(tile_sgpr_or_int):
    _pc[0] += 1
    n = _pc[0]
    a(f"s_mov_b32 s{sSPIN}, 0")
    lab(f"L_spin_{n}")
    poll_issue(tile_sgpr_or_int)
    a(f"s_add_u32 s{sSPIN}, s{sSPIN}, 1")
    a(f"s_cmp_gt_u32 s{sSPIN}, {SPIN_MAX}")
    a(f"s_cbranch_scc1 L_spin_out_{n}")
    a("s_waitcnt vmcnt(0)")
    a(f"v_cmp_ne_u32 vcc, s{sNONCE}, v{vPOLL}")
    a("s_cmp_eq_u64 vcc, 0")
    a(f"s_cbranch_scc0 L_spin_{n}")
    lab(f"L_spin_out_{n}")

def h_issue(tile):
    if isinstance(tile, int):
        a(f"s_add_u32 s{sT0}, s{sHL}, {tile*2048}")
    else:
        a(f"s_lshl_b32 s{sT0}, {tile}, 11")
        a(f"s_add_u32 s{sT0}, s{sT0}, s{sHL}")
    a(f"s_add_u32 s{sT1}, s{sT0}, {9*2048}")
    a(f"buffer_load_dwordx4 {vr(vHFN)}, v{vL16}, {srd(sWS)}, s{sT0} offen sc1")
    a(f"buffer_load_dwordx4 {vr(vHFN+4)}, v{vL16}, {srd(sWS)}, s{sT0} offen offset:1024 sc1")
    a(f"buffer_load_dwordx4 {vr(vHFN+8)}, v{vL16}, {srd(sWS)}, s{sT1} offen sc1")
    a(f"buffer_load_dwordx4 {vr(vHFN+12)}, v{vL16}, {srd(sWS)}, s{sT1} offen offset:1024 sc1")

def p2_preamble():
    _pc[0] += 1
    n = _pc[0]
    a("s_waitcnt vmcnt(0)")
    a(f"v_cmp_ne_u32 vcc, s{sNONCE}, v{vPOLL}")
    a("s_cmp_eq_u64 vcc, 0")
    a(f"s_cbranch_scc1 L_pre_ok_{n}")
    poll_spin(TORDER[0])
    lab(f"L_pre_ok_{n}")
    h_issue(TORDER[0])
    poll_issue(TORDER[1])

def zero_accp_l():
    return [f"v_mov_b32 v{vACCP+r}, 0" for r in range(72)]

cm("---- path A")
sd = Side()
sd.add(0, w2offs3_l())
sd.add(0, [f"v_lshrrev_b32 v{vT}, 5, v{vLANE}",
           f"v_bfe_u32 v{vT+1}, v{vLANE}, 2, 2",
           f"v_lshl_add_u32 v{vT}, v{vT}, 3, v{vT+1}",
           f"v_lshlrev_b32 v{vT}, 6, v{vT}",
           f"v_bfe_u32 v{vT+1}, v{vLANE}, 4, 1",
           f"v_lshlrev_b32 v{vT+1}, 5, v{vT+1}",
           f"v_and_b32 v{vT+2}, 3, v{vLANE}",
           f"v_lshlrev_b32 v{vT+2}, 3, v{vT+2}",
           f"v_add3_u32 v{vWR}, v{vT}, v{vT+1}, v{vT+2}",
           f"v_add_u32 v{vWR}, {(13%4)*SLOT}, v{vWR}"])
block2(9, 10, dma_t1_4w(11, 0, 384), dma_t1_4w(12, 288, 384), sd)
stamp(3)
epi(vACC1, 2, 0)
a("s_waitcnt vmcnt(4)")
stamp(4)
a("s_barrier")
epi(vACC2, 2, 4)
a("s_waitcnt vmcnt(4)")
flags(0, 2)
stamp(5)
a("s_barrier")
stamp(6)
def b3_reads(ks):
    d = vAF + (ks % 6)*4
    return [f"ds_read_b64_tr_b16 v[{d+2*e4}:{d+2*e4+1}], v{vWR} offset:{(16*ks + 4*e4)*64}" for e4 in range(2)]
for k in range(4):
    for ins in b3_reads(k): a(ins)
dq = dma_p2_4w(15, vXR)
sd = Side()
sd.add(0, p2_misc_l())
sd.add(18, zero_accp_l())
for ks in range(36):
    nxt = ks + 4
    if ks == 22:
        a("s_waitcnt vmcnt(9)")
        flags(4, 2)
        for ins in poll0_l(): a(ins)
    if ks == 31:
        a("s_barrier")
    pend = b3_reads(nxt) if nxt < 36 else []
    nout = 2*min(3, 35 - ks)
    a(f"s_waitcnt lgkmcnt({nout})")
    af = vAF + (ks % 6)*4
    a(f"v_mfma_f32_32x32x16_bf16 {vr(vACC1,16)}, {vr(af)}, {vr(vX+4*ks)}, {vr(vACC1,16) if ks else 0}")
    for ins in pend: a(ins)
    if ks % 2 == 1 and dq:
        for ins in dq.pop(0): a(ins)
    else:
        sd.emit(ks, 4)
sd.flush()
stamp(7)
a(f"s_mov_b32 s{sPEND}, 8")
a(f"s_mov_b32 s{sPEND2}, 1")
p2_preamble()
epi(vACC1, 1, 8)
a("s_waitcnt vmcnt(2)")
a("s_branch L_p2")

lab("L_pathB")
cm("---- path B")
a("s_nop 7")
epi(vACC1, 2, 2)
stamp(3)
a("s_barrier")
a(f"v_lshrrev_b32 v{vXOFF}, 2, v{vLANE}")
a(f"v_mul_u32_u24 v{vXOFF}, 9216, v{vXOFF}")
a(f"v_and_b32 v{vT+7}, 3, v{vLANE}")
a(f"v_lshl_add_u32 v{vXOFF}, v{vT+7}, 4, v{vXOFF}")
for ins in w2offs3_l(): a(ins)
for ins in p2_misc_l(): a(ins)
a("s_waitcnt vmcnt(0)")
flags(2, 2)
pf_emit("b10")
stamp(4)
a("s_barrier")
stamp(5)
sd = Side()
sd.add(18, zero_accp_l())
block2(11, 12, dma_t3_4w(13), dma_p2_4w(14, vXR), sd, at={27: poll0_l()})
stamp(6)
a(f"s_mov_b32 s{sPEND}, 6")
a(f"s_mov_b32 s{sPEND2}, 2")
p2_preamble()
epi(vACC2, 2, 6)
stamp(7)
a("s_barrier")
a("s_waitcnt vmcnt(4)")

lab("L_p2")
stamp(8)
a(f"s_cmp_eq_u32 s{sGRP}, 0")
a("s_cbranch_scc1 L_p2_offok")
a(f"v_mov_b32 v{vXR}, v{vXR+1}")
lab("L_p2_offok")
a(f"s_lshl_b32 s{sT6}, s{sWV}, 10")

def dma_p2_loop(tile_sgpr, slot_sgpr, uid):
    a(f"s_mul_i32 s{sT2}, s{tile_sgpr}, {32*1152}")
    a(f"s_add_u32 s{sT3}, s{sT2}, {32*1152}")
    a(f"s_cmp_eq_u32 s{tile_sgpr}, 8")
    a(f"s_cselect_b32 s{sT3}, 0, s{sT3}")
    a(f"s_add_u32 s{sT2}, s{sT2}, s{sW2B}")
    a(f"s_add_u32 s{sT3}, s{sT3}, s{sW2B}")
    a(f"s_add_u32 s{sT4}, s{slot_sgpr}, s{sT6}")
    for aa in range(4):
        a(f"s_add_u32 m0, s{sT4}, {aa*9216}")
        a(f"s_add_u32 s{sT1}, s{sT3 if aa & 1 else sT2}, {288*aa*1152}")
        a(f"buffer_load_dwordx4 v{vXR}, {srd(sW2)}, s{sT1} offen lds")
    a(f"s_cmp_ge_u32 s{sWV}, 4")
    a(f"s_cbranch_scc1 L_skip_p2d_{uid}")
    a(f"s_mul_i32 s{sT4}, s{sWV}, 9216")
    a(f"s_add_u32 s{sT4}, s{sT4}, s{slot_sgpr}")
    a(f"s_add_u32 m0, s{sT4}, 8192")
    a(f"s_and_b32 s{sT1}, s{sWV}, 1")
    a(f"s_cselect_b32 s{sT1}, s{sT3}, s{sT2}")
    a(f"s_mul_i32 s{sT4}, s{sWV}, {288*1152}")
    a(f"s_add_u32 s{sT1}, s{sT1}, s{sT4}")
    a(f"buffer_load_dwordx4 v{vXR+2}, {srd(sW2)}, s{sT1} offen lds")
    lab(f"L_skip_p2d_{uid}")

def tile_of(dst, s_sgpr, add):
    a(f"s_add_u32 s{dst}, s{s_sgpr}, {add}")
    a(f"s_min_u32 s{dst}, s{dst}, 8")
    a(f"s_xor_b32 s{sT7}, s{dst}, 2")
    a(f"s_cmp_lt_u32 s{dst}, 4")
    a(f"s_cselect_b32 s{dst}, s{sT7}, s{dst}")

def p2_reads(idx, addr):
    st, jn = idx // 9, idx % 9
    d = vAF2 + (idx % 6)*4
    return [f"ds_read_b64_tr_b16 v[{d+2*e4}:{d+2*e4+1}], v{addr} offset:{st*9216 + e4*8*288 + jn*32}" for e4 in range(2)]

a(f"s_mov_b32 s{sST}, 0")
a(f"s_mov_b32 s{sT5}, {TORDER[2]}")
a(f"s_mov_b32 s{sSLOTD}, {(16%4)*SLOT}")
dma_p2_loop(sT5, sSLOTD, "e")
a(f"s_mov_b32 s{sSLOTD}, {(17%4)*SLOT}")
a(f"s_mov_b32 s{sSLOTN}, {(15%4)*SLOT}")
a(f"v_add_u32 v{vW2C}, {(14%4)*SLOT}, v{vW2R}")
for i in range(4):
    for ins in p2_reads(i, vW2C): a(ins)
a("s_branch L_p2_top_nowait")

lab("L_p2_loop")
a(f"s_cmp_ge_u32 s{sST}, 7")
a("s_cbranch_scc1 L_p2_w0")
a("s_waitcnt vmcnt(4)")
a("s_branch L_p2_wdone")
lab("L_p2_w0")
a("s_waitcnt vmcnt(0)")
lab("L_p2_wdone")
a(f"s_cmp_lg_u32 s{sST}, 1")
a("s_cbranch_scc1 L_p2_top_nowait")
a(f"v_lshlrev_b32 v{vP2T}, 4, v{vLANE}")
a(f"v_mov_b32 v{vP2T+1}, s{sNONCE}")
a(f"v_cmp_gt_u32 vcc, s{sPEND2}, v{vLANE}")
a(f"s_lshl_b32 s{sT0}, s{sPEND}, 4")
a(f"s_add_u32 s{sT0}, s{sT0}, s{sFLH}")
a(f"s_and_saveexec_b64 s[{sEX}:{sEX+1}], vcc")
a(f"buffer_store_dword v{vP2T+1}, v{vP2T}, {srd(sWS)}, s{sT0} offen sc1")
a(f"s_mov_b64 exec, s[{sEX}:{sEX+1}]")
lab("L_p2_top_nowait")
for r in range(16):
    a(f"v_mov_b32 v{vHFC+r}, v{vHFN+r}")
a(f"s_cmp_eq_u32 s{sST}, 8")
a("s_cbranch_scc1 L_p2_nopf")
tile_of(sT5, sST, 1)
a(f"v_cmp_ne_u32 vcc, s{sNONCE}, v{vPOLL}")
a("s_cmp_eq_u64 vcc, 0")
a("s_cbranch_scc1 L_p2_ready")
poll_spin(f"s{sT5}")
lab("L_p2_ready")
h_issue(f"s{sT5}")
tile_of(sT5, sST, 2)
poll_issue(f"s{sT5}")
lab("L_p2_nopf")
for idx in range(18):
    st, jn = idx // 9, idx % 9
    if idx == 14:
        a("s_barrier")
        a(f"v_add_u32 v{vW2N}, s{sSLOTN}, v{vW2R}")
        a(f"s_cmp_ge_u32 s{sST}, 6")
        a("s_cbranch_scc1 L_p2_nodma")
        tile_of(sT5, sST, 3)
        dma_p2_loop(sT5, sSLOTD, "l")
        lab("L_p2_nodma")
    a("s_waitcnt lgkmcnt(6)")
    af = vAF2 + (idx % 6)*4
    for mh in range(2):
        acc = vACCP + (jn*2 + mh)*4
        hf = vHFC + st*8 + mh*4
        a(f"v_mfma_f32_16x16x32_bf16 {vr(acc)}, {vr(af)}, {vr(hf)}, {vr(acc)}")
        nx = idx + 4
        rd = p2_reads(nx, vW2C) if nx < 18 else p2_reads(nx - 18, vW2N)
        a(rd[mh])
a(f"v_mov_b32 v{vW2C}, v{vW2N}")
for sr in (sSLOTN, sSLOTD):
    a(f"s_add_u32 s{sr}, s{sr}, {SLOT}")
    a(f"s_cmp_eq_u32 s{sr}, {4*SLOT}")
    a(f"s_cselect_b32 s{sr}, 0, s{sr}")
a(f"s_add_u32 s{sST}, s{sST}, 1")
a(f"s_cmp_lt_u32 s{sST}, 9")
a("s_cbranch_scc1 L_p2_loop")
stamp(9)

a("s_waitcnt lgkmcnt(0)")
a(f"s_lshl_b32 s{sT0}, s{sW}, 13")
a(f"s_mul_i32 s{sT1}, s{sW}, 10240")
a(f"s_add_u32 s{sT1}, s{sT1}, 32768")
a(f"v_add_u32 v{vP2T}, s{sT0}, v{vL16}")
a(f"v_add_u32 v{vP2T+1}, s{sT1}, v{vL16}")
a(f"s_lshl_b32 s{sT2}, s{sMT}, 2")
a(f"s_add_u32 s{sT2}, s{sT2}, s{sNB}")
a(f"s_lshl_b32 s{sT2}, s{sT2}, 2")
a(f"s_add_u32 s{sT2}, s{sT2}, s{sW}")
a(f"s_lshl_b32 s{sT3}, s{sT2}, 1")
a(f"s_add_u32 s{sT3}, s{sT3}, s{sGRP}")
a(f"s_lshl_b32 s{sT3}, s{sT3}, 4")
a(f"s_add_u32 s{sFLC}, s{sT3}, {WS_FLAG_RS}")
a(f"s_mul_i32 s{sT2}, s{sT2}, {4*18*1024}")
a(f"s_add_u32 s{sHL}, s{sT2}, {WS_RS}")
a(f"s_cmp_lg_u32 s{sGRP}, 0")
a("s_cbranch_scc1 L_rsB")

def rs_path(tag, send, keep, send_addr, recv_addr, tslot0):
    for i, t in enumerate(send):
        a(f"ds_write_b128 v{send_addr}, {vr(vACCP+4*t)} offset:{i*1024}")
    a("s_waitcnt lgkmcnt(0)")
    a("s_barrier")
    for i, t in enumerate(keep):
        a(f"ds_read_b128 {vr(72+4*i)}, v{recv_addr} offset:{i*1024}")
    for i, t in enumerate(keep):
        a(f"s_waitcnt lgkmcnt({len(keep)-1-i})")
        for r in range(4):
            a(f"v_add_f32 v{vACCP+4*t+r}, v{vACCP+4*t+r}, v{72+4*i+r}")
    a(f"s_cmp_eq_u32 s{sW}, s{sG}")
    a(f"s_cbranch_scc1 L_rs_own_{tag}")
    a(f"s_mul_i32 s{sT0}, s{sG}, {18*1024}")
    a(f"s_add_u32 s{sT0}, s{sT0}, s{sHL}")
    for i, t in enumerate(keep):
        o = (tslot0 + i)*1024
        if i % 4 == 0:
            a(f"s_add_u32 s{sT1}, s{sT0}, {o}")
        a(f"buffer_store_dwordx4 {vr(vACCP+4*t)}, v{vL16}, {srd(sWS)}, s{sT1} offen offset:{(i%4)*1024} sc1")
    a(f"v_mov_b32 v{vP2T+2}, s{sNONCE}")
    a(f"s_lshl_b32 s{sT0}, s{sG}, 2")
    a(f"v_mov_b32 v{vP2T+3}, s{sT0}")
    a(f"v_cmp_eq_u32 vcc, 0, v{vLANE}")
    a("s_waitcnt vmcnt(0)")
    a(f"s_and_saveexec_b64 s[{sEX}:{sEX+1}], vcc")
    a(f"buffer_store_dword v{vP2T+2}, v{vP2T+3}, {srd(sWS)}, s{sFLC} offen sc1")
    a("s_branch L_end")
    lab(f"L_rs_own_{tag}")
    a(f"s_mov_b32 s{sSPIN}, 0")
    lab(f"L_rs_spin_{tag}")
    a(f"buffer_load_dword v{vPOLL}, v{vFLA}, {srd(sWS)}, s{sFLC} offen sc1")
    a(f"s_add_u32 s{sSPIN}, s{sSPIN}, 1")
    a(f"s_cmp_gt_u32 s{sSPIN}, {SPIN_MAX}")
    a(f"s_cbranch_scc1 L_rs_spin_out_{tag}")
    a(f"s_lshl_b32 s{sT0}, s{sG}, 2")
    a("s_waitcnt vmcnt(0)")
    a(f"v_cmp_ne_u32 vcc, s{sNONCE}, v{vPOLL}")
    a(f"v_cmp_ne_u32 s[{sT2}:{sT2+1}], s{sT0}, v{vFLA}")
    a(f"s_and_b64 vcc, vcc, s[{sT2}:{sT2+1}]")
    a("s_cmp_eq_u64 vcc, 0")
    a(f"s_cbranch_scc0 L_rs_spin_{tag}")
    lab(f"L_rs_spin_out_{tag}")
    n = len(keep)
    base = 144
    regs = list(range(176, 232, 4)) + list(range(72, 160, 4))
    k = 0
    for p in range(1, 4):
        a(f"s_add_u32 s{sT0}, s{sG}, {p}")
        a(f"s_and_b32 s{sT0}, s{sT0}, 3")
        a(f"s_mul_i32 s{sT0}, s{sT0}, {18*1024}")
        a(f"s_add_u32 s{sT0}, s{sT0}, s{sHL}")
        for i, t in enumerate(keep):
            o = (tslot0 + i)*1024
            if i % 4 == 0:
                a(f"s_add_u32 s{sT1}, s{sT0}, {o}")
            a(f"buffer_load_dwordx4 {vr(regs[k])}, v{vL16}, {srd(sWS)}, s{sT1} offen offset:{(i%4)*1024} sc1")
            k += 1
    a(f"v_and_b32 v{vP2T+2}, 15, v{vLANE}")
    a(f"v_mul_u32_u24 v{vP2T+2}, 1152, v{vP2T+2}")
    a(f"v_lshrrev_b32 v{vP2T+3}, 4, v{vLANE}")
    a(f"v_lshl_add_u32 v{vP2T+2}, v{vP2T+3}, 3, v{vP2T+2}")
    a(f"s_mul_i32 s{sT2}, s{sW}, {32*1152}")
    a(f"s_add_u32 s{sT2}, s{sT2}, s{sXB}")
    a(f"s_mul_i32 s{sT3}, s{sNB}, 288")
    a(f"s_add_u32 s{sT2}, s{sT2}, s{sT3}")
    a(f"s_add_u32 s{sT3}, s{sT2}, {16*1152}")
    k = 0
    tot = 3*n
    for p in range(3):
        for i, t in enumerate(keep):
            a(f"s_waitcnt vmcnt({tot-1-k})")
            for r in range(4):
                a(f"v_add_f32 v{vACCP+4*t+r}, v{vACCP+4*t+r}, v{regs[k]+r}")
            k += 1
    for i, t in enumerate(keep):
        jn, mh = t // 2, t % 2
        d = vP2T + 4 + 2*(i % 2)
        a(f"v_cvt_pk_bf16_f32 v{d}, v{vACCP+4*t}, v{vACCP+4*t+1}")
        a(f"v_cvt_pk_bf16_f32 v{d+1}, v{vACCP+4*t+2}, v{vACCP+4*t+3}")
        a(f"buffer_store_dwordx2 v[{d}:{d+1}], v{vP2T+2}, {srd(sOUT)}, s{sT3 if mh else sT2} offen offset:{jn*32}")
    a("s_branch L_end")

rs_path("A", list(range(10, 18)), list(range(0, 10)), vP2T, vP2T+1, 0)
lab("L_rsB")
rs_path("B", list(range(0, 10)), list(range(10, 18)), vP2T+1, vP2T, 10)

lab("L_end")
if PROF:
    stamp(15)
    a("s_memrealtime s[96:97]")
    a("s_mov_b64 exec, -1")
    a("s_cmp_ge_u32 s2, 256")
    a("s_cbranch_scc1 L_end2")
    a("s_waitcnt lgkmcnt(0)")
    for i in range(1, 16):
        a(f"s_sub_u32 s{64+2*(i-1)}, s{64+2*(i-1)}, s100")
    a(f"v_mov_b32 v0, 0")
    for i in range(1, 16):
        a(f"v_writelane_b32 v0, s{64+2*(i-1)}, {i}")
    a("s_sub_u32 s96, s96, s98")
    a("v_writelane_b32 v0, s96, 14")
    a(f"s_lshl_b32 s{sT0}, s2, 3")
    a(f"s_add_u32 s{sT0}, s{sT0}, s{sWV}")
    a(f"s_lshl_b32 s{sT0}, s{sT0}, 6")
    a(f"s_add_u32 s{sT0}, s{sT0}, {WS_PROF}")
    a(f"v_lshlrev_b32 v1, 2, v{vLANE}")
    a(f"v_cmp_gt_u32 vcc, 16, v{vLANE}")
    a(f"s_and_saveexec_b64 s[{sEX}:{sEX+1}], vcc")
    a(f"buffer_store_dword v0, v1, {srd(sWS)}, s{sT0} offen")
    if PROFDBG:
        a(f"s_cmp_lg_u32 s{sT0}, {WS_PROF}")
        a("s_cbranch_scc1 L_end2")
        a(f"buffer_store_dword v0, v1, {srd(sDBG)}, 0 offen")
    lab("L_end2")
a("s_endpgm")

hdr = [
 f"; @launch grid=(256,1,1) block=(512,1,1) lds={LDS_SIZE}",
 '.amdgcn_target "amdgcn-amd-amdhsa--gfx950"',
 ".text",
 f".globl {KNAME}",
 ".p2align 8",
 f".type {KNAME},@function",
]
ftr = [
 '.section .rodata,"a"',
 ".p2align 6",
 f".amdhsa_kernel {KNAME}",
 "  .amdhsa_next_free_vgpr 256",
 "  .amdhsa_next_free_sgpr 102",
 "  .amdhsa_accum_offset 256",
 "  .amdhsa_group_segment_fixed_size 0",
 "  .amdhsa_kernarg_size 48",
 "  .amdhsa_user_sgpr_count 2",
 "  .amdhsa_user_sgpr_kernarg_segment_ptr 1",
 "  .amdhsa_system_sgpr_workgroup_id_x 1",
 ".end_amdhsa_kernel",
]
print("\n".join(hdr + L + ftr))
```

```python
import sys

PROF = "--prof" in sys.argv or "--prof0" in sys.argv or "--prof2" in sys.argv or "--prof3" in sys.argv
PROF2 = "--prof2" in sys.argv
PROF3 = "--prof3" in sys.argv
PROF0 = "--prof0" in sys.argv
PROFDBG = "--dbgout" in sys.argv
NOH = "--noh" in sys.argv
NODMA = "--nodma" in sys.argv
NORD = "--nord" in sys.argv
NOPF = "--nopf" in sys.argv
NOBAR = "--nobar" in sys.argv
PLAINH = "--plainh" in sys.argv
NORETOUCH = "--noretouch" in sys.argv
WS_PROF = 96 << 20

KNAME = "standalone__dense_activation_silu__prompt_kernel"
L = []
def a(s): L.append(s if s.endswith(":") else "    " + s)
def lab(s): L.append(s + ":")
def cm(s): L.append("    ; " + s)
def stamp(i, p0=False):
    if PROF0 and not p0 and i not in (0, 15): return
    if PROF2 and p0 != 2 and i not in (0, 15): return
    if PROF:
        r = 100 if i == 0 else 64 + 2*(i-1)
        L.append(f"    s_memtime s[{r}:{r+1}]")

SLOT = 36864
LDS_NONCE = 4 * SLOT
LDS_SIZE = 4 * SLOT + 64
WS_RS = 32 << 20
WS_FLAG_H = 64 << 20
WS_FLAG_RS = (64 << 20) + (1 << 20)
LOG2E_NEG = 0xbfb8aa3b

sX, sW1, sW2, sOUT, sWS, sDBG = 4, 8, 12, 16, 20, 24
sMT, sG, sNB, sJ, sWV, sW, sGRP, sNONCE = 28, 29, 30, 31, 32, 33, 34, 35
sF0B = 36
sXB = 37
sT0, sT1, sT2, sT3, sT4, sT5 = 38, 39, 40, 41, 42, 43
sSLOTN = 44
sSLOTD = 45
sHB = 46
sFLH = 47
sFS = 50
sLOG = 51
sST = 52
sHL = 53
sW2B = 54
sPEND = 55
sPEND2 = 56
sNT = 57
sEX = 58
sFLC = 60
sT6, sT7 = 62, 63
sSPIN = 61
SPIN_MAX = 200000

def srd(r): return f"s[{r}:{r+3}]"

vX = 0
vACC1 = 144
vACC2 = 176
vAF = 208
vXR = 232
vWR = 236
vW1R = 238
vXOFF = 240
vW0OFF = 241
vW1OFF = 242
vLANE = 243
vHST = 244
vCUR = 245
vT = 248
vACCP = 0
vAF2 = 72
vHS = 96
vW2R = 160
vW2C = 161
vW2N = 162
vPOLL = 163
vFLA = 164
vL16 = 165
vP2T = 168
sS0, sS1 = 48, 49
sPK1 = 94
sPK2 = 96

def vr(b, n=4): return f"v[{b}:{b+n-1}]"

lab(KNAME)
a("s_cmp_ge_u32 s2, 256")
a("s_cbranch_scc1 L_end")
stamp(0)
a("s_load_dwordx4 s[80:83], s[0:1], 0")
a("s_load_dwordx4 s[84:87], s[0:1], 16")
a("s_load_dwordx4 s[88:91], s[0:1], 32")
a("s_memrealtime s[92:93]")
if PROF: a("s_memrealtime s[98:99]")
a(f"v_and_b32 v{vLANE}, 63, v0")
a(f"v_lshrrev_b32 v{vT}, 6, v0")
a("s_nop 0")
a(f"v_readfirstlane_b32 s{sWV}, v{vT}")
a(f"s_and_b32 s{sT0}, s2, 7")
a(f"s_lshr_b32 s{sT1}, s2, 3")
a(f"s_lshr_b32 s{sG}, s{sT0}, 1")
a(f"s_and_b32 s{sT2}, s{sT0}, 1")
a(f"s_lshl_b32 s{sT2}, s{sT2}, 3")
a(f"s_lshr_b32 s{sT3}, s{sT1}, 2")
a(f"s_add_u32 s{sMT}, s{sT2}, s{sT3}")
a(f"s_and_b32 s{sNB}, s{sT1}, 3")
a(f"s_lshl_b32 s{sJ}, s{sG}, 2")
a(f"s_add_u32 s{sJ}, s{sJ}, s{sNB}")
a(f"s_and_b32 s{sW}, s{sWV}, 3")
a(f"s_lshr_b32 s{sGRP}, s{sWV}, 2")
a(f"s_mul_i32 s{sT0}, s{sJ}, 576")
a(f"s_and_b32 s{sT1}, s{sJ}, 1")
a(f"s_lshl_b32 s{sT2}, s{sT1}, 6")
a(f"s_add_u32 s{sF0B}, s{sT0}, s{sT2}")
a(f"s_xor_b32 s{sT1}, s{sT1}, 1")
a(f"s_lshl_b32 s{sT1}, s{sT1}, 9")
a(f"s_add_u32 s{sFS}, s{sT0}, s{sT1}")
a(f"s_mul_i32 s{sXB}, s{sMT}, {128*1152}")
a(f"s_mov_b32 s{sLOG}, 0x{LOG2E_NEG:08x}")

l = vLANE
t0, t1, t2, t3 = vT, vT+1, vT+2, vT+3
a(f"v_lshrrev_b32 v{t0}, 3, v{l}")
a(f"v_mul_u32_u24 v{vXOFF}, 1152, v{t0}")
a(f"v_and_b32 v{t1}, 7, v{l}")
a(f"v_lshrrev_b32 v{t2}, 4, v{l}")
a(f"v_xor_b32 v{t1}, v{t1}, v{t2}")
a(f"s_and_b32 s{sT0}, s{sWV}, 1")
a(f"s_lshl_b32 s{sT0}, s{sT0}, 2")
a(f"v_xor_b32 v{t1}, s{sT0}, v{t1}")
a(f"v_lshlrev_b32 v{t1}, 4, v{t1}")
a(f"v_add_u32 v{vXOFF}, v{vXOFF}, v{t1}")
a(f"v_lshrrev_b32 v{t0}, 4, v{l}")
a(f"v_mul_u32_u24 v{vW0OFF}, 9216, v{t0}")
a(f"v_bfe_u32 v{t1}, v{l}, 2, 2")
a(f"v_xor_b32 v{t1}, v{t1}, v{t0}")
a(f"v_lshlrev_b32 v{t1}, 6, v{t1}")
a(f"v_and_b32 v{t2}, 3, v{l}")
a(f"v_lshlrev_b32 v{t2}, 4, v{t2}")
a(f"v_add3_u32 v{vW0OFF}, v{vW0OFF}, v{t1}, v{t2}")
a(f"s_mul_i32 s{sT4}, s{sWV}, {8*1152}")
a(f"s_add_u32 s{sT4}, s{sT4}, s{sXB}")
a(f"s_mul_i32 s{sT5}, s{sWV}, {4*9216}")
a(f"s_add_u32 s{sT5}, s{sT5}, s{sF0B}")
a(f"s_lshl_b32 s{sT6}, s{sWV}, 10")
a("s_waitcnt lgkmcnt(0)")
for (r, src, nbytes) in ((sX, 80, 2048*576*2), (sW1, 82, 576*4608*2), (sW2, 84, 4608*576*2), (sOUT, 86, 2048*576*2), (sDBG, 88, 256), (sWS, 90, 256 << 20)):
    a(f"s_mov_b32 s{r}, s{src}")
    a(f"s_mov_b32 s{r+1}, s{src+1}")
    a(f"s_mov_b32 s{r+2}, {nbytes}")
    a(f"s_mov_b32 s{r+3}, 0x20000")

def dma_p0_list(t):
    slot = (t % 4) * SLOT
    G = []
    for k in range(2):
        G.append([f"s_add_u32 m0, s{sT6}, {slot + 8192*k}",
                  f"s_add_u32 s{sT1}, s{sT4}, {128*t + 64*1152*k}",
                  f"buffer_load_dwordx4 v{vXOFF}, {srd(sX)}, s{sT1} offen lds"])
        G.append([f"s_add_u32 m0, s{sT6}, {slot + 16384 + 8192*k}",
                  f"s_add_u32 s{sT1}, s{sT5}, {(64*t + 32*k)*9216}",
                  f"buffer_load_dwordx4 v{vW0OFF}, {srd(sW1)}, s{sT1} offen lds"])
    return G

def dma_t1_8w(stage, dr0, fcoff):
    slot = (stage % 4) * SLOT
    G = [[f"s_mul_i32 s{sT2}, s{sWV}, {8*9216}", f"s_add_u32 s{sT2}, s{sT2}, s{sF0B}"]]
    for k in range(4):
        G.append([f"s_add_u32 m0, s{sT6}, {slot + 8192*k}",
                  f"s_add_u32 s{sT1}, s{sT2}, {(dr0 + 64*k)*9216 + fcoff}",
                  f"buffer_load_dwordx4 v{vW1OFF}, {srd(sW1)}, s{sT1} offen lds"])
    G.append([f"s_cmp_ge_u32 s{sWV}, 4",
              f"s_cbranch_scc1 L_t18_{stage}",
              f"s_add_u32 m0, s{sT6}, {slot + 8192*4}",
              f"s_add_u32 s{sT1}, s{sT2}, {(dr0 + 64*4)*9216 + fcoff}",
              f"buffer_load_dwordx4 v{vW1OFF}, {srd(sW1)}, s{sT1} offen lds",
              f"L_t18_{stage}:"])
    return G

_gid = [0]
def emit_groups_A(G):
    _gid[0] += 1
    a(f"s_cmp_lg_u32 s{sGRP}, 0")
    a(f"s_cbranch_scc1 L_gskip_{_gid[0]}")
    emit_groups(G)
    lab(f"L_gskip_{_gid[0]}")

vPFX, vPFA, vPFB, vPFC = 176, 177, 178, 179
sPFX, sPFW1, sPFW2 = 94, 95, 96
def PFx(k): return (sX, vPFX, sPFX, k*256)
def PFa(k): return (sW1, vPFA, sPFW1, k*256*9216)
def PFb(k): return (sW1, vPFB, sPFW1, k*128*9216)
def PFc(k): return (sW2, vPFC, sPFW2, k*2048*128)
PF_SCHED = {
  2: [PFb(0)], 3: [PFb(1)], 4: [PFb(2)], 5: [PFb(3)], 6: [PFb(4)], 7: [PFc(0)], 8: [PFc(1)],
  "b10": [PFc(2), PFc(3), PFc(4), PFc(5)],
}
_pfn = [0]
def pf_emit(key, guard_grp=False):
    items = PF_SCHED.get(key, []) if not NOPF else []
    for (sr, vo, sb, off) in items:
        wv = 4 + (_pfn[0] % 4)
        _pfn[0] += 1
        a(f"s_cmp_lg_u32 s{sWV}, {wv}")
        a(f"s_cbranch_scc1 L_pfs_{_pfn[0]}")
        a(f"s_add_u32 s{sS0}, s{sb}, {off}")
        a(f"buffer_load_dword v247, v{vo}, {srd(sr)}, s{sS0} offen")
        lab(f"L_pfs_{_pfn[0]}")

def emit_groups(G):
    for g in G:
        for ins in g: a(ins)

a(f"s_lshl_b32 s{sT0}, s{sMT}, 2")
if PROFDBG: a(f"s_add_u32 s{sT0}, s{sT0}, 64")
a(f"v_mov_b32 v{vT+6}, s{sT0}")
a(f"s_lshl_b32 s{sT1}, s{sJ}, 3")
a(f"s_add_u32 s{sT1}, s{sT1}, s{sWV}")
a(f"s_cmp_lg_u32 s{sT1}, 4")
a("s_cbranch_scc1 L_no_nonce")
a(f"s_or_b32 s{sNT}, s92, 1")
a(f"v_mov_b32 v{vT+4}, s{sNT}")
a(f"buffer_store_dword v{vT+4}, v{vT+6}, {srd(sDBG)}, 0 offen sc1")
lab("L_no_nonce")
emit_groups(dma_p0_list(0))
a("s_barrier")
emit_groups(dma_p0_list(1))
emit_groups(dma_p0_list(2))
a(f"s_lshr_b32 s{sT0}, s2, 3")
a(f"s_lshl_b32 s{sT0}, s{sT0}, 6")
a(f"v_add_u32 v{vT}, s{sT0}, v{l}")
a(f"v_and_b32 v{vPFX}, 1023, v{vT}")
a(f"v_mul_u32_u24 v{vPFX}, 1152, v{vPFX}")
a(f"v_lshrrev_b32 v{vT+2}, 10, v{vT}")
a(f"v_lshl_add_u32 v{vPFX}, v{vT+2}, 7, v{vPFX}")
a(f"s_lshr_b32 s{sPFX}, s{sMT}, 3")
a(f"s_mul_i32 s{sPFX}, s{sPFX}, {1024*1152}")
a(f"v_lshrrev_b32 v{vPFA}, 3, v{vT}")
a(f"v_mul_u32_u24 v{vPFA}, 9216, v{vPFA}")
a(f"v_and_b32 v{vT+3}, 3, v{vT}")
a(f"v_bfe_u32 v{vT+7}, v{vT}, 1, 1")
a(f"v_mul_u32_u24 v{vT+7}, 3, v{vT+7}")
a(f"v_add_u32 v{vT+3}, v{vT+3}, v{vT+7}")
a(f"v_bfe_u32 v{vT+7}, v{vT}, 2, 1")
a(f"v_mul_u32_u24 v{vT+7}, 9, v{vT+7}")
a(f"v_add_u32 v{vT+3}, v{vT+3}, v{vT+7}")
a(f"v_lshl_add_u32 v{vPFA}, v{vT+3}, 7, v{vPFA}")
a(f"s_mul_i32 s{sPFW1}, s{sG}, 2304")
a(f"v_lshrrev_b32 v{vPFB}, 4, v{vT}")
a(f"v_mul_u32_u24 v{vPFB}, 9216, v{vPFB}")
a(f"v_and_b32 v{vT+7}, 7, v{vT}")
a(f"v_min_u32 v{vT+7}, 4, v{vT+7}")
a(f"v_cmp_le_u32 vcc, 3, v{vT+7}")
a(f"v_add_u32 v{vT+7}, 2, v{vT+7}")
a("s_nop 1")
a(f"v_cndmask_b32 v{vT+3}, 0, 2, vcc")
a(f"v_add_u32 v{vT+7}, v{vT+7}, v{vT+3}")
a(f"v_bfe_u32 v{vT+3}, v{vT}, 3, 1")
a(f"v_mul_u32_u24 v{vT+3}, 9, v{vT+3}")
a(f"v_add_u32 v{vT+7}, v{vT+7}, v{vT+3}")
a(f"v_lshl_add_u32 v{vPFB}, v{vT+7}, 7, v{vPFB}")
a(f"v_lshlrev_b32 v{vPFC}, 7, v{vT}")
a(f"s_mul_i32 s{sPFW2}, s{sG}, {1152*1152}")


a(f"v_lshrrev_b32 v{t0}, 3, v{l}")
a(f"v_mul_u32_u24 v{vW1OFF}, 9216, v{t0}")
a(f"v_bfe_u32 v{t1}, v{l}, 2, 1")
a(f"v_bfe_u32 v{t2}, v{l}, 4, 1")
a(f"v_xor_b32 v{t1}, v{t1}, v{t2}")
a(f"v_lshlrev_b32 v{t1}, 6, v{t1}")
a(f"v_and_b32 v{t2}, 3, v{l}")
a(f"v_lshlrev_b32 v{t2}, 4, v{t2}")
a(f"v_add3_u32 v{vW1OFF}, v{vW1OFF}, v{t1}, v{t2}")

a(f"v_and_b32 v{t0}, 31, v{l}")
a(f"s_lshl_b32 s{sT0}, s{sW}, 12")
a(f"v_lshlrev_b32 v{t1}, 7, v{t0}")
a(f"v_add_u32 v{t1}, s{sT0}, v{t1}")
a(f"v_bfe_u32 v{t2}, v{l}, 1, 3")
a(f"v_lshrrev_b32 v{t3}, 5, v{l}")
a(f"v_xor_b32 v{t2}, v{t2}, v{t3}")
a(f"v_lshlrev_b32 v{t2}, 4, v{t2}")
a(f"v_add_u32 v{vXR}, v{t1}, v{t2}")
a(f"v_xor_b32 v{vXR+1}, 32, v{vXR}")
a(f"v_xor_b32 v{vXR+2}, 64, v{vXR}")
a(f"v_xor_b32 v{vXR+3}, 0x60, v{vXR}")
a(f"v_lshrrev_b32 v{t0}, 5, v{l}")
a(f"v_bfe_u32 v{t1}, v{l}, 2, 2")
a(f"v_lshl_add_u32 v{t0}, v{t0}, 3, v{t1}")
a(f"v_lshlrev_b32 v{t0}, 8, v{t0}")
a(f"v_bfe_u32 v{t2}, v{l}, 4, 1")
a(f"v_lshlrev_b32 v{t2}, 5, v{t2}")
a(f"v_and_b32 v{t3}, 3, v{l}")
a(f"v_lshlrev_b32 v{t3}, 3, v{t3}")
a(f"v_add3_u32 v{t0}, v{t0}, v{t2}, v{t3}")
a(f"v_add_u32 v{t0}, 16384, v{t0}")
a(f"s_lshl_b32 s{sT0}, s{sGRP}, 1")
a(f"v_xor_b32 v{t2}, s{sT0}, v{t1}")
a(f"v_lshl_add_u32 v{vWR}, v{t2}, 6, v{t0}")
a(f"v_xor_b32 v{vWR+1}, 64, v{vWR}")
a(f"v_lshrrev_b32 v{t0}, 5, v{l}")
a(f"v_lshl_add_u32 v{t0}, v{t0}, 3, v{t1}")
a(f"v_lshlrev_b32 v{t0}, 7, v{t0}")
a(f"v_bfe_u32 v{t2}, v{l}, 4, 1")
a(f"v_lshlrev_b32 v{t2}, 5, v{t2}")
a(f"v_add3_u32 v{t0}, v{t0}, v{t2}, v{t3}")
a(f"v_bfe_u32 v{t2}, v{l}, 3, 1")
a(f"v_lshl_add_u32 v{vW1R}, v{t2}, 6, v{t0}")
a(f"v_xor_b32 v{vW1R+1}, 64, v{vW1R}")
a(f"v_bfe_u32 v{t0}, v{l}, 4, 1")
a(f"v_lshlrev_b32 v{t0}, 10, v{t0}")
a(f"v_lshrrev_b32 v{t1}, 5, v{l}")
a(f"v_lshlrev_b32 v{t1}, 8, v{t1}")
a(f"v_and_b32 v{t2}, 15, v{l}")
a(f"v_lshlrev_b32 v{t2}, 4, v{t2}")
a(f"v_add3_u32 v{vHST}, v{t0}, v{t1}, v{t2}")
a(f"s_lshl_b32 s{sT0}, s{sMT}, 2")
a(f"s_add_u32 s{sT0}, s{sT0}, s{sW}")
a(f"s_mul_i32 s{sT1}, s{sT0}, 144")
a(f"s_mul_i32 s{sT2}, s{sJ}, 9")
a(f"s_add_u32 s{sT2}, s{sT1}, s{sT2}")
a(f"s_lshl_b32 s{sHB}, s{sT2}, 11")
a(f"s_mul_i32 s{sT2}, s{sG}, 36")
a(f"s_add_u32 s{sT2}, s{sT1}, s{sT2}")
a(f"s_mul_i32 s{sT3}, s{sGRP}, 18")
a(f"s_add_u32 s{sT2}, s{sT2}, s{sT3}")
a(f"s_lshl_b32 s{sHL}, s{sT2}, 11")
a(f"s_lshl_b32 s{sT0}, s{sMT}, 2")
a(f"s_add_u32 s{sT0}, s{sT0}, s{sG}")
a(f"s_lshl_b32 s{sT0}, s{sT0}, 2")
a(f"s_add_u32 s{sT0}, s{sT0}, s{sW}")
a(f"s_lshl_b32 s{sT0}, s{sT0}, 8")
a(f"s_add_u32 s{sFLC}, s{sT0}, {WS_FLAG_H}")
a(f"s_lshl_b32 s{sT1}, s{sNB}, 2")
a(f"s_add_u32 s{sFLH}, s{sFLC}, s{sT1}")
a(f"s_mul_i32 s{sT0}, s{sG}, {1152*1152}")
a(f"s_mul_i32 s{sT1}, s{sNB}, 288")
a(f"s_add_u32 s{sW2B}, s{sT0}, s{sT1}")

def dma_t1_all(stage, dr0, fcoff):
    slot = (stage % 4) * SLOT
    a(f"s_mul_i32 s{sT2}, s{sWV}, {8*9216}")
    a(f"s_add_u32 s{sT2}, s{sT2}, s{sF0B}")
    for k in range(5):
        if k == 4:
            a(f"s_cmp_ge_u32 s{sWV}, 4")
            a(f"s_cbranch_scc1 L_skip_t1_{stage}")
        a(f"s_add_u32 m0, s{sT6}, {slot + 8192*k}")
        a(f"s_add_u32 s{sT1}, s{sT2}, {(dr0 + 64*k)*9216 + fcoff}")
        a(f"buffer_load_dwordx4 v{vW1OFF}, {srd(sW1)}, s{sT1} offen lds")
    lab(f"L_skip_t1_{stage}")

def dma_t1_4w(stage, dr0, fcoff):
    slot = (stage % 4) * SLOT
    G = [[f"s_mul_i32 s{sT2}, s{sW}, {8*9216}", f"s_add_u32 s{sT2}, s{sT2}, s{sF0B}"]]
    for k in range(9):
        G.append([f"s_add_u32 m0, s{sT6}, {slot + 4096*k}",
                  f"s_add_u32 s{sT1}, s{sT2}, {(dr0 + 32*k)*9216 + fcoff}",
                  f"buffer_load_dwordx4 v{vW1OFF}, {srd(sW1)}, s{sT1} offen lds"])
    return G

def p0_reads(ks):
    t, sp = ks // 4, ks % 4
    so = (t % 2) * SLOT
    buf = ks % 3
    R = []
    R.append(f"ds_read_b128 {vr(vX+4*ks)}, v{vXR+sp} offset:{so}")
    for tl in range(2):
        for e4 in range(2):
            d = vAF + buf*8 + tl*4 + e4*2
            R.append(f"ds_read_b64_tr_b16 v[{d}:{d+1}], v{vWR+tl} offset:{so + (16*sp + 4*e4)*256}")
    return R

def toggle_p0(t):
    if t % 2 == 0 and t > 0:
        op = "v_add_u32" if (t % 4) == 2 else "v_subrev_u32"
        for r in list(range(vXR, vXR+4)) + [vWR, vWR+1]:
            a(f"{op} v{r}, {2*SLOT}, v{r}")

a("s_waitcnt vmcnt(8)")
a("s_barrier")
stamp(1, True)
dq0 = dma_p0_list(3)
for ins in p0_reads(0): a(ins)
for ins in p0_reads(1): a(ins)
for ks in range(36):
    nxt = ks + 2
    pend = []
    if nxt % 4 == 0:
        t = nxt // 4
        a(f"s_waitcnt vmcnt(8) lgkmcnt(0)")
        if t == 8:
            a(f"s_cmp_lg_u32 s{sWV}, 4")
            a("s_cbranch_scc1 L_no_nonce2")
            a(f"s_mov_b32 s{sSPIN}, 0")
            lab("L_nonce_chk")
            a(f"v_readfirstlane_b32 s{sT0}, v{vT+4}")
            a(f"s_cmp_lg_u32 s{sT0}, 0")
            a("s_cbranch_scc1 L_nonce_ok")
            a(f"s_add_u32 s{sSPIN}, s{sSPIN}, 1")
            a(f"s_cmp_gt_u32 s{sSPIN}, {SPIN_MAX}")
            a("s_cbranch_scc1 L_nonce_ok")
            a(f"buffer_load_dword v{vT+4}, v{vT+6}, {srd(sDBG)}, 0 offen sc1")
            a("s_waitcnt vmcnt(0)")
            a("s_branch L_nonce_chk")
            lab("L_nonce_ok")
            a(f"v_mov_b32 v{vT+5}, s{sT0}")
            a(f"v_mov_b32 v{vT+6}, {LDS_NONCE}")
            a(f"ds_write_b32 v{vT+6}, v{vT+5}")
            lab("L_no_nonce2")
        a("s_barrier")
        stamp(1 + t, True) if PROF0 else None
        pf_emit(t)
        if t == 4:
            a(f"s_cmp_lg_u32 s{sWV}, 4")
            a("s_cbranch_scc1 L_no_nonce3")
            a(f"buffer_load_dword v{vT+4}, v{vT+6}, {srd(sDBG)}, 0 offen sc1")
            lab("L_no_nonce3")
        assert not dq0
        if t <= 5:
            dq0 = dma_p0_list(t + 3)
        elif t == 6:
            dq0 = dma_t1_8w(9, 0, 256)
        elif t == 7:
            dq0 = dma_t1_8w(10, 288, 256)
        elif t == 8:
            dq0 = dma_t1_8w(11, 0, 384)
        if t <= 8:
            toggle_p0(t)
    if nxt < 36:
        pend = p0_reads(nxt)
    nout = 5 if ks + 1 < 36 else 0
    a(f"s_waitcnt lgkmcnt({nout})")
    buf = ks % 3
    for tl in range(2):
        acc = vACC1 + 16*tl
        af = vAF + buf*8 + tl*4
        a(f"v_mfma_f32_32x32x16_bf16 {vr(acc,16)}, {vr(af)}, {vr(vX+4*ks)}, {vr(acc,16) if ks else 0}")
        for ins in (pend[:3] if tl == 0 else pend[3:]): a(ins)
        nb_ = next(k for k in range(ks+1, 40) if (k + 2) % 4 == 0)
        slots = (nb_ - ks)*2 - tl
        if dq0:
            ng = -(-len(dq0) // slots)
            emit_groups([dq0.pop(0) for _ in range(ng)])

stamp(2)
a(f"v_mov_b32 v{vT}, {LDS_NONCE}")
a(f"ds_read_b32 v{vT+1}, v{vT}")
a(f"s_lshl_b32 s{sT6}, s{sW}, 10")
a("s_waitcnt lgkmcnt(0)")
a(f"v_readfirstlane_b32 s{sNONCE}, v{vT+1}")
a(f"s_cmp_lg_u32 s{sGRP}, 0")
a("s_cbranch_scc1 L_pathB")

def epi_tile(A, P, tt, side=None, per=2):
    for b in range(4):
        if side:
            for _ in range(per):
                if side:
                    for ins in side.pop(0): a(ins)
        rr = [A + 4*b + i for i in range(4)]
        tt_ = [vT + i for i in range(4)]
        for i in range(4): a(f"v_mul_f32 v{tt_[i]}, s{sLOG}, v{rr[i]}")
        for i in range(4): a(f"v_exp_f32 v{tt_[i]}, v{tt_[i]}")
        for i in range(4): a(f"v_add_f32 v{tt_[i]}, 1.0, v{tt_[i]}")
        for i in range(4): a(f"v_rcp_f32 v{tt_[i]}, v{tt_[i]}")
        for i in range(4): a(f"v_mul_f32 v{tt_[i]}, v{rr[i]}, v{tt_[i]}")
        a(f"v_cvt_pk_bf16_f32 v{P+2*b}, v{tt_[0]}, v{tt_[1]}")
        a(f"v_cvt_pk_bf16_f32 v{P+2*b+1}, v{tt_[2]}, v{tt_[3]}")
        if b % 2 == 1:
            p = b // 2
            if p == 0:
                a(f"s_add_u32 s{sT0}, s{sHB}, {tt*2048}")
            a(f"buffer_store_dwordx4 {vr(P+4*p)}, v{vHST}, {srd(sWS)}, s{sT0} offen offset:{512*p}" + ("" if PLAINH else " sc1"))

_pk = [0]
def epi(acc, ntiles, tt0, side=None, per=2):
    for ti in range(ntiles):
        epi_tile(acc + 16*ti, vAF + 8*(_pk[0] % 3), tt0 + ti, side, per)
        _pk[0] += 1
    while side:
        for ins in side.pop(0): a(ins)

def h_groups(boff, tile, hset):
    d = vHS + 16*hset
    o = tile*2048 + boff
    G = [[(f"s_add_u32 s{sS0}, s{sHL}, {o}" if o >= 0 else f"s_sub_u32 s{sS0}, s{sHL}, {-o}"),
          f"buffer_load_dwordx4 {vr(d)}, v{vL16}, {srd(sWS)}, s{sS0} offen sc1"],
         [f"buffer_load_dwordx4 {vr(d+4)}, v{vL16}, {srd(sWS)}, s{sS0} offen offset:1024 sc1"],
         [f"s_add_u32 s{sS1}, s{sS0}, {9*2048}",
          f"buffer_load_dwordx4 {vr(d+8)}, v{vL16}, {srd(sWS)}, s{sS1} offen sc1"],
         [f"buffer_load_dwordx4 {vr(d+12)}, v{vL16}, {srd(sWS)}, s{sS1} offen offset:1024 sc1"]]
    return G

def flags(tt0, n, tmp=vT+4):
    a(f"v_lshlrev_b32 v{tmp}, 4, v{vLANE}")
    a(f"v_mov_b32 v{tmp+1}, s{sNONCE}")
    a(f"v_cmp_gt_u32 vcc, {n}, v{vLANE}")
    a(f"s_add_u32 s{sT0}, s{sFLH}, {tt0*16}")
    a(f"s_and_saveexec_b64 s[{sEX}:{sEX+1}], vcc")
    a(f"buffer_store_dword v{tmp+1}, v{tmp}, {srd(sWS)}, s{sT0} offen sc1")
    a(f"s_mov_b64 exec, s[{sEX}:{sEX+1}]")
    if NORETOUCH: return
    a(f"v_lshlrev_b32 v{tmp}, 7, v{vLANE}")
    a(f"v_cmp_gt_u32 vcc, {16*n}, v{vLANE}")
    a(f"s_add_u32 s{sT0}, s{sHB}, {tt0*2048}")
    a(f"s_and_saveexec_b64 s[{sEX}:{sEX+1}], vcc")
    a(f"buffer_load_dword v247, v{tmp}, {srd(sWS)}, s{sT0} offen sc1")
    a(f"s_mov_b64 exec, s[{sEX}:{sEX+1}]")

def blk_reads(ks, ntl, rowbytes, steps_per_stage):
    sp = ks % steps_per_stage
    buf = ks % 3
    R = []
    for tl in range(ntl):
        for e4 in range(2):
            d = vAF + buf*8 + tl*4 + e4*2
            R.append(f"ds_read_b64_tr_b16 v[{d}:{d+1}], v{vCUR+tl} offset:{(16*sp + 4*e4)*rowbytes}")
    return R

def dma_t3_4w(stage):
    slot = (stage % 4) * SLOT
    G = [[f"s_mul_i32 s{sT2}, s{sW}, {16*9216}", f"s_add_u32 s{sT2}, s{sT2}, s{sFS}"]]
    for k in range(9):
        G.append([f"s_add_u32 m0, s{sT6}, {slot + 4096*k}",
                  f"s_add_u32 s{sT1}, s{sT2}, {64*k*9216}",
                  f"buffer_load_dwordx4 v{vXOFF}, {srd(sW1)}, s{sT1} offen lds"])
    return G

TORDER = [2, 3, 0, 1, 4, 5, 6, 7, 8]
def fo_rows(tile, apar):
    if tile < 8: return apar*32 + 32*tile
    return 0 if apar else 256

def dma_p2_4w(stage, offs):
    slot = (stage % 4) * SLOT
    tile = TORDER[stage - 14]
    G = []
    for bi in range(2):
        for aa in range(4):
            G.append([f"s_add_u32 m0, s{sT6}, {slot + aa*9216 + bi*4096}",
                      f"s_add_u32 s{sT1}, s{sW2B}, {(288*aa + fo_rows(tile, aa & 1))*1152}",
                      f"buffer_load_dwordx4 v{offs+bi}, {srd(sW2)}, s{sT1} offen lds"])
    r0, r1 = fo_rows(tile, 0), fo_rows(tile, 1)
    G.append([f"s_mul_i32 s{sT1}, s{sW}, 9216",
              f"s_add_u32 m0, s{sT1}, {slot + 8192}",
              f"s_and_b32 s{sT2}, s{sW}, 1",
              f"s_mul_i32 s{sT2}, s{sT2}, {(r1 - r0)*1152}",
              f"s_mul_i32 s{sT1}, s{sW}, {288*1152}",
              f"s_add_u32 s{sT1}, s{sT1}, s{sT2}",
              f"s_add_u32 s{sT1}, s{sT1}, s{sW2B}",
              f"s_add_u32 s{sT1}, s{sT1}, {r0*1152}",
              f"buffer_load_dwordx4 v{offs+2}, {srd(sW2)}, s{sT1} offen lds"])
    return G

def w2off_l(dst, badd, tmp):
    R = []
    if badd is None:
        R.append(f"v_add_u32 v{tmp}, 512, v{vLANE}")
    else:
        R.append(f"s_lshl_b32 s{sS0}, s{sW}, 6")
        R.append(f"s_add_u32 s{sS0}, s{sS0}, {64*badd}")
        R.append(f"v_add_u32 v{tmp}, s{sS0}, v{vLANE}")
    R += [f"v_mul_u32_u24 v{dst}, 3641, v{tmp}",
          f"v_lshrrev_b32 v{dst}, 16, v{dst}",
          f"v_mul_u32_u24 v{tmp+1}, 18, v{dst}",
          f"v_sub_u32 v{tmp}, v{tmp}, v{tmp+1}",
          f"v_mul_u32_u24 v{dst}, 1152, v{dst}",
          f"v_lshl_add_u32 v{dst}, v{tmp}, 4, v{dst}"]
    return R

def w2offs3_l():
    return w2off_l(vXR, 0, vT) + w2off_l(vXR+1, 4, vT) + w2off_l(vXR+2, None, vT)

def p2_misc_l():
    return [
     f"v_lshlrev_b32 v{vL16}, 4, v{vLANE}",
     f"v_lshlrev_b32 v{vFLA}, 2, v{vLANE}",
     f"v_lshrrev_b32 v{vP2T}, 5, v{vLANE}",
     f"v_lshlrev_b32 v{vP2T}, 4, v{vP2T}",
     f"v_bfe_u32 v{vP2T+1}, v{vLANE}, 4, 1",
     f"v_lshl_add_u32 v{vP2T}, v{vP2T+1}, 2, v{vP2T}",
     f"v_bfe_u32 v{vP2T+1}, v{vLANE}, 2, 2",
     f"v_add_u32 v{vP2T}, v{vP2T}, v{vP2T+1}",
     f"v_mul_u32_u24 v{vP2T}, 288, v{vP2T}",
     f"v_and_b32 v{vP2T+1}, 3, v{vLANE}",
     f"v_lshl_add_u32 v{vP2T}, v{vP2T+1}, 3, v{vP2T}",
     f"s_mul_i32 s{sS0}, s{sGRP}, {2*9216}",
     f"v_add_u32 v{vW2R}, s{sS0}, v{vP2T}"]

def poll0_l():
    return [f"buffer_load_dword v{vPOLL}, v{vFLA}, {srd(sWS)}, s{sFLC} offen sc1"]

class Side:
    def __init__(self): self.q = []
    def add(self, min_step, instrs):
        for i in instrs: self.q.append((min_step, i))
    def emit(self, step, n):
        k = 0
        while self.q and k < n and self.q[0][0] <= step:
            a(self.q.pop(0)[1]); k += 1
    def flush(self):
        while self.q: a(self.q.pop(0)[1])

def block2(stA, stB, dma0, dma1, side, at={}, wmid=None, wend=None):
    a(f"v_add_u32 v{vCUR}, {(stA%4)*SLOT}, v{vW1R}")
    a(f"v_add_u32 v{vCUR+1}, {(stA%4)*SLOT}, v{vW1R+1}")
    for ins in blk_reads(0, 2, 128, 18): a(ins)
    for ins in blk_reads(1, 2, 128, 18): a(ins)
    dq = list(dma0)
    for ks in range(36):
        nxt = ks + 2
        if nxt == 18:
            a(f"s_waitcnt vmcnt({wmid}) lgkmcnt(0)" if wmid is not None else "s_waitcnt lgkmcnt(0)")
            a("s_barrier")
            a(f"v_add_u32 v{vCUR}, {(stB%4)*SLOT}, v{vW1R}")
            a(f"v_add_u32 v{vCUR+1}, {(stB%4)*SLOT}, v{vW1R+1}")
            dq = list(dma1)
        if nxt == 36:
            a(f"s_waitcnt vmcnt({wend}) lgkmcnt(0)" if wend is not None else "s_waitcnt lgkmcnt(0)")
            a("s_barrier")
        for ins in at.get(ks, []): a(ins)
        pend = blk_reads(nxt, 2, 128, 18) if nxt < 36 else []
        buf = ks % 3
        for tl in range(2):
            acc = vACC2 + 16*tl
            af = vAF + buf*8 + tl*4
            nx1 = 4 if ks + 1 < 36 else 0
            nx2 = 2 if (tl == 1 and nxt < 36) else 0
            a(f"s_waitcnt lgkmcnt({(2 if tl == 0 else 0) + nx1 + nx2})")
            a(f"v_mfma_f32_32x32x16_bf16 {vr(acc,16)}, {vr(af)}, {vr(vX+4*ks)}, {vr(acc,16) if ks else 0}")
            for ins in (pend[:2] if tl == 0 else pend[2:]): a(ins)
            if tl == 1 and dq:
                for ins in dq.pop(0): a(ins)
            else:
                side.emit(ks, 3)
    side.flush()

_pc = [0]
def snap_l():
    return [f"buffer_load_dword v{vPOLL}, v{vFLA}, {srd(sWS)}, s{sFLC} offen sc1"]

def snap_check(tiles):
    _pc[0] += 1
    n = _pc[0]
    lo = sum(0xF << (4*t) for t in tiles if t < 8)
    hi = 0xF if 8 in tiles else 0
    def chk():
        a(f"v_cmp_ne_u32 vcc, s{sNONCE}, v{vPOLL}")
        a(f"s_and_b32 s{sT0}, vcc_lo, 0x{lo:x}")
        if hi:
            a(f"s_and_b32 s{sT1}, vcc_hi, 0x{hi:x}")
            a(f"s_or_b32 s{sT0}, s{sT0}, s{sT1}")
    chk()
    a(f"s_cbranch_scc0 L_ok_{n}")
    a(f"s_mov_b32 s{sSPIN}, 0")
    lab(f"L_spin_{n}")
    for ins in snap_l(): a(ins)
    a(f"s_add_u32 s{sSPIN}, s{sSPIN}, 1")
    a(f"s_cmp_gt_u32 s{sSPIN}, {SPIN_MAX}")
    a(f"s_cbranch_scc1 L_ok_{n}")
    a("s_waitcnt vmcnt(0)")
    chk()
    a(f"s_cbranch_scc1 L_spin_{n}")
    lab(f"L_ok_{n}")

def h_issue(tile, hset):
    d = vHS + 16*hset
    if isinstance(tile, int):
        a(f"s_add_u32 s{sT0}, s{sHL}, {tile*2048}")
    else:
        a(f"s_lshl_b32 s{sT0}, {tile}, 11")
        a(f"s_add_u32 s{sT0}, s{sT0}, s{sHL}")
    a(f"s_add_u32 s{sT1}, s{sT0}, {9*2048}")
    a(f"buffer_load_dwordx4 {vr(d)}, v{vL16}, {srd(sWS)}, s{sT0} offen sc1")
    a(f"buffer_load_dwordx4 {vr(d+4)}, v{vL16}, {srd(sWS)}, s{sT0} offen offset:1024 sc1")
    a(f"buffer_load_dwordx4 {vr(d+8)}, v{vL16}, {srd(sWS)}, s{sT1} offen sc1")
    a(f"buffer_load_dwordx4 {vr(d+12)}, v{vL16}, {srd(sWS)}, s{sT1} offen offset:1024 sc1")

def h_issue_base(base_sgpr_expr, tile, hset):
    d = vHS + 16*hset
    a(f"s_add_u32 s{sT0}, s{sHL}, {tile*2048 + base_sgpr_expr}" if tile*2048 + base_sgpr_expr >= 0 else f"s_sub_u32 s{sT0}, s{sHL}, {-(tile*2048 + base_sgpr_expr)}")
    a(f"s_add_u32 s{sT1}, s{sT0}, {9*2048}")
    a(f"buffer_load_dwordx4 {vr(d)}, v{vL16}, {srd(sWS)}, s{sT0} offen sc1")
    a(f"buffer_load_dwordx4 {vr(d+4)}, v{vL16}, {srd(sWS)}, s{sT0} offen offset:1024 sc1")
    a(f"buffer_load_dwordx4 {vr(d+8)}, v{vL16}, {srd(sWS)}, s{sT1} offen sc1")
    a(f"buffer_load_dwordx4 {vr(d+12)}, v{vL16}, {srd(sWS)}, s{sT1} offen offset:1024 sc1")

def zero_accp_l():
    return [f"v_mov_b32 v{vACCP+r}, 0" for r in range(72)]

cm("---- path A")
sd = Side()
sd.add(0, [f"v_lshrrev_b32 v{vXOFF}, 2, v{vLANE}",
           f"v_mul_u32_u24 v{vXOFF}, 9216, v{vXOFF}",
           f"v_and_b32 v{vT+7}, 3, v{vLANE}",
           f"v_lshl_add_u32 v{vXOFF}, v{vT+7}, 4, v{vXOFF}"])
sd.add(0, w2offs3_l())
sd.add(0, [f"v_lshrrev_b32 v{vT}, 5, v{vLANE}",
           f"v_bfe_u32 v{vT+1}, v{vLANE}, 2, 2",
           f"v_lshl_add_u32 v{vT}, v{vT}, 3, v{vT+1}",
           f"v_lshlrev_b32 v{vT}, 6, v{vT}",
           f"v_bfe_u32 v{vT+1}, v{vLANE}, 4, 1",
           f"v_lshlrev_b32 v{vT+1}, 5, v{vT+1}",
           f"v_and_b32 v{vT+2}, 3, v{vLANE}",
           f"v_lshlrev_b32 v{vT+2}, 3, v{vT+2}",
           f"v_add3_u32 v{vWR}, v{vT}, v{vT+1}, v{vT+2}",
           f"v_add_u32 v{vWR}, {(13%4)*SLOT}, v{vWR}"])
block2(9, 10, dma_t1_4w(12, 288, 384), dma_t3_4w(13), sd, wmid=14, wend=18)
stamp(3)
epi(vACC1, 1, 0)
if PROF3: stamp(10)
epi(vACC1+16, 1, 1)
if PROF3: stamp(11)
a("s_waitcnt vmcnt(13)")
stamp(4)
a("s_barrier")
if PROF3: stamp(12)
epi(vACC2, 2, 4)
if PROF3: stamp(13)
a("s_waitcnt vmcnt(4)")
flags(0, 2)
stamp(5)
a("s_barrier")
stamp(6)
def b3_reads(ks):
    d = vAF + (ks % 6)*4
    return [f"ds_read_b64_tr_b16 v[{d+2*e4}:{d+2*e4+1}], v{vWR} offset:{(16*ks + 4*e4)*64}" for e4 in range(2)]
for k in range(4):
    for ins in b3_reads(k): a(ins)
for ins in p2_misc_l(): a(ins)
for ins in poll0_l(): a(ins)
dq = dma_p2_4w(16, vXR)
sd = Side()
for ks in range(36):
    nxt = ks + 4
    if ks == 22:
        a("s_waitcnt vmcnt(9)")
        flags(4, 2)
    if ks == 31:
        a("s_barrier")
    pend = b3_reads(nxt) if nxt < 36 else []
    nout = 2*min(3, 35 - ks)
    a(f"s_waitcnt lgkmcnt({nout})")
    af = vAF + (ks % 6)*4
    a(f"v_mfma_f32_32x32x16_bf16 {vr(vACC1,16)}, {vr(af)}, {vr(vX+4*ks)}, {vr(vACC1,16) if ks else 0}")
    for ins in pend: a(ins)
    if ks % 2 == 1 and dq:
        for ins in dq.pop(0): a(ins)
    else:
        sd.emit(ks, 4)
sd.flush()
stamp(7)
a(f"s_mov_b32 s{sPEND}, 8")
a(f"s_mov_b32 s{sPEND2}, 1")
snap_check([2, 3])
epi(vACC1, 1, 8, side=[snap_l()] + h_groups(0, TORDER[1], 1), per=2)
a("s_barrier")
a("s_waitcnt vmcnt(6)")
snap_check([0, 1])
h_issue(TORDER[2], 2)
for ins in snap_l(): a(ins)
a("s_branch L_p2")

lab("L_pathB")
cm("---- path B")
a("s_nop 7")
epi(vACC1, 2, 2)
a("s_waitcnt vmcnt(8)")
stamp(3)
a("s_barrier")
for ins in w2offs3_l(): a(ins)
for ins in p2_misc_l(): a(ins)
a("s_waitcnt vmcnt(0)")
flags(2, 2)
pf_emit("b10")
stamp(4)
a("s_barrier")
stamp(5)
sd = Side()
block2(11, 12, dma_p2_4w(14, vXR), dma_p2_4w(15, vXR), sd, at={15: poll0_l()})
stamp(6)
a(f"s_mov_b32 s{sPEND}, 6")
a(f"s_mov_b32 s{sPEND2}, 2")
a("s_waitcnt vmcnt(9)")
if PROF3: stamp(10)
snap_check([2, 3])
if PROF3: stamp(11)
sideB = h_groups(-18*2048, TORDER[0], 2) + h_groups(0, TORDER[0], 0) + [snap_l()] + h_groups(0, TORDER[1], 1)
orderB = []
_L0 = len(L)
epi(vACC2, 2, 6, side=sideB, per=2)
for ln in L[_L0:]:
    if "buffer_store" in ln: orderB.append("st")
    elif "buffer_load_dword " in ln: orderB.append("snap")
    elif "buffer_load_dwordx4" in ln:
        r = int(ln.split("v[")[1].split(":")[0])
        orderB.append({2: "h0x", 0: "h0", 1: "h1"}[(r - vHS)//16])
stamp(7)
a("s_barrier")

def p2_reads(idx, addr, slot_off):
    st, jn = idx // 9, idx % 9
    d = vAF2 + (idx % 6)*4
    return [f"ds_read_b64_tr_b16 v[{d+2*e4}:{d+2*e4+1}], v{addr} offset:{slot_off + st*9216 + e4*8*288 + jn*32}" for e4 in range(2)]

class VM:
    def __init__(self, init): self.q = list(init)
    def issue(self, name): self.q.append(name)
    def wait(self, names):
        idx = [i for i, n in enumerate(self.q) if n in names]
        if not idx: return
        n = len(self.q) - 1 - max(idx)
        a(f"s_waitcnt vmcnt({n})")
        self.q = self.q[max(idx)+1:]

sWD = 94
def p2_unrolled(G, vm):
    tg = "AB"[G]
    voff = vXR + G
    a(f"v_mov_b32 v{vW2C}, v{vW2R}")
    a(f"v_add_u32 v{vW2N}, {2*SLOT}, v{vW2R}")
    a(f"s_lshl_b32 s{sT6}, s{sWV}, 10")
    a(f"s_add_u32 s95, s{sHL}, {9*2048}")
    if G == 0:
        a(f"s_mul_i32 s{sWD}, s{sWV}, 9216")
        a(f"s_mul_i32 s96, s{sWV}, {288*1152}")
        a(f"s_add_u32 s96, s96, s{sW2B}")
        a(f"s_and_b32 s97, s{sWV}, 1")
    vW2X = vP2T + 7
    if G == 1:
        a(f"v_add_u32 v{vW2X}, {(14%4)*SLOT - 2*9216}, v{vW2R}")
    segs = ([(0, "x", 2, "h0x")] if G == 1 else []) + [(s_, "o", s_ % 3, f"h{s_}") for s_ in range(0 if G == 1 else 1, 9)]
    def rd(si, idx):
        stage, kind, _, _ = segs[si]
        if kind == "x": return p2_reads(idx, vW2X, 0)
        sl = (14 + stage) % 4
        return p2_reads(idx, vW2C if sl < 2 else vW2N, (sl % 2)*SLOT)
    for i in range(4):
        for ins in rd(0, i): a(ins)
    for si, (s_, kind, hset, hname) in enumerate(segs):
        ev = {}
        def add(pos, blk): ev.setdefault(pos, []).append(blk)
        p0 = 0 if G == 0 else 9
        if kind == "o":
            if s_ + 2 <= 8:
                t2 = TORDER[s_+2]
                chk = {0: [0, 1], 2: [4, 5], 4: [6, 7], 6: [8]}.get(s_)
                if chk:
                    add(p0, [("WAIT", ["snap"]), ("CHK", chk)])
                if s_ == 0:
                    add(p0, snap_l() + [("ISS", "snap")])
                if G == 0 and s_ in (2, 4):
                    add(12, snap_l() + [("ISS", "snap")])
                if G == 1 and s_ in (3, 5):
                    add(0, snap_l() + [("ISS", "snap")])
                if (G == 1 and s_ == 1) or (G == 0 and s_ == 2):
                    add(0, [("WAIT", ["st"]), ("FLAGS",)])
                d = vHS + 16*((s_ + 2) % 3)
                for k in range(4):
                    blk = []
                    if k % 2 == 0:
                        blk.append(f"s_add_u32 s{sT1}, {'s95' if k >= 2 else f's{sHL}'}, {t2*2048}")
                    blk += [f"buffer_load_dwordx4 {vr(d+4*k)}, v{vL16}, {srd(sWS)}, s{sT1} offen offset:{1024*(k%2)} sc1", ("ISS", f"h{s_+2}")]
                    if not NOH: add(p0 + 1 + k, blk)
            T = 16 + G + s_
            if ((G == 0 and 1 <= s_ <= 6) or (G == 1 and s_ <= 5)) and not NODMA:
                tile = TORDER[T - 14]
                slot = (T % 4)*SLOT
                dpos = 5 if G == 0 else 14
                for aa in range(4):
                    add(dpos + aa, [f"s_add_u32 m0, s{sT6}, {slot + aa*9216}",
                                    f"s_add_u32 s{sT0}, s{sW2B}, {(288*aa + fo_rows(tile, aa & 1))*1152}",
                                    f"buffer_load_dwordx4 v{voff}, {srd(sW2)}, s{sT0} offen lds", ("ISS", f"d{T}")])
                if G == 0:
                    r0, r1 = fo_rows(tile, 0), fo_rows(tile, 1)
                    add(dpos + 4, [f"s_add_u32 m0, s{sWD}, {slot + 8192}",
                                   f"s_mul_i32 s{sT0}, s97, {(r1 - r0)*1152}",
                                   f"s_add_u32 s{sT0}, s{sT0}, s96",
                                   f"s_add_u32 s{sT0}, s{sT0}, {r0*1152}",
                                   f"buffer_load_dwordx4 v{vXR+2}, {srd(sW2)}, s{sT0} offen lds", ("ISS", f"d{T}")])
        if PROF2 and kind == "o": stamp(1 + s_, 2)
        vm.wait([hname])
        last = (si == len(segs) - 1)
        for idx in range(18):
            st, jn = idx // 9, idx % 9
            if idx == 14 and kind == "o" and s_ < 8:
                vm.wait([f"d{15+s_}"])
                if not NOBAR: a("s_barrier")
            nout = 6 if not (last and idx >= 15) else 2*(17 - idx)
            a(f"s_waitcnt lgkmcnt({nout})")
            af = vAF2 + (idx % 6)*4
            nx = idx + 4
            r_ = rd(si, nx) if nx < 18 else (rd(si+1, nx - 18) if not last else [None, None])
            for mh in range(2):
                acc = vACCP + (jn*2 + mh)*4
                hf = vHS + 16*hset + st*8 + mh*4
                a(f"v_mfma_f32_16x16x32_bf16 {vr(acc)}, {vr(af)}, {vr(hf)}, {vr(acc) if not (si == 0 and st == 0) else 0}")
                if r_[mh] and not NORD: a(r_[mh])
            for blk in ev.get(idx, []):
                for ins in blk:
                    if isinstance(ins, tuple):
                        if ins[0] == "CHK": snap_check(ins[1])
                        elif ins[0] == "WAIT": vm.wait(ins[1])
                        elif ins[0] == "ISS": vm.issue(ins[1])
                        elif ins[0] == "FLAGS":
                            flags(8 if G == 0 else 6, 1 if G == 0 else 2, tmp=vP2T)
                            vm.issue("fl")
                            if not NORETOUCH: vm.issue("fl")
                    else: a(ins)

stamp(8)
p2_unrolled(1, VM(["d15"]*9 + orderB))
a("s_branch L_p2_done")
lab("L_p2")
stamp(8)
p2_unrolled(0, VM(["h1"]*3 + ["st", "h1", "st"] + ["h2"]*4 + ["snap"]))
lab("L_p2_done")
a("s_barrier")
stamp(9)

a("s_waitcnt lgkmcnt(0)")
a(f"v_and_b32 v{vFLA}, 12, v{vFLA}")
a(f"s_lshl_b32 s{sT0}, s{sW}, 13")
a(f"s_mul_i32 s{sT1}, s{sW}, 10240")
a(f"s_add_u32 s{sT1}, s{sT1}, 32768")
a(f"v_add_u32 v{vP2T}, s{sT0}, v{vL16}")
a(f"v_add_u32 v{vP2T+1}, s{sT1}, v{vL16}")
a(f"s_lshl_b32 s{sT2}, s{sMT}, 2")
a(f"s_add_u32 s{sT2}, s{sT2}, s{sNB}")
a(f"s_lshl_b32 s{sT2}, s{sT2}, 2")
a(f"s_add_u32 s{sT2}, s{sT2}, s{sW}")
a(f"s_lshl_b32 s{sT3}, s{sT2}, 1")
a(f"s_add_u32 s{sT3}, s{sT3}, s{sGRP}")
a(f"s_lshl_b32 s{sT3}, s{sT3}, 4")
a(f"s_add_u32 s{sFLC}, s{sT3}, {WS_FLAG_RS}")
a(f"s_mul_i32 s{sT2}, s{sT2}, {4*18*1024}")
a(f"s_add_u32 s{sHL}, s{sT2}, {WS_RS}")
a(f"s_cmp_lg_u32 s{sGRP}, 0")
a("s_cbranch_scc1 L_rsB")

def rs_path(tag, send, keep, send_addr, recv_addr, tslot0):
    for i, t in enumerate(send):
        a(f"ds_write_b128 v{send_addr}, {vr(vACCP+4*t)} offset:{i*1024}")
    a("s_waitcnt lgkmcnt(0)")
    a("s_barrier")
    for i, t in enumerate(keep):
        a(f"ds_read_b128 {vr(72+4*i)}, v{recv_addr} offset:{i*1024}")
    for i, t in enumerate(keep):
        a(f"s_waitcnt lgkmcnt({len(keep)-1-i})")
        for r in range(4):
            a(f"v_add_f32 v{vACCP+4*t+r}, v{vACCP+4*t+r}, v{72+4*i+r}")
    a(f"s_cmp_eq_u32 s{sW}, s{sG}")
    a(f"s_cbranch_scc1 L_rs_own_{tag}")
    a(f"s_mul_i32 s{sT0}, s{sG}, {18*1024}")
    a(f"s_add_u32 s{sT0}, s{sT0}, s{sHL}")
    for i, t in enumerate(keep):
        o = (tslot0 + i)*1024
        if i % 4 == 0:
            a(f"s_add_u32 s{sT1}, s{sT0}, {o}")
        a(f"buffer_store_dwordx4 {vr(vACCP+4*t)}, v{vL16}, {srd(sWS)}, s{sT1} offen offset:{(i%4)*1024} sc1")
    a(f"v_mov_b32 v{vP2T+2}, s{sNONCE}")
    a(f"s_lshl_b32 s{sT0}, s{sG}, 2")
    a(f"v_mov_b32 v{vP2T+3}, s{sT0}")
    a(f"v_cmp_eq_u32 vcc, 0, v{vLANE}")
    a("s_waitcnt vmcnt(0)")
    a(f"s_and_saveexec_b64 s[{sEX}:{sEX+1}], vcc")
    a(f"buffer_store_dword v{vP2T+2}, v{vP2T+3}, {srd(sWS)}, s{sFLC} offen sc1")
    a("s_branch L_end")
    lab(f"L_rs_own_{tag}")
    a(f"s_mov_b32 s{sSPIN}, 0")
    lab(f"L_rs_spin_{tag}")
    a(f"buffer_load_dword v{vPOLL}, v{vFLA}, {srd(sWS)}, s{sFLC} offen sc1")
    a(f"s_add_u32 s{sSPIN}, s{sSPIN}, 1")
    a(f"s_cmp_gt_u32 s{sSPIN}, {SPIN_MAX}")
    a(f"s_cbranch_scc1 L_rs_spin_out_{tag}")
    a(f"s_lshl_b32 s{sT0}, s{sG}, 2")
    a("s_waitcnt vmcnt(0)")
    a(f"v_cmp_ne_u32 vcc, s{sNONCE}, v{vPOLL}")
    a(f"v_cmp_ne_u32 s[{sT2}:{sT2+1}], s{sT0}, v{vFLA}")
    a(f"s_and_b64 vcc, vcc, s[{sT2}:{sT2+1}]")
    a("s_cmp_eq_u64 vcc, 0")
    a(f"s_cbranch_scc0 L_rs_spin_{tag}")
    lab(f"L_rs_spin_out_{tag}")
    n = len(keep)
    base = 144
    regs = list(range(176, 232, 4)) + list(range(72, 160, 4))
    k = 0
    for p in range(1, 4):
        a(f"s_add_u32 s{sT0}, s{sG}, {p}")
        a(f"s_and_b32 s{sT0}, s{sT0}, 3")
        a(f"s_mul_i32 s{sT0}, s{sT0}, {18*1024}")
        a(f"s_add_u32 s{sT0}, s{sT0}, s{sHL}")
        for i, t in enumerate(keep):
            o = (tslot0 + i)*1024
            if i % 4 == 0:
                a(f"s_add_u32 s{sT1}, s{sT0}, {o}")
            a(f"buffer_load_dwordx4 {vr(regs[k])}, v{vL16}, {srd(sWS)}, s{sT1} offen offset:{(i%4)*1024} sc1")
            k += 1
    a(f"v_and_b32 v{vP2T+2}, 15, v{vLANE}")
    a(f"v_mul_u32_u24 v{vP2T+2}, 1152, v{vP2T+2}")
    a(f"v_lshrrev_b32 v{vP2T+3}, 4, v{vLANE}")
    a(f"v_lshl_add_u32 v{vP2T+2}, v{vP2T+3}, 3, v{vP2T+2}")
    a(f"s_mul_i32 s{sT2}, s{sW}, {32*1152}")
    a(f"s_add_u32 s{sT2}, s{sT2}, s{sXB}")
    a(f"s_mul_i32 s{sT3}, s{sNB}, 288")
    a(f"s_add_u32 s{sT2}, s{sT2}, s{sT3}")
    a(f"s_add_u32 s{sT3}, s{sT2}, {16*1152}")
    k = 0
    tot = 3*n
    for p in range(3):
        for i, t in enumerate(keep):
            a(f"s_waitcnt vmcnt({tot-1-k})")
            for r in range(4):
                a(f"v_add_f32 v{vACCP+4*t+r}, v{vACCP+4*t+r}, v{regs[k]+r}")
            k += 1
    for i, t in enumerate(keep):
        jn, mh = t // 2, t % 2
        d = vP2T + 4 + 2*(i % 2)
        a(f"v_cvt_pk_bf16_f32 v{d}, v{vACCP+4*t}, v{vACCP+4*t+1}")
        a(f"v_cvt_pk_bf16_f32 v{d+1}, v{vACCP+4*t+2}, v{vACCP+4*t+3}")
        a(f"buffer_store_dwordx2 v[{d}:{d+1}], v{vP2T+2}, {srd(sOUT)}, s{sT3 if mh else sT2} offen offset:{jn*32}")
    a("s_branch L_end")

rs_path("A", list(range(10, 18)), list(range(0, 10)), vP2T, vP2T+1, 0)
lab("L_rsB")
rs_path("B", list(range(0, 10)), list(range(10, 18)), vP2T+1, vP2T, 10)

lab("L_end")
if PROF:
    stamp(15)
    a("s_memrealtime s[96:97]")
    a("s_mov_b64 exec, -1")
    a("s_cmp_ge_u32 s2, 256")
    a("s_cbranch_scc1 L_end2")
    a("s_waitcnt lgkmcnt(0)")
    for i in range(1, 16):
        a(f"s_sub_u32 s{64+2*(i-1)}, s{64+2*(i-1)}, s100")
    a(f"v_mov_b32 v0, 0")
    for i in range(1, 16):
        a(f"v_writelane_b32 v0, s{64+2*(i-1)}, {i}")
    a("s_sub_u32 s96, s96, s98")
    a("v_writelane_b32 v0, s96, 14")
    a(f"s_lshl_b32 s{sT0}, s2, 3")
    a(f"s_add_u32 s{sT0}, s{sT0}, s{sWV}")
    a(f"s_lshl_b32 s{sT0}, s{sT0}, 6")
    a(f"s_add_u32 s{sT0}, s{sT0}, {WS_PROF}")
    a(f"v_lshlrev_b32 v1, 2, v{vLANE}")
    a(f"v_cmp_gt_u32 vcc, 16, v{vLANE}")
    a(f"s_and_saveexec_b64 s[{sEX}:{sEX+1}], vcc")
    a(f"buffer_store_dword v0, v1, {srd(sWS)}, s{sT0} offen")
    if PROFDBG:
        a(f"s_cmp_lg_u32 s{sT0}, {WS_PROF}")
        a("s_cbranch_scc1 L_end2")
        a(f"buffer_store_dword v0, v1, {srd(sDBG)}, 0 offen")
    lab("L_end2")
a("s_endpgm")

hdr = [
 f"; @launch grid=(256,1,1) block=(512,1,1) lds={LDS_SIZE}",
 '.amdgcn_target "amdgcn-amd-amdhsa--gfx950"',
 ".text",
 f".globl {KNAME}",
 ".p2align 8",
 f".type {KNAME},@function",
]
ftr = [
 '.section .rodata,"a"',
 ".p2align 6",
 f".amdhsa_kernel {KNAME}",
 "  .amdhsa_next_free_vgpr 256",
 "  .amdhsa_next_free_sgpr 102",
 "  .amdhsa_accum_offset 256",
 "  .amdhsa_group_segment_fixed_size 0",
 "  .amdhsa_kernarg_size 48",
 "  .amdhsa_user_sgpr_count 2",
 "  .amdhsa_user_sgpr_kernarg_segment_ptr 1",
 "  .amdhsa_system_sgpr_workgroup_id_x 1",
 ".end_amdhsa_kernel",
]
print("\n".join(hdr + L + ftr))
```

```python
import sys

PROF = "--prof" in sys.argv or "--prof0" in sys.argv or "--prof2" in sys.argv or "--prof3" in sys.argv or "--prof4" in sys.argv or "--prof5" in sys.argv
PROF2 = "--prof2" in sys.argv
PROF3 = "--prof3" in sys.argv
PROF4 = "--prof4" in sys.argv
PROF5 = "--prof5" in sys.argv
PROF0 = "--prof0" in sys.argv
PROFDBG = "--dbgout" in sys.argv
NOH = "--noh" in sys.argv
NODMA = "--nodma" in sys.argv
NORD = "--nord" in sys.argv
NOPF = "--nopf" in sys.argv
NOBAR = "--nobar" in sys.argv
PLAINH = "--plainh" in sys.argv
NORETOUCH = "--noretouch" in sys.argv
WS_PROF = 96 << 20

KNAME = "standalone__dense_activation_silu__prompt_kernel"
L = []
CUR = {"vm": None}
def a(s):
    if ";@" in s:
        s, tag = s.split(";@")
        s = s.rstrip()
        if CUR["vm"] is not None and tag != "skip": CUR["vm"].issue(tag)
    L.append(s if s.endswith(":") else "    " + s)

class VM:
    def __init__(self, init): self.q = list(init)
    def issue(self, name): self.q.append(name)
    def need(self, names):
        idx = [i for i, n in enumerate(self.q) if n in names]
        if not idx: return None
        n = len(self.q) - 1 - max(idx)
        self.q = self.q[max(idx)+1:]
        return n
    def wait(self, names, extra=""):
        n = self.need(names)
        if n is None:
            if extra: a(f"s_waitcnt {extra}")
            return
        a(f"s_waitcnt vmcnt({n}) {extra}".rstrip())
def vwait(names, extra=""): CUR["vm"].wait(names, extra)
def lab(s): L.append(s + ":")
def cm(s): L.append("    ; " + s)
def stamp(i, p0=False):
    if PROF0 and not p0 and i not in (0, 15): return
    if PROF2 and p0 != 2 and i not in (0, 15): return
    if PROF:
        r = 100 if i == 0 else 64 + 2*(i-1)
        L.append(f"    s_memtime s[{r}:{r+1}]")

SLOT = 36864
LDS_NONCE = 4 * SLOT
LDS_SIZE = 4 * SLOT + 64
WS_RS = 32 << 20
WS_FLAG_H = 64 << 20
WS_FLAG_RS = (64 << 20) + (1 << 20)
LOG2E_NEG = 0xbfb8aa3b

sX, sW1, sW2, sOUT, sWS, sDBG = 4, 8, 12, 16, 20, 24
sMT, sG, sNB, sJ, sWV, sW, sGRP, sNONCE = 28, 29, 30, 31, 32, 33, 34, 35
sF0B = 36
sXB = 37
sT0, sT1, sT2, sT3, sT4, sT5 = 38, 39, 40, 41, 42, 43
sSLOTN = 44
sSLOTD = 45
sHB = 46
sFLH = 47
sFS = 50
sLOG = 51
sST = 52
sHL = 53
sW2B = 54
sPEND = 55
sPEND2 = 56
sNT = 57
sEX = 58
sFLC = 60
sT6, sT7 = 62, 63
sSPIN = 61
SPIN_MAX = 200000

def srd(r): return f"s[{r}:{r+3}]"

vX = 0
vACC1 = 144
vACC2 = 176
vAF = 208
vXR = 232
vWR = 236
vW1R = 238
vXOFF = 240
vW0OFF = 241
vW1OFF = 242
vLANE = 243
vHST = 244
vCUR = 245
vT = 248
vACCP = 0
vAF2 = 72
vHS = 96
vW2R = 160
vW2C = 161
vW2N = 162
vPOLL = 163
vFLA = 164
vL16 = 165
vP2T = 168
sS0, sS1 = 48, 49
sPK1 = 94
sPK2 = 96

def vr(b, n=4): return f"v[{b}:{b+n-1}]"

lab(KNAME)
a("s_cmp_ge_u32 s2, 256")
a("s_cbranch_scc1 L_end")
stamp(0)
a("s_load_dwordx4 s[80:83], s[0:1], 0")
a("s_load_dwordx4 s[84:87], s[0:1], 16")
a("s_load_dwordx4 s[88:91], s[0:1], 32")
a("s_memrealtime s[92:93]")
if PROF: a("s_memrealtime s[98:99]")
a(f"v_and_b32 v{vLANE}, 63, v0")
a(f"v_lshrrev_b32 v{vT}, 6, v0")
a("s_nop 0")
a(f"v_readfirstlane_b32 s{sWV}, v{vT}")
a(f"s_and_b32 s{sT0}, s2, 7")
a(f"s_lshr_b32 s{sT1}, s2, 3")
a(f"s_lshr_b32 s{sG}, s{sT0}, 1")
a(f"s_and_b32 s{sT2}, s{sT0}, 1")
a(f"s_lshl_b32 s{sT2}, s{sT2}, 3")
a(f"s_lshr_b32 s{sT3}, s{sT1}, 2")
a(f"s_add_u32 s{sMT}, s{sT2}, s{sT3}")
a(f"s_and_b32 s{sNB}, s{sT1}, 3")
a(f"s_lshl_b32 s{sJ}, s{sG}, 2")
a(f"s_add_u32 s{sJ}, s{sJ}, s{sNB}")
a(f"s_and_b32 s{sW}, s{sWV}, 3")
a(f"s_lshr_b32 s{sGRP}, s{sWV}, 2")
a(f"s_mul_i32 s{sT0}, s{sJ}, 576")
a(f"s_and_b32 s{sT1}, s{sJ}, 1")
a(f"s_lshl_b32 s{sT2}, s{sT1}, 6")
a(f"s_add_u32 s{sF0B}, s{sT0}, s{sT2}")
a(f"s_xor_b32 s{sT1}, s{sT1}, 1")
a(f"s_lshl_b32 s{sT1}, s{sT1}, 9")
a(f"s_add_u32 s{sFS}, s{sT0}, s{sT1}")
a(f"s_mul_i32 s{sXB}, s{sMT}, {128*1152}")
a(f"s_mov_b32 s{sLOG}, 0x{LOG2E_NEG:08x}")

l = vLANE
t0, t1, t2, t3 = vT, vT+1, vT+2, vT+3
a(f"v_lshrrev_b32 v{t0}, 3, v{l}")
a(f"v_mul_u32_u24 v{vXOFF}, 1152, v{t0}")
a(f"v_and_b32 v{t1}, 7, v{l}")
a(f"v_lshrrev_b32 v{t2}, 4, v{l}")
a(f"v_xor_b32 v{t1}, v{t1}, v{t2}")
a(f"s_and_b32 s{sT0}, s{sWV}, 1")
a(f"s_lshl_b32 s{sT0}, s{sT0}, 2")
a(f"v_xor_b32 v{t1}, s{sT0}, v{t1}")
a(f"v_lshlrev_b32 v{t1}, 4, v{t1}")
a(f"v_add_u32 v{vXOFF}, v{vXOFF}, v{t1}")
a(f"v_lshrrev_b32 v{t0}, 4, v{l}")
a(f"v_mul_u32_u24 v{vW0OFF}, 9216, v{t0}")
a(f"v_bfe_u32 v{t1}, v{l}, 2, 2")
a(f"v_xor_b32 v{t1}, v{t1}, v{t0}")
a(f"v_lshlrev_b32 v{t1}, 6, v{t1}")
a(f"v_and_b32 v{t2}, 3, v{l}")
a(f"v_lshlrev_b32 v{t2}, 4, v{t2}")
a(f"v_add3_u32 v{vW0OFF}, v{vW0OFF}, v{t1}, v{t2}")
a(f"s_mul_i32 s{sT4}, s{sWV}, {8*1152}")
a(f"s_add_u32 s{sT4}, s{sT4}, s{sXB}")
a(f"s_mul_i32 s{sT5}, s{sWV}, {4*9216}")
a(f"s_add_u32 s{sT5}, s{sT5}, s{sF0B}")
a(f"s_lshl_b32 s{sT6}, s{sWV}, 10")
a("s_waitcnt lgkmcnt(0)")
for (r, src, nbytes) in ((sX, 80, 2048*576*2), (sW1, 82, 576*4608*2), (sW2, 84, 4608*576*2), (sOUT, 86, 2048*576*2), (sDBG, 88, 256), (sWS, 90, 256 << 20)):
    a(f"s_mov_b32 s{r}, s{src}")
    a(f"s_mov_b32 s{r+1}, s{src+1}")
    a(f"s_mov_b32 s{r+2}, {nbytes}")
    a(f"s_mov_b32 s{r+3}, 0x20000")

def dma_p0_list(t):
    slot = (t % 4) * SLOT
    G = []
    for k in range(2):
        G.append([f"s_add_u32 m0, s{sT6}, {slot + 8192*k}",
                  f"s_add_u32 s{sT1}, s{sT4}, {128*t + 64*1152*k}",
                  f"buffer_load_dwordx4 v{vXOFF}, {srd(sX)}, s{sT1} offen lds"])
        G.append([f"s_add_u32 m0, s{sT6}, {slot + 16384 + 8192*k}",
                  f"s_add_u32 s{sT1}, s{sT5}, {(64*t + 32*k)*9216}",
                  f"buffer_load_dwordx4 v{vW0OFF}, {srd(sW1)}, s{sT1} offen lds"])
    return G

def dma_t1_8w(stage, dr0, fcoff):
    slot = (stage % 4) * SLOT
    G = [[f"s_mul_i32 s{sT2}, s{sWV}, {8*9216}", f"s_add_u32 s{sT2}, s{sT2}, s{sF0B}"]]
    for k in range(4):
        G.append([f"s_add_u32 m0, s{sT6}, {slot + 8192*k}",
                  f"s_add_u32 s{sT1}, s{sT2}, {(dr0 + 64*k)*9216 + fcoff}",
                  f"buffer_load_dwordx4 v{vW1OFF}, {srd(sW1)}, s{sT1} offen lds"])
    G.append([f"s_cmp_ge_u32 s{sWV}, 4",
              f"s_cbranch_scc1 L_t18_{stage}",
              f"s_add_u32 m0, s{sT6}, {slot + 8192*4}",
              f"s_add_u32 s{sT1}, s{sT2}, {(dr0 + 64*4)*9216 + fcoff}",
              f"buffer_load_dwordx4 v{vW1OFF}, {srd(sW1)}, s{sT1} offen lds",
              f"L_t18_{stage}:"])
    return G

_gid = [0]
def emit_groups_A(G):
    _gid[0] += 1
    a(f"s_cmp_lg_u32 s{sGRP}, 0")
    a(f"s_cbranch_scc1 L_gskip_{_gid[0]}")
    emit_groups(G)
    lab(f"L_gskip_{_gid[0]}")

vPFX, vPFA, vPFB, vPFC = 176, 177, 178, 179
sPFX, sPFW1, sPFW2 = 94, 95, 96
def PFx(k): return (sX, vPFX, sPFX, k*256)
def PFa(k): return (sW1, vPFA, sPFW1, k*256*9216)
def PFb(k): return (sW1, vPFB, sPFW1, k*128*9216)
def PFc(k): return (sW2, vPFC, sPFW2, k*2048*128)
PF_SCHED = {
  2: [PFb(0)], 3: [PFb(1)], 4: [PFb(2)], 5: [PFb(3)], 6: [PFb(4)], 7: [PFc(0)], 8: [PFc(1)],
  "b10": [PFc(2), PFc(3), PFc(4), PFc(5)],
}
if "--pf2" in sys.argv:
  PF_SCHED = {
  0: [PFx(2), PFa(1)], 1: [PFx(3)], 2: [PFx(4), PFa(2)], 3: [PFb(0)], 4: [PFb(1), PFb(2)], 5: [PFb(3)], 6: [PFb(4)], 7: [PFc(0)], 8: [PFc(1)],
  "b10": [PFc(2), PFc(3), PFc(4), PFc(5)],
  }
if "--pf4" in sys.argv:
  PF_SCHED = { 4: [PFc(0)], 5: [PFc(1)], 6: [PFc(2)], 7: [PFc(3)], 8: [PFc(4)], "b10": [PFc(5)] }
if "--pf5" in sys.argv:
  PF_SCHED = { 1: [PFb(0)], 2: [PFb(1)], 3: [PFb(2)], 4: [PFb(3), PFc(0)], 5: [PFb(4), PFc(1)], 6: [PFc(2)], 7: [PFc(3)], 8: [PFc(4)], "b10": [PFc(5)] }
if "--pf3" in sys.argv:
  PF_SCHED = {
  "start": [PFx(2), PFa(1)], 0: [PFx(3)], 1: [PFx(4), PFa(2)], 2: [PFb(0)], 3: [PFb(1)], 4: [PFb(2)], 5: [PFb(3)], 6: [PFb(4)], 7: [PFc(0)], 8: [PFc(1)],
  "b10": [PFc(2), PFc(3), PFc(4), PFc(5)],
  }
_pfn = [0]
def pf_emit(key, guard_grp=False):
    items = PF_SCHED.get(key, []) if not NOPF else []
    for (sr, vo, sb, off) in items:
        wv = 4 + (_pfn[0] % 4)
        _pfn[0] += 1
        a(f"s_cmp_lg_u32 s{sWV}, {wv}")
        a(f"s_cbranch_scc1 L_pfs_{_pfn[0]}")
        a(f"s_add_u32 s{sS0}, s{sb}, {off}")
        a(f"buffer_load_dword v247, v{vo}, {srd(sr)}, s{sS0} offen")
        lab(f"L_pfs_{_pfn[0]}")

def emit_groups(G):
    for g in G:
        for ins in g: a(ins)

a(f"s_lshl_b32 s{sT0}, s{sMT}, 2")
if PROFDBG: a(f"s_add_u32 s{sT0}, s{sT0}, 64")
a(f"v_mov_b32 v{vT+6}, s{sT0}")
a(f"s_lshl_b32 s{sT1}, s{sJ}, 3")
a(f"s_add_u32 s{sT1}, s{sT1}, s{sWV}")
a(f"s_cmp_lg_u32 s{sT1}, 4")
a("s_cbranch_scc1 L_no_nonce")
a(f"s_or_b32 s{sNT}, s92, 1")
a(f"v_mov_b32 v{vT+4}, s{sNT}")
a(f"buffer_store_dword v{vT+4}, v{vT+6}, {srd(sDBG)}, 0 offen sc1")
lab("L_no_nonce")
emit_groups(dma_p0_list(0))
a("s_barrier")
emit_groups(dma_p0_list(1))
emit_groups(dma_p0_list(2))
a(f"s_lshr_b32 s{sT0}, s2, 3")
a(f"s_lshl_b32 s{sT0}, s{sT0}, 6")
a(f"v_add_u32 v{vT}, s{sT0}, v{l}")
a(f"v_and_b32 v{vPFX}, 1023, v{vT}")
a(f"v_mul_u32_u24 v{vPFX}, 1152, v{vPFX}")
a(f"v_lshrrev_b32 v{vT+2}, 10, v{vT}")
a(f"v_lshl_add_u32 v{vPFX}, v{vT+2}, 7, v{vPFX}")
a(f"s_lshr_b32 s{sPFX}, s{sMT}, 3")
a(f"s_mul_i32 s{sPFX}, s{sPFX}, {1024*1152}")
a(f"v_lshrrev_b32 v{vPFA}, 3, v{vT}")
a(f"v_mul_u32_u24 v{vPFA}, 9216, v{vPFA}")
a(f"v_and_b32 v{vT+3}, 3, v{vT}")
a(f"v_bfe_u32 v{vT+7}, v{vT}, 1, 1")
a(f"v_mul_u32_u24 v{vT+7}, 3, v{vT+7}")
a(f"v_add_u32 v{vT+3}, v{vT+3}, v{vT+7}")
a(f"v_bfe_u32 v{vT+7}, v{vT}, 2, 1")
a(f"v_mul_u32_u24 v{vT+7}, 9, v{vT+7}")
a(f"v_add_u32 v{vT+3}, v{vT+3}, v{vT+7}")
a(f"v_lshl_add_u32 v{vPFA}, v{vT+3}, 7, v{vPFA}")
a(f"s_mul_i32 s{sPFW1}, s{sG}, 2304")
a(f"v_lshrrev_b32 v{vPFB}, 4, v{vT}")
a(f"v_mul_u32_u24 v{vPFB}, 9216, v{vPFB}")
a(f"v_and_b32 v{vT+7}, 7, v{vT}")
a(f"v_min_u32 v{vT+7}, 4, v{vT+7}")
a(f"v_cmp_le_u32 vcc, 3, v{vT+7}")
a(f"v_add_u32 v{vT+7}, 2, v{vT+7}")
a("s_nop 1")
a(f"v_cndmask_b32 v{vT+3}, 0, 2, vcc")
a(f"v_add_u32 v{vT+7}, v{vT+7}, v{vT+3}")
a(f"v_bfe_u32 v{vT+3}, v{vT}, 3, 1")
a(f"v_mul_u32_u24 v{vT+3}, 9, v{vT+3}")
a(f"v_add_u32 v{vT+7}, v{vT+7}, v{vT+3}")
a(f"v_lshl_add_u32 v{vPFB}, v{vT+7}, 7, v{vPFB}")
a(f"v_lshlrev_b32 v{vPFC}, 7, v{vT}")
a(f"s_mul_i32 s{sPFW2}, s{sG}, {1152*1152}")
pf_emit("start")


a(f"v_lshrrev_b32 v{t0}, 3, v{l}")
a(f"v_mul_u32_u24 v{vW1OFF}, 9216, v{t0}")
a(f"v_bfe_u32 v{t1}, v{l}, 2, 1")
a(f"v_bfe_u32 v{t2}, v{l}, 4, 1")
a(f"v_xor_b32 v{t1}, v{t1}, v{t2}")
a(f"v_lshlrev_b32 v{t1}, 6, v{t1}")
a(f"v_and_b32 v{t2}, 3, v{l}")
a(f"v_lshlrev_b32 v{t2}, 4, v{t2}")
a(f"v_add3_u32 v{vW1OFF}, v{vW1OFF}, v{t1}, v{t2}")

a(f"v_and_b32 v{t0}, 31, v{l}")
a(f"s_lshl_b32 s{sT0}, s{sW}, 12")
a(f"v_lshlrev_b32 v{t1}, 7, v{t0}")
a(f"v_add_u32 v{t1}, s{sT0}, v{t1}")
a(f"v_bfe_u32 v{t2}, v{l}, 1, 3")
a(f"v_lshrrev_b32 v{t3}, 5, v{l}")
a(f"v_xor_b32 v{t2}, v{t2}, v{t3}")
a(f"v_lshlrev_b32 v{t2}, 4, v{t2}")
a(f"v_add_u32 v{vXR}, v{t1}, v{t2}")
a(f"v_xor_b32 v{vXR+1}, 32, v{vXR}")
a(f"v_xor_b32 v{vXR+2}, 64, v{vXR}")
a(f"v_xor_b32 v{vXR+3}, 0x60, v{vXR}")
a(f"v_lshrrev_b32 v{t0}, 5, v{l}")
a(f"v_bfe_u32 v{t1}, v{l}, 2, 2")
a(f"v_lshl_add_u32 v{t0}, v{t0}, 3, v{t1}")
a(f"v_lshlrev_b32 v{t0}, 8, v{t0}")
a(f"v_bfe_u32 v{t2}, v{l}, 4, 1")
a(f"v_lshlrev_b32 v{t2}, 5, v{t2}")
a(f"v_and_b32 v{t3}, 3, v{l}")
a(f"v_lshlrev_b32 v{t3}, 3, v{t3}")
a(f"v_add3_u32 v{t0}, v{t0}, v{t2}, v{t3}")
a(f"v_add_u32 v{t0}, 16384, v{t0}")
a(f"s_lshl_b32 s{sT0}, s{sGRP}, 1")
a(f"v_xor_b32 v{t2}, s{sT0}, v{t1}")
a(f"v_lshl_add_u32 v{vWR}, v{t2}, 6, v{t0}")
a(f"v_xor_b32 v{vWR+1}, 64, v{vWR}")
a(f"v_lshrrev_b32 v{t0}, 5, v{l}")
a(f"v_lshl_add_u32 v{t0}, v{t0}, 3, v{t1}")
a(f"v_lshlrev_b32 v{t0}, 7, v{t0}")
a(f"v_bfe_u32 v{t2}, v{l}, 4, 1")
a(f"v_lshlrev_b32 v{t2}, 5, v{t2}")
a(f"v_add3_u32 v{t0}, v{t0}, v{t2}, v{t3}")
a(f"v_bfe_u32 v{t2}, v{l}, 3, 1")
a(f"v_lshl_add_u32 v{vW1R}, v{t2}, 6, v{t0}")
a(f"v_xor_b32 v{vW1R+1}, 64, v{vW1R}")
a(f"v_bfe_u32 v{t0}, v{l}, 4, 1")
a(f"v_lshlrev_b32 v{t0}, 10, v{t0}")
a(f"v_lshrrev_b32 v{t1}, 5, v{l}")
a(f"v_lshlrev_b32 v{t1}, 8, v{t1}")
a(f"v_and_b32 v{t2}, 15, v{l}")
a(f"v_lshlrev_b32 v{t2}, 4, v{t2}")
a(f"v_add3_u32 v{vHST}, v{t0}, v{t1}, v{t2}")
a(f"s_lshl_b32 s{sT0}, s{sMT}, 2")
a(f"s_add_u32 s{sT0}, s{sT0}, s{sW}")
a(f"s_mul_i32 s{sT1}, s{sT0}, 144")
a(f"s_mul_i32 s{sT2}, s{sJ}, 9")
a(f"s_add_u32 s{sT2}, s{sT1}, s{sT2}")
a(f"s_lshl_b32 s{sHB}, s{sT2}, 11")
a(f"s_mul_i32 s{sT2}, s{sG}, 36")
a(f"s_add_u32 s{sT2}, s{sT1}, s{sT2}")
a(f"s_mul_i32 s{sT3}, s{sGRP}, 18")
a(f"s_add_u32 s{sT2}, s{sT2}, s{sT3}")
a(f"s_lshl_b32 s{sHL}, s{sT2}, 11")
a(f"s_lshl_b32 s{sT0}, s{sMT}, 2")
a(f"s_add_u32 s{sT0}, s{sT0}, s{sG}")
a(f"s_lshl_b32 s{sT0}, s{sT0}, 2")
a(f"s_add_u32 s{sT0}, s{sT0}, s{sW}")
a(f"s_lshl_b32 s{sT0}, s{sT0}, 8")
a(f"s_add_u32 s{sFLC}, s{sT0}, {WS_FLAG_H}")
a(f"s_lshl_b32 s{sT1}, s{sNB}, 2")
a(f"s_add_u32 s{sFLH}, s{sFLC}, s{sT1}")
a(f"s_mul_i32 s{sT0}, s{sG}, {1152*1152}")
a(f"s_mul_i32 s{sT1}, s{sNB}, 288")
a(f"s_add_u32 s{sW2B}, s{sT0}, s{sT1}")

def dma_t1_all(stage, dr0, fcoff):
    slot = (stage % 4) * SLOT
    a(f"s_mul_i32 s{sT2}, s{sWV}, {8*9216}")
    a(f"s_add_u32 s{sT2}, s{sT2}, s{sF0B}")
    for k in range(5):
        if k == 4:
            a(f"s_cmp_ge_u32 s{sWV}, 4")
            a(f"s_cbranch_scc1 L_skip_t1_{stage}")
        a(f"s_add_u32 m0, s{sT6}, {slot + 8192*k}")
        a(f"s_add_u32 s{sT1}, s{sT2}, {(dr0 + 64*k)*9216 + fcoff}")
        a(f"buffer_load_dwordx4 v{vW1OFF}, {srd(sW1)}, s{sT1} offen lds")
    lab(f"L_skip_t1_{stage}")

def dma_t1_4w(stage, dr0, fcoff):
    slot = (stage % 4) * SLOT
    G = [[f"s_mul_i32 s{sT2}, s{sW}, {8*9216}", f"s_add_u32 s{sT2}, s{sT2}, s{sF0B}"]]
    for k in range(9):
        G.append([f"s_add_u32 m0, s{sT6}, {slot + 4096*k}",
                  f"s_add_u32 s{sT1}, s{sT2}, {(dr0 + 32*k)*9216 + fcoff}",
                  f"buffer_load_dwordx4 v{vW1OFF}, {srd(sW1)}, s{sT1} offen lds"])
    return G

def dma_x_8w(stage, dr0):
    slot = (stage % 4) * SLOT
    G = [[f"s_mul_i32 s{sT2}, s{sWV}, {8*9216}", f"s_add_u32 s{sT2}, s{sT2}, s{sF0B}",
          f"s_mul_i32 s{sT3}, s{sWV}, {16*9216}", f"s_add_u32 s{sT3}, s{sT3}, s{sFS}"]]
    for k in range(3):
        G.append([f"s_add_u32 m0, s{sT6}, {slot + 8192*k}",
                  f"s_add_u32 s{sT1}, s{sT2}, {(dr0 + 64*k)*9216 + 384}",
                  f"buffer_load_dwordx4 v{vW1OFF}, {srd(sW1)}, s{sT1} offen lds"])
    G.append([f"s_add_u32 m0, s{sT6}, {slot + 24576}",
              f"s_add_u32 s{sT1}, s{sT3}, {dr0*9216}",
              f"buffer_load_dwordx4 v{vXOFF}, {srd(sW1)}, s{sT1} offen lds"])
    G.append([f"s_cmp_ge_u32 s{sWV}, 4", f"s_cbranch_scc1 L_x8_{stage}",
              f"s_add_u32 m0, s{sT6}, {slot + 24576 + 8192}",
              f"s_add_u32 s{sT1}, s{sT3}, {(dr0 + 128)*9216}",
              f"buffer_load_dwordx4 v{vXOFF}, {srd(sW1)}, s{sT1} offen lds", f"L_x8_{stage}:"])
    return G

def dma_x_4w(stage, dr0):
    slot = (stage % 4) * SLOT
    G = [[f"s_mul_i32 s{sT2}, s{sW}, {8*9216}", f"s_add_u32 s{sT2}, s{sT2}, s{sF0B}",
          f"s_mul_i32 s{sT3}, s{sW}, {16*9216}", f"s_add_u32 s{sT3}, s{sT3}, s{sFS}"]]
    for k in range(6):
        G.append([f"s_add_u32 m0, s{sT6}, {slot + 4096*k}",
                  f"s_add_u32 s{sT1}, s{sT2}, {(dr0 + 32*k)*9216 + 384}",
                  f"buffer_load_dwordx4 v{vW1OFF}, {srd(sW1)}, s{sT1} offen lds ;@d{stage}"])
    for k in range(3):
        G.append([f"s_add_u32 m0, s{sT6}, {slot + 24576 + 4096*k}",
                  f"s_add_u32 s{sT1}, s{sT3}, {(dr0 + 64*k)*9216}",
                  f"buffer_load_dwordx4 v{vXOFF}, {srd(sW1)}, s{sT1} offen lds ;@d{stage}"])
    return G

def p0_reads(ks):
    t, sp = ks // 4, ks % 4
    so = (t % 2) * SLOT
    buf = ks % 3
    R = []
    R.append(f"ds_read_b128 {vr(vX+4*ks)}, v{vXR+sp} offset:{so}")
    for tl in range(2):
        for e4 in range(2):
            d = vAF + buf*8 + tl*4 + e4*2
            R.append(f"ds_read_b64_tr_b16 v[{d}:{d+1}], v{vWR+tl} offset:{so + (16*sp + 4*e4)*256}")
    return R

def toggle_p0(t):
    if t % 2 == 0 and t > 0:
        op = "v_add_u32" if (t % 4) == 2 else "v_subrev_u32"
        for r in list(range(vXR, vXR+4)) + [vWR, vWR+1]:
            a(f"{op} v{r}, {2*SLOT}, v{r}")

a("s_waitcnt vmcnt(8)")
a("s_barrier")
stamp(1, True)
pf_emit(0)
dq0 = dma_p0_list(3)
for ins in p0_reads(0): a(ins)
for ins in p0_reads(1): a(ins)
for ks in range(36):
    nxt = ks + 2
    pend = []
    if nxt % 4 == 0:
        t = nxt // 4
        a(f"s_waitcnt vmcnt(8) lgkmcnt(0)")
        if t == 8:
            a(f"s_cmp_lg_u32 s{sWV}, 4")
            a("s_cbranch_scc1 L_no_nonce2")
            a(f"s_mov_b32 s{sSPIN}, 0")
            lab("L_nonce_chk")
            a(f"v_readfirstlane_b32 s{sT0}, v{vT+4}")
            a(f"s_cmp_lg_u32 s{sT0}, 0")
            a("s_cbranch_scc1 L_nonce_ok")
            a(f"s_add_u32 s{sSPIN}, s{sSPIN}, 1")
            a(f"s_cmp_gt_u32 s{sSPIN}, {SPIN_MAX}")
            a("s_cbranch_scc1 L_nonce_ok")
            a(f"buffer_load_dword v{vT+4}, v{vT+6}, {srd(sDBG)}, 0 offen sc1")
            a("s_waitcnt vmcnt(0)")
            a("s_branch L_nonce_chk")
            lab("L_nonce_ok")
            a(f"v_mov_b32 v{vT+5}, s{sT0}")
            a(f"v_mov_b32 v{vT+6}, {LDS_NONCE}")
            a(f"ds_write_b32 v{vT+6}, v{vT+5}")
            lab("L_no_nonce2")
        a("s_barrier")
        stamp(1 + t, True) if PROF0 else None
        pf_emit(t)
        if t == 4:
            a(f"s_cmp_lg_u32 s{sWV}, 4")
            a("s_cbranch_scc1 L_no_nonce3")
            a(f"buffer_load_dword v{vT+4}, v{vT+6}, {srd(sDBG)}, 0 offen sc1")
            lab("L_no_nonce3")
        assert not dq0
        if t <= 5:
            dq0 = dma_p0_list(t + 3)
        elif t == 6:
            dq0 = dma_t1_8w(9, 0, 256)
        elif t == 7:
            dq0 = dma_t1_8w(10, 288, 256)
            a(f"v_lshrrev_b32 v{vXOFF}, 2, v{vLANE}")
            a(f"v_mul_u32_u24 v{vXOFF}, 9216, v{vXOFF}")
            a(f"v_and_b32 v{vT+7}, 3, v{vLANE}")
            a(f"v_lshl_add_u32 v{vXOFF}, v{vT+7}, 4, v{vXOFF}")
        elif t == 8:
            dq0 = dma_x_8w(11, 0)
        if t <= 8:
            toggle_p0(t)
    if nxt < 36:
        pend = p0_reads(nxt)
    nout = 5 if ks + 1 < 36 else 0
    a(f"s_waitcnt lgkmcnt({nout})")
    buf = ks % 3
    for tl in range(2):
        acc = vACC1 + 16*tl
        af = vAF + buf*8 + tl*4
        a(f"v_mfma_f32_32x32x16_bf16 {vr(acc,16)}, {vr(af)}, {vr(vX+4*ks)}, {vr(acc,16) if ks else 0}")
        for ins in (pend[:3] if tl == 0 else pend[3:]): a(ins)
        nb_ = next(k for k in range(ks+1, 40) if (k + 2) % 4 == 0)
        slots = (nb_ - ks)*2 - tl
        if dq0:
            ng = -(-len(dq0) // slots)
            emit_groups([dq0.pop(0) for _ in range(ng)])

stamp(2)
a(f"v_mov_b32 v{vT}, {LDS_NONCE}")
a(f"ds_read_b32 v{vT+1}, v{vT}")
a(f"s_lshl_b32 s{sT6}, s{sW}, 10")
a("s_waitcnt lgkmcnt(0)")
a(f"v_readfirstlane_b32 s{sNONCE}, v{vT+1}")
a(f"s_cmp_lg_u32 s{sGRP}, 0")
a("s_cbranch_scc1 L_pathB")

def epi_tile(A, P, tt, side=None, per=2):
    for b in range(4):
        if side:
            for _ in range(per):
                if side:
                    for ins in side.pop(0): a(ins)
        rr = [A + 4*b + i for i in range(4)]
        tt_ = [vT + i for i in range(4)]
        for i in range(4): a(f"v_mul_f32 v{tt_[i]}, s{sLOG}, v{rr[i]}")
        for i in range(4): a(f"v_exp_f32 v{tt_[i]}, v{tt_[i]}")
        for i in range(4): a(f"v_add_f32 v{tt_[i]}, 1.0, v{tt_[i]}")
        for i in range(4): a(f"v_rcp_f32 v{tt_[i]}, v{tt_[i]}")
        for i in range(4): a(f"v_mul_f32 v{tt_[i]}, v{rr[i]}, v{tt_[i]}")
        a(f"v_cvt_pk_bf16_f32 v{P+2*b}, v{tt_[0]}, v{tt_[1]}")
        a(f"v_cvt_pk_bf16_f32 v{P+2*b+1}, v{tt_[2]}, v{tt_[3]}")
        if b % 2 == 1:
            p = b // 2
            if p == 0:
                a(f"s_add_u32 s{sT0}, s{sHB}, {tt*2048}")
            a(f"buffer_store_dwordx4 {vr(P+4*p)}, v{vHST}, {srd(sWS)}, s{sT0} offen offset:{512*p}" + ("" if PLAINH else " sc1") + f" ;@st{tt}")

_pk = [0]
def epi(acc, ntiles, tt0, side=None, per=2):
    for ti in range(ntiles):
        epi_tile(acc + 16*ti, vAF + 8*(_pk[0] % 3), tt0 + ti, side, per)
        _pk[0] += 1
    while side:
        for ins in side.pop(0): a(ins)

def hreg(hset): return vHS + 16*hset
def h_groups(boff, tile, hset, tag):
    d = hreg(hset)
    o = tile*2048 + boff
    G = [[(f"s_add_u32 s{sS0}, s{sHL}, {o}" if o >= 0 else f"s_sub_u32 s{sS0}, s{sHL}, {-o}"),
          f"buffer_load_dwordx4 {vr(d)}, v{vL16}, {srd(sWS)}, s{sS0} offen sc1 ;@{tag}"],
         [f"buffer_load_dwordx4 {vr(d+4)}, v{vL16}, {srd(sWS)}, s{sS0} offen offset:1024 sc1 ;@{tag}"],
         [f"s_add_u32 s{sS1}, s{sS0}, {9*2048}",
          f"buffer_load_dwordx4 {vr(d+8)}, v{vL16}, {srd(sWS)}, s{sS1} offen sc1 ;@{tag}"],
         [f"buffer_load_dwordx4 {vr(d+12)}, v{vL16}, {srd(sWS)}, s{sS1} offen offset:1024 sc1 ;@{tag}"]]
    return G

def flags(tt0, n, tmp=vT+4):
    a(f"v_lshlrev_b32 v{tmp}, 4, v{vLANE}")
    a(f"v_mov_b32 v{tmp+1}, s{sNONCE}")
    a(f"v_cmp_gt_u32 vcc, {n}, v{vLANE}")
    a(f"s_add_u32 s{sT0}, s{sFLH}, {tt0*16}")
    a(f"s_and_saveexec_b64 s[{sEX}:{sEX+1}], vcc")
    a(f"buffer_store_dword v{tmp+1}, v{tmp}, {srd(sWS)}, s{sT0} offen sc1 ;@fl")
    a(f"s_mov_b64 exec, s[{sEX}:{sEX+1}]")
    return
    a(f"v_lshlrev_b32 v{tmp}, 7, v{vLANE}")
    a(f"v_cmp_gt_u32 vcc, {16*n}, v{vLANE}")
    a(f"s_add_u32 s{sT0}, s{sHB}, {tt0*2048}")
    a(f"s_and_saveexec_b64 s[{sEX}:{sEX+1}], vcc")
    a(f"buffer_load_dword v247, v{tmp}, {srd(sWS)}, s{sT0} offen sc1")
    a(f"s_mov_b64 exec, s[{sEX}:{sEX+1}]")

def blk_reads(ks, ntl, rowbytes, steps_per_stage):
    sp = ks % steps_per_stage
    buf = ks % 3
    R = []
    for tl in range(ntl):
        for e4 in range(2):
            d = vAF + buf*8 + tl*4 + e4*2
            R.append(f"ds_read_b64_tr_b16 v[{d}:{d+1}], v{vCUR+tl} offset:{(16*sp + 4*e4)*rowbytes}")
    return R

def dma_t3_4w(stage):
    slot = (stage % 4) * SLOT
    G = [[f"s_mul_i32 s{sT2}, s{sW}, {16*9216}", f"s_add_u32 s{sT2}, s{sT2}, s{sFS}"]]
    for k in range(9):
        G.append([f"s_add_u32 m0, s{sT6}, {slot + 4096*k}",
                  f"s_add_u32 s{sT1}, s{sT2}, {64*k*9216}",
                  f"buffer_load_dwordx4 v{vXOFF}, {srd(sW1)}, s{sT1} offen lds"])
    return G

TORDER = [2, 3, 0, 1, 4, 5, 6, 7, 8]
def fo_rows(tile, apar):
    if tile < 8: return apar*32 + 32*tile
    return 0 if apar else 256

def dma_p2_4w(stage, offs):
    slot = (stage % 4) * SLOT
    tile = TORDER[stage - 14]
    G = []
    for bi in range(2):
        for aa in range(4):
            G.append([f"s_add_u32 m0, s{sT6}, {slot + aa*9216 + bi*4096}",
                      f"s_add_u32 s{sT1}, s{sW2B}, {(288*aa + fo_rows(tile, aa & 1))*1152}",
                      f"buffer_load_dwordx4 v{offs+bi}, {srd(sW2)}, s{sT1} offen lds ;@d{stage}"])
    r0, r1 = fo_rows(tile, 0), fo_rows(tile, 1)
    G.append([f"s_mul_i32 s{sT1}, s{sW}, 9216",
              f"s_add_u32 m0, s{sT1}, {slot + 8192}",
              f"s_and_b32 s{sT2}, s{sW}, 1",
              f"s_mul_i32 s{sT2}, s{sT2}, {(r1 - r0)*1152}",
              f"s_mul_i32 s{sT1}, s{sW}, {288*1152}",
              f"s_add_u32 s{sT1}, s{sT1}, s{sT2}",
              f"s_add_u32 s{sT1}, s{sT1}, s{sW2B}",
              f"s_add_u32 s{sT1}, s{sT1}, {r0*1152}",
              f"buffer_load_dwordx4 v{offs+2}, {srd(sW2)}, s{sT1} offen lds ;@d{stage}"])
    return G

def w2off_l(dst, badd, tmp):
    R = []
    if badd is None:
        R.append(f"v_add_u32 v{tmp}, 512, v{vLANE}")
    else:
        R.append(f"s_lshl_b32 s{sS0}, s{sW}, 6")
        R.append(f"s_add_u32 s{sS0}, s{sS0}, {64*badd}")
        R.append(f"v_add_u32 v{tmp}, s{sS0}, v{vLANE}")
    R += [f"v_mul_u32_u24 v{dst}, 3641, v{tmp}",
          f"v_lshrrev_b32 v{dst}, 16, v{dst}",
          f"v_mul_u32_u24 v{tmp+1}, 18, v{dst}",
          f"v_sub_u32 v{tmp}, v{tmp}, v{tmp+1}",
          f"v_mul_u32_u24 v{dst}, 1152, v{dst}",
          f"v_lshl_add_u32 v{dst}, v{tmp}, 4, v{dst}"]
    return R

def w2offs3_l():
    return w2off_l(vXR, 0, vT) + w2off_l(vXR+1, 4, vT) + w2off_l(vXR+2, None, vT)

def p2_misc_l():
    return [
     f"v_lshlrev_b32 v{vL16}, 4, v{vLANE}",
     f"v_lshlrev_b32 v{vFLA}, 2, v{vLANE}",
     f"v_lshrrev_b32 v{vP2T}, 5, v{vLANE}",
     f"v_lshlrev_b32 v{vP2T}, 4, v{vP2T}",
     f"v_bfe_u32 v{vP2T+1}, v{vLANE}, 4, 1",
     f"v_lshl_add_u32 v{vP2T}, v{vP2T+1}, 2, v{vP2T}",
     f"v_bfe_u32 v{vP2T+1}, v{vLANE}, 2, 2",
     f"v_add_u32 v{vP2T}, v{vP2T}, v{vP2T+1}",
     f"v_mul_u32_u24 v{vP2T}, 288, v{vP2T}",
     f"v_and_b32 v{vP2T+1}, 3, v{vLANE}",
     f"v_lshl_add_u32 v{vP2T}, v{vP2T+1}, 3, v{vP2T}",
     f"s_mul_i32 s{sS0}, s{sGRP}, {2*9216}",
     f"v_add_u32 v{vW2R}, s{sS0}, v{vP2T}"]

def poll0_l():
    return [f"buffer_load_dword v{vPOLL}, v{vFLA}, {srd(sWS)}, s{sFLC} offen sc1"]

class Side:
    def __init__(self): self.q = []
    def add(self, min_step, instrs):
        for i in instrs: self.q.append((min_step, i))
    def emit(self, step, n):
        k = 0
        while self.q and k < n and self.q[0][0] <= step:
            a(self.q.pop(0)[1]); k += 1
    def flush(self):
        while self.q: a(self.q.pop(0)[1])

def block2(stA, stB, dma0, dma1, side, at={}, wmid=None, wend=None):
    a(f"v_add_u32 v{vCUR}, {(stA%4)*SLOT}, v{vW1R}")
    a(f"v_add_u32 v{vCUR+1}, {(stA%4)*SLOT}, v{vW1R+1}")
    for ins in blk_reads(0, 2, 128, 18): a(ins)
    for ins in blk_reads(1, 2, 128, 18): a(ins)
    dq = list(dma0)
    for ks in range(36):
        nxt = ks + 2
        if nxt == 18:
            vwait(wmid, "lgkmcnt(0)")
            a("s_barrier")
            a(f"v_add_u32 v{vCUR}, {(stB%4)*SLOT}, v{vW1R}")
            a(f"v_add_u32 v{vCUR+1}, {(stB%4)*SLOT}, v{vW1R+1}")
            dq = list(dma1)
        if nxt == 36:
            vwait(wend, "lgkmcnt(0)")
            a("s_barrier")
        for ins in at.get(ks, []): a(ins)
        pend = blk_reads(nxt, 2, 128, 18) if nxt < 36 else []
        buf = ks % 3
        for tl in range(2):
            acc = vACC2 + 16*tl
            af = vAF + buf*8 + tl*4
            nx1 = 4 if ks + 1 < 36 else 0
            nx2 = 2 if (tl == 1 and nxt < 36) else 0
            a(f"s_waitcnt lgkmcnt({(2 if tl == 0 else 0) + nx1 + nx2})")
            a(f"v_mfma_f32_32x32x16_bf16 {vr(acc,16)}, {vr(af)}, {vr(vX+4*ks)}, {vr(acc,16) if ks else 0}")
            for ins in (pend[:2] if tl == 0 else pend[2:]): a(ins)
            if tl == 1 and dq:
                for ins in dq.pop(0): a(ins)
            else:
                side.emit(ks, 3)
    side.flush()

_pc = [0]
def snap_l(tag="snap"):
    return [f"buffer_load_dword v{vPOLL}, v{vFLA}, {srd(sWS)}, s{sFLC} offen sc1 ;@{tag}"]

def snap_check(tiles):
    _pc[0] += 1
    n = _pc[0]
    lo = sum(0xF << (4*t) for t in tiles if t < 8)
    hi = 0xF if 8 in tiles else 0
    def chk():
        a(f"v_cmp_ne_u32 vcc, s{sNONCE}, v{vPOLL}")
        a(f"s_and_b32 s{sT0}, vcc_lo, 0x{lo:x}")
        if hi:
            a(f"s_and_b32 s{sT1}, vcc_hi, 0x{hi:x}")
            a(f"s_or_b32 s{sT0}, s{sT0}, s{sT1}")
    chk()
    a(f"s_cbranch_scc0 L_ok_{n}")
    a(f"s_mov_b32 s{sSPIN}, 0")
    lab(f"L_spin_{n}")
    for ins in snap_l("skip"): a(ins)
    a(f"s_add_u32 s{sSPIN}, s{sSPIN}, 1")
    a(f"s_cmp_gt_u32 s{sSPIN}, {SPIN_MAX}")
    a(f"s_cbranch_scc1 L_ok_{n}")
    a("s_waitcnt vmcnt(0)")
    chk()
    a(f"s_cbranch_scc1 L_spin_{n}")
    lab(f"L_ok_{n}")

def h_issue(tile, hset):
    d = vHS + 16*hset
    if isinstance(tile, int):
        a(f"s_add_u32 s{sT0}, s{sHL}, {tile*2048}")
    else:
        a(f"s_lshl_b32 s{sT0}, {tile}, 11")
        a(f"s_add_u32 s{sT0}, s{sT0}, s{sHL}")
    a(f"s_add_u32 s{sT1}, s{sT0}, {9*2048}")
    a(f"buffer_load_dwordx4 {vr(d)}, v{vL16}, {srd(sWS)}, s{sT0} offen sc1")
    a(f"buffer_load_dwordx4 {vr(d+4)}, v{vL16}, {srd(sWS)}, s{sT0} offen offset:1024 sc1")
    a(f"buffer_load_dwordx4 {vr(d+8)}, v{vL16}, {srd(sWS)}, s{sT1} offen sc1")
    a(f"buffer_load_dwordx4 {vr(d+12)}, v{vL16}, {srd(sWS)}, s{sT1} offen offset:1024 sc1")

def h_issue_base(base_sgpr_expr, tile, hset):
    d = vHS + 16*hset
    a(f"s_add_u32 s{sT0}, s{sHL}, {tile*2048 + base_sgpr_expr}" if tile*2048 + base_sgpr_expr >= 0 else f"s_sub_u32 s{sT0}, s{sHL}, {-(tile*2048 + base_sgpr_expr)}")
    a(f"s_add_u32 s{sT1}, s{sT0}, {9*2048}")
    a(f"buffer_load_dwordx4 {vr(d)}, v{vL16}, {srd(sWS)}, s{sT0} offen sc1")
    a(f"buffer_load_dwordx4 {vr(d+4)}, v{vL16}, {srd(sWS)}, s{sT0} offen offset:1024 sc1")
    a(f"buffer_load_dwordx4 {vr(d+8)}, v{vL16}, {srd(sWS)}, s{sT1} offen sc1")
    a(f"buffer_load_dwordx4 {vr(d+12)}, v{vL16}, {srd(sWS)}, s{sT1} offen offset:1024 sc1")

def zero_accp_l():
    return [f"v_mov_b32 v{vACCP+r}, 0" for r in range(72)]

cm("---- path A")
vmA = VM(["d10"]*4 + ["d11"]*4)
CUR["vm"] = vmA
sd = Side()
sd.add(0, w2offs3_l())
block2(9, 10, dma_x_4w(12, 192), dma_x_4w(13, 384), sd, wmid=["d10"], wend=["d11"])
stamp(3)
epi(vACC1+16, 1, 1)
for ins in p2_misc_l(): a(ins)
for ins in snap_l(): a(ins)
epi(vACC1, 1, 0)
vwait(["d12", "snap"])
stamp(4)
a("s_barrier")
snap_check([2, 3])
epi(vACC2, 2, 4, side=h_groups(18*2048, TORDER[0], 2, "h0x") + h_groups(0, TORDER[0], 0, "h0"), per=1)
vwait(["st0", "st1", "d13"])
flags(0, 2)
stamp(5)
a("s_barrier")
stamp(6)
stamp(7)
a("s_branch L_p2")

lab("L_pathB")
cm("---- path B")
vmB = VM(["d10"]*4 + ["d11"]*4)
CUR["vm"] = vmB
a("s_nop 7")
epi(vACC1, 2, 2)
vwait(["d10"])
stamp(3)
a("s_barrier")
for ins in w2offs3_l(): a(ins)
for ins in [f"v_lshrrev_b32 v{vT}, 5, v{vLANE}",
            f"v_bfe_u32 v{vT+1}, v{vLANE}, 2, 2",
            f"v_lshl_add_u32 v{vT}, v{vT}, 3, v{vT+1}",
            f"v_lshlrev_b32 v{vT}, 6, v{vT}",
            f"v_bfe_u32 v{vT+1}, v{vLANE}, 4, 1",
            f"v_lshlrev_b32 v{vT+1}, 5, v{vT+1}",
            f"v_and_b32 v{vT+2}, 3, v{vLANE}",
            f"v_lshlrev_b32 v{vT+2}, 3, v{vT+2}",
            f"v_add3_u32 v{vWR}, v{vT}, v{vT+1}, v{vT+2}",
            f"v_add_u32 v{vWR}, 24576, v{vWR}"]: a(ins)
a("s_waitcnt vmcnt(0)")
vmB.q = []
flags(2, 2)
pf_emit("b10")
stamp(4)
a("s_barrier")
stamp(5)
vAFX = 160
def b3_set(stage):
    sl = (stage % 4)*SLOT
    a(f"v_add_u32 v{vCUR}, {sl}, v{vW1R}")
    a(f"v_add_u32 v{vCUR+1}, {sl}, v{vW1R+1}")
    a(f"v_add_u32 v{vWR+1}, {sl}, v{vWR}")
def b3_reads(ks):
    sp, buf = ks % 12, ks % 3
    R = []
    for tl in range(2):
        for e4 in range(2):
            d = vAF + buf*8 + tl*4 + e4*2
            R.append(f"ds_read_b64_tr_b16 v[{d}:{d+1}], v{vCUR+tl} offset:{(16*sp + 4*e4)*128}")
    for e4 in range(2):
        d = vAFX + buf*4 + e4*2
        R.append(f"ds_read_b64_tr_b16 v[{d}:{d+1}], v{vWR+1} offset:{(16*sp + 4*e4)*64}")
    return R
b3_set(11)
for ins in b3_reads(0): a(ins)
for ins in b3_reads(1): a(ins)
dq = dma_p2_4w(14, vXR)
for ks in range(36):
    nxt = ks + 2
    if nxt == 12:
        a("s_waitcnt lgkmcnt(0)")
        a("s_barrier")
        b3_set(12)
        dq = dma_p2_4w(15, vXR)
    if nxt == 24:
        vwait(["d14"], "lgkmcnt(0)")
        a("s_barrier")
        b3_set(13)
        dq = dma_p2_4w(16, vXR)
    if nxt == 36:
        vwait(["d15"], "lgkmcnt(0)")
        a("s_barrier")
    pend = b3_reads(nxt) if nxt < 36 else []
    buf = ks % 3
    for tl in range(3):
        acc = (vACC2 + 16*tl) if tl < 2 else vACC1
        af = (vAF + buf*8 + tl*4) if tl < 2 else (vAFX + buf*4)
        nx1 = 6 if ks + 1 < 36 else 0
        nx2 = 2*tl if nxt < 36 else 0
        a(f"s_waitcnt lgkmcnt({min(15, 2*(2 - tl) + nx1 + nx2)})")
        a(f"v_mfma_f32_32x32x16_bf16 {vr(acc,16)}, {vr(af)}, {vr(vX+4*ks)}, {vr(acc,16) if ks else 0}")
        for ins in pend[2*tl:2*tl+2]: a(ins)
        if tl == 2 and dq:
            for ins in dq.pop(0): a(ins)
stamp(6)
def dmaB_part(T):
    tile = TORDER[T - 14]; slot = (T % 4)*SLOT
    return [[f"s_add_u32 m0, s{sT6}, {slot + aa*9216 + 4096}",
             f"s_add_u32 s{sT1}, s{sW2B}, {(288*aa + fo_rows(tile, aa & 1))*1152}",
             f"buffer_load_dwordx4 v{vXR+1}, {srd(sW2)}, s{sT1} offen lds ;@d{T}"] for aa in range(4)]
for ins in p2_misc_l(): a(ins)
epi(vACC2, 1, 6, side=[snap_l()] + dmaB_part(17), per=2)
epi(vACC2+16, 1, 7)
vwait(["d16", "snap"])
a("s_barrier")
snap_check([0, 1, 4, 5])
epi(vACC1, 1, 8, side=h_groups(0, TORDER[3], 0, "h3") + dmaB_part(18) + h_groups(0, TORDER[4], 1, "h4"), per=3)
vwait(["d17"])
a("s_barrier")
emit_groups(dmaB_part(19))
stamp(7)

def p2_reads(idx, addr, slot_off):
    st, jn = idx // 9, idx % 9
    d = vAF2 + (idx % 6)*4
    return [f"ds_read_b64_tr_b16 v[{d+2*e4}:{d+2*e4+1}], v{addr} offset:{slot_off + st*9216 + e4*8*288 + jn*32}" for e4 in range(2)]

sWD = 94
def p2_unrolled(G):
    tg = "AB"[G]
    voff = vXR + G
    a(f"v_mov_b32 v{vW2C}, v{vW2R}")
    a(f"v_add_u32 v{vW2N}, {2*SLOT}, v{vW2R}")
    a(f"s_lshl_b32 s{sT6}, s{sWV}, 10")
    a(f"s_add_u32 s95, s{sHL}, {9*2048}")
    if G == 0:
        a(f"s_mul_i32 s{sWD}, s{sWV}, 9216")
        a(f"s_mul_i32 s96, s{sWV}, {288*1152}")
        a(f"s_add_u32 s96, s96, s{sW2B}")
        a(f"s_and_b32 s97, s{sWV}, 1")
    vW2X = vP2T + 5
    if G == 0:
        for i in range(3):
            a(f"v_add_u32 v{vW2X+i}, {((14+i)%4)*SLOT + 2*9216}, v{vW2R}")
        segs = [(0, "x", 2, "h0x"), (0, "o", 0, "h0"), (1, "x", 3, "h1x"), (1, "o", 1, "h1"), (2, "x", 0, "h2x"), (2, "o", 2, "h2")] + [(s_, "o", (s_ % 3) if s_ != 3 else 3, f"h{s_}") for s_ in range(3, 9)]
    else:
        segs = [(s_, "o", s_ % 3, f"h{s_}") for s_ in range(3, 9)]
    def rd(si, idx):
        stage, kind, _, _ = segs[si]
        if kind == "x": return p2_reads(idx, vW2X + stage, 0)
        sl = (14 + stage) % 4
        return p2_reads(idx, vW2C if sl < 2 else vW2N, (sl % 2)*SLOT)
    for i in range(4):
        for ins in rd(0, i): a(ins)
    for si, (s_, kind, hset, hname) in enumerate(segs):
        ev = {}
        def add(pos, blk): ev.setdefault(pos, []).append(blk)
        def add_h(pos, sh, hs=None, other=False):
            t2 = TORDER[sh]
            d = hreg(sh % 3 if hs is None else hs)
            for k in range(4):
                blk = []
                if k % 2 == 0:
                    blk.append(f"s_add_u32 s{sT1}, {'s95' if k >= 2 else f's{sHL}'}, {t2*2048 + (18*2048 if other else 0)}")
                blk += [f"buffer_load_dwordx4 {vr(d+4*k)}, v{vL16}, {srd(sWS)}, s{sT1} offen offset:{1024*(k%2)} sc1"]
                add(pos + k, blk)
        def add_d(dpos, T):
            tile = TORDER[T - 14]
            slot = (T % 4)*SLOT
            for aa in range(4):
                add(dpos + aa, [f"s_add_u32 m0, s{sT6}, {slot + aa*9216}",
                                f"s_add_u32 s{sT0}, s{sW2B}, {(288*aa + fo_rows(tile, aa & 1))*1152}",
                                f"buffer_load_dwordx4 v{voff}, {srd(sW2)}, s{sT0} offen lds ;@d{T}"])
            if G == 0:
                r0, r1 = fo_rows(tile, 0), fo_rows(tile, 1)
                add(dpos + 4, [f"s_add_u32 m0, s{sWD}, {slot + 8192}",
                               f"s_mul_i32 s{sT0}, s97, {(r1 - r0)*1152}",
                               f"s_add_u32 s{sT0}, s{sT0}, s96",
                               f"s_add_u32 s{sT0}, s{sT0}, {r0*1152}",
                               f"buffer_load_dwordx4 v{vXR+2}, {srd(sW2)}, s{sT0} offen lds ;@d{T}"])
        p0 = 0 if G == 0 else 9
        if G == 0 and s_ <= 2:
            if (s_, kind) == (0, "x"):
                add_h(1, 1, hs=3, other=True)
                add_h(6, 1, hs=1)
                add(12, snap_l())
            if (s_, kind) == (0, "o"):
                add(2, [("WAIT", ["st4", "st5"]), ("FLAGS", 4, 2)])
                add(9, [("WAIT", ["snap"]), ("CHK", [0, 1])])
                add_h(10, 2, hs=2)
            if (s_, kind) == (1, "x"):
                add_h(1, 2, hs=0, other=True)
                add_d(5, 17)
            if (s_, kind) == (1, "o"):
                add_h(1, 3, hs=3)
                add(8, snap_l())
            if (s_, kind) == (2, "x"):
                add(0, [("WAIT", ["snap"]), ("CHK", [4, 5])])
                add_h(1, 4, hs=1)
                add_d(5, 18)
        else:
            if s_ + 2 <= 8:
                if s_ == 4: p0 = 10
                chk = {4: [6, 7, 8]}.get(s_)
                if chk:
                    add(p0, [("WAIT", ["snap"]), ("CHK", chk)])
                if s_ == 4: add(0, snap_l())
                if G == 1 and s_ == 3:
                    add(0, [("WAIT", ["st6", "st7", "st8"]), ("FLAGS", 6, 3)])
                add_h(p0 + 1, s_ + 2)
            T = 16 + G + s_
            if T <= 22:
                add_d(5 if G == 0 else 14, T)
        if PROF2 and kind == "o": stamp(1 + s_, 2)
        vwait([hname])
        last = (si == len(segs) - 1)
        for idx in range(18):
            st, jn = idx // 9, idx % 9
            if idx == 14 and kind == "o" and s_ < 8:
                vwait([f"d{15+s_}"])
                a("s_barrier")
            nout = 6 if not (last and idx >= 15) else 2*(17 - idx)
            a(f"s_waitcnt lgkmcnt({nout})")
            af = vAF2 + (idx % 6)*4
            nx = idx + 4
            r_ = rd(si, nx) if nx < 18 else (rd(si+1, nx - 18) if not last else [None, None])
            for mh in range(2):
                acc = vACCP + (jn*2 + mh)*4
                hf = hreg(hset) + st*8 + mh*4
                a(f"v_mfma_f32_16x16x32_bf16 {vr(acc)}, {vr(af)}, {vr(hf)}, {vr(acc) if not (si == 0 and st == 0) else 0}")
                if r_[mh]: a(r_[mh])
            for blk in ev.get(idx, []):
                for ins in blk:
                    if isinstance(ins, tuple):
                        if ins[0] == "CHK": snap_check(ins[1])
                        elif ins[0] == "WAIT": vwait(ins[1])
                        elif ins[0] == "FLAGS": flags(ins[1], ins[2], tmp=vP2T)
                    else: a(ins)

stamp(8)
CUR["vm"] = vmB
p2_unrolled(1)
a("s_branch L_p2_done")
lab("L_p2")
stamp(8)
CUR["vm"] = vmA
p2_unrolled(0)
CUR["vm"] = None
lab("L_p2_done")
stamp(9)
if PROF4: a("s_memrealtime s[64:65]")
a(f"s_mul_i32 s{sT0}, s{sW}, 9216")
a(f"v_add_u32 v{vP2T+1}, s{sT0}, v{vL16}")
a(f"v_add_u32 v{vP2T}, {3*SLOT}, v{vP2T+1}")
a(f"s_lshl_b32 s{sT2}, s{sMT}, 2")
a(f"s_add_u32 s{sT2}, s{sT2}, s{sNB}")
a(f"s_lshl_b32 s{sT2}, s{sT2}, 2")
a(f"s_add_u32 s{sT2}, s{sT2}, s{sW}")
a(f"s_lshl_b32 s{sT2}, s{sT2}, 1")
a(f"s_add_u32 s{sT2}, s{sT2}, s{sGRP}")
a(f"s_mul_i32 s{sT2}, s{sT2}, {4*6*1024}")
a(f"s_add_u32 s{sHL}, s{sT2}, {WS_RS}")
a(f"s_cmp_lg_u32 s{sGRP}, 0")
a("s_cbranch_scc1 L_rsB")

def rs_path(tag, send, keep, send_addr, recv_addr):
    for i, t in enumerate(send):
        a(f"ds_write_b128 v{send_addr}, {vr(vACCP+4*t)} offset:{i*1024}")
    a("s_waitcnt lgkmcnt(0)")
    a("s_barrier")
    for i, t in enumerate(keep):
        a(f"ds_read_b128 {vr(72+4*i)}, v{recv_addr} offset:{i*1024}")
    Q = 176
    for k in range(6):
        a(f"v_mov_b32 v{Q+4*k+3}, s{sNONCE}")
    for i, t in enumerate(keep):
        a(f"s_waitcnt lgkmcnt({len(keep)-1-i})")
        for r in range(4):
            a(f"v_add_f32 v{vACCP+4*t+r}, v{vACCP+4*t+r}, v{72+4*i+r}")
    if PROF4: stamp(10)
    K0 = vACCP + 4*keep[0]
    a(f"s_cmp_eq_u32 s{sW}, s{sG}")
    a(f"s_cbranch_scc1 L_rs_own_{tag}")
    a(f"s_mul_i32 s{sT0}, s{sG}, {6*1024}")
    a(f"s_add_u32 s{sT0}, s{sT0}, s{sHL}")
    a(f"s_add_u32 s{sT1}, s{sT0}, 4096")
    for k in range(6):
        for i in range(3):
            d = 3*k + i
            a(f"v_cvt_pk_bf16_f32 v{Q+4*k+i}, v{K0+2*d}, v{K0+2*d+1}")
        a(f"buffer_store_dwordx4 {vr(Q+4*k)}, v{vL16}, {srd(sWS)}, s{sT0 if k < 4 else sT1} offen offset:{(k%4)*1024} sc1")
    a("s_branch L_end")
    lab(f"L_rs_own_{tag}")
    a(f"v_and_b32 v{vP2T+2}, 15, v{vLANE}")
    a(f"v_mul_u32_u24 v{vP2T+2}, 1152, v{vP2T+2}")
    a(f"v_lshrrev_b32 v{vP2T+3}, 4, v{vLANE}")
    a(f"v_lshl_add_u32 v{vP2T+2}, v{vP2T+3}, 3, v{vP2T+2}")
    a(f"s_mul_i32 s{sT4}, s{sW}, {32*1152}")
    a(f"s_add_u32 s{sT4}, s{sT4}, s{sXB}")
    a(f"s_mul_i32 s{sT5}, s{sNB}, 288")
    a(f"s_add_u32 s{sT4}, s{sT4}, s{sT5}")
    a(f"s_add_u32 s{sT5}, s{sT4}, {16*1152}")
    R = 72
    for p in range(1, 4):
        a(f"s_add_u32 s{sT0}, s{sG}, {p}")
        a(f"s_and_b32 s{sT0}, s{sT0}, 3")
        a(f"s_mul_i32 s{sT0}, s{sT0}, {6*1024}")
        a(f"s_add_u32 s{93+p}, s{sT0}, s{sHL}")
    a(f"v_mov_b32 v{vP2T+4}, {5*1024 + 63*16 + 12}")
    a(f"s_mov_b32 s{sSPIN}, 0")
    lab(f"L_rs_poll_{tag}")
    for p in range(3):
        a(f"buffer_load_dword v{R+p}, v{vP2T+4}, {srd(sWS)}, s{94+p} offen sc1")
    a(f"s_add_u32 s{sSPIN}, s{sSPIN}, 1")
    a(f"s_cmp_gt_u32 s{sSPIN}, {SPIN_MAX}")
    a(f"s_cbranch_scc1 L_rs_spin_{tag}")
    a(f"s_mov_b64 s[{sT2}:{sT2+1}], 0")
    a("s_waitcnt vmcnt(0)")
    for p in range(3):
        a(f"v_cmp_ne_u32 vcc, s{sNONCE}, v{R+p}")
        a(f"s_or_b64 s[{sT2}:{sT2+1}], s[{sT2}:{sT2+1}], vcc")
    a(f"s_cbranch_scc1 L_rs_poll_{tag}")
    lab(f"L_rs_spin_{tag}")
    for p in range(1, 4):
        a(f"s_add_u32 s{sT1}, s{93+p}, 4096")
        for k in range(6):
            a(f"buffer_load_dwordx4 {vr(R+24*(p-1)+4*k)}, v{vL16}, {srd(sWS)}, s{93+p if k < 4 else sT1} offen offset:{(k%4)*1024} sc1")
    a(f"s_add_u32 s{sSPIN}, s{sSPIN}, 1")
    a(f"s_cmp_gt_u32 s{sSPIN}, {SPIN_MAX}")
    a(f"s_cbranch_scc1 L_rs_spin_out_{tag}")
    a(f"s_mov_b64 s[{sT2}:{sT2+1}], 0")
    for q in range(18):
        a(f"s_waitcnt vmcnt({17-q})")
        a(f"v_cmp_ne_u32 vcc, s{sNONCE}, v{R+4*q+3}")
        a(f"s_or_b64 s[{sT2}:{sT2+1}], s[{sT2}:{sT2+1}], vcc")
    a(f"s_cbranch_scc1 L_rs_spin_{tag}")
    lab(f"L_rs_spin_out_{tag}")
    a("s_waitcnt vmcnt(0)")
    if PROF4: stamp(11)
    T = vP2T + 4
    for p in range(3):
        for k in range(6):
            for i in range(3):
                d = 3*k + i
                src = R + 24*p + 4*k + i
                a(f"v_lshlrev_b32 v{T}, 16, v{src}")
                a(f"v_and_b32 v{T+1}, 0xffff0000, v{src}")
                a(f"v_add_f32 v{K0+2*d}, v{K0+2*d}, v{T}")
                a(f"v_add_f32 v{K0+2*d+1}, v{K0+2*d+1}, v{T+1}")
    if PROF4: stamp(12)
    for i, t in enumerate(keep):
        jn, mh = t // 2, t % 2
        d = Q + 2*(i % 8)
        a(f"v_cvt_pk_bf16_f32 v{d}, v{vACCP+4*t}, v{vACCP+4*t+1}")
        a(f"v_cvt_pk_bf16_f32 v{d+1}, v{vACCP+4*t+2}, v{vACCP+4*t+3}")
        a(f"buffer_store_dwordx2 v[{d}:{d+1}], v{vP2T+2}, {srd(sOUT)}, s{sT5 if mh else sT4} offen offset:{jn*32}")
    a("s_branch L_end")

rs_path("A", list(range(9, 18)), list(range(0, 9)), vP2T, vP2T+1)
lab("L_rsB")
rs_path("B", list(range(0, 9)), list(range(9, 18)), vP2T+1, vP2T)

lab("L_end")
if PROF:
    stamp(15)
    a("s_memrealtime s[96:97]")
    a("s_mov_b64 exec, -1")
    a("s_cmp_ge_u32 s2, 256")
    a("s_cbranch_scc1 L_end2")
    a("s_waitcnt lgkmcnt(0)")
    for i in range(1, 16):
        a(f"s_sub_u32 s{64+2*(i-1)}, s{64+2*(i-1)}, s100")
    a(f"v_mov_b32 v0, 0")
    for i in range(1, 16):
        a(f"v_writelane_b32 v0, s{64+2*(i-1)}, {i}")
    if PROF4:
        a("s_add_u32 s64, s64, s100")
        a("s_and_b32 s64, s64, 0xfffff")
        a("v_writelane_b32 v0, s64, 1")
        a("s_and_b32 s66, s98, 0xfffff")
        a("v_writelane_b32 v0, s66, 2")
        a("s_and_b32 s66, s96, 0xfffff")
        a("v_writelane_b32 v0, s66, 3")
    a("s_sub_u32 s96, s96, s98")
    a("v_writelane_b32 v0, s96, 14")
    a(f"s_lshl_b32 s{sT0}, s2, 3")
    a(f"s_add_u32 s{sT0}, s{sT0}, s{sWV}")
    a(f"s_lshl_b32 s{sT0}, s{sT0}, 6")
    a(f"s_add_u32 s{sT0}, s{sT0}, {WS_PROF}")
    a(f"v_lshlrev_b32 v1, 2, v{vLANE}")
    a(f"v_cmp_gt_u32 vcc, 16, v{vLANE}")
    a(f"s_and_saveexec_b64 s[{sEX}:{sEX+1}], vcc")
    a(f"buffer_store_dword v0, v1, {srd(sWS)}, s{sT0} offen")
    if PROFDBG:
        a(f"s_cmp_lg_u32 s{sT0}, {WS_PROF}")
        a("s_cbranch_scc1 L_end2")
        a(f"buffer_store_dword v0, v1, {srd(sDBG)}, 0 offen")
    lab("L_end2")
a("s_endpgm")

hdr = [
 f"; @launch grid=(256,1,1) block=(512,1,1) lds={LDS_SIZE}",
 '.amdgcn_target "amdgcn-amd-amdhsa--gfx950"',
 ".text",
 f".globl {KNAME}",
 ".p2align 8",
 f".type {KNAME},@function",
]
ftr = [
 '.section .rodata,"a"',
 ".p2align 6",
 f".amdhsa_kernel {KNAME}",
 "  .amdhsa_next_free_vgpr 256",
 "  .amdhsa_next_free_sgpr 102",
 "  .amdhsa_accum_offset 256",
 "  .amdhsa_group_segment_fixed_size 0",
 "  .amdhsa_kernarg_size 48",
 "  .amdhsa_user_sgpr_count 2",
 "  .amdhsa_user_sgpr_kernarg_segment_ptr 1",
 "  .amdhsa_system_sgpr_workgroup_id_x 1",
 ".end_amdhsa_kernel",
]
if "--nt" in sys.argv:
    L = [ (l.replace(" offen lds", " offen nt lds") if (" lds" in l and ("s[4:7]" in l or "s[8:11]" in l)) else l) for l in L]
if "--nt2" in sys.argv:
    L = [ (l.replace(" offen lds", " offen nt lds") if (" lds" in l) else l) for l in L]
print("\n".join(hdr + L + ftr))
```

```python
import sys

PROF = "--prof" in sys.argv or "--prof0" in sys.argv or "--prof2" in sys.argv or "--prof3" in sys.argv or "--prof4" in sys.argv or "--prof5" in sys.argv
PROF2 = "--prof2" in sys.argv
PROF3 = "--prof3" in sys.argv
PROF4 = "--prof4" in sys.argv
PROF5 = "--prof5" in sys.argv
PROF0 = "--prof0" in sys.argv
PROFDBG = "--dbgout" in sys.argv
NOH = "--noh" in sys.argv
NODMA = "--nodma" in sys.argv
NORD = "--nord" in sys.argv
NOPF = "--nopf" in sys.argv
NOBAR = "--nobar" in sys.argv
ROT = "--rot" in sys.argv
PLAINH = "--plainh" in sys.argv
NORETOUCH = "--noretouch" in sys.argv
WS_PROF = 96 << 20

KNAME = "standalone__dense_activation_silu__prompt_kernel"
L = []
CUR = {"vm": None}
def a(s):
    if ";@" in s:
        s, tag = s.split(";@")
        s = s.rstrip()
        if CUR["vm"] is not None and tag != "skip": CUR["vm"].issue(tag)
    L.append(s if s.endswith(":") else "    " + s)

class VM:
    def __init__(self, init): self.q = list(init)
    def issue(self, name): self.q.append(name)
    def need(self, names):
        idx = [i for i, n in enumerate(self.q) if n in names]
        if not idx: return None
        n = len(self.q) - 1 - max(idx)
        self.q = self.q[max(idx)+1:]
        return n
    def wait(self, names, extra=""):
        n = self.need(names)
        if n is None:
            if extra: a(f"s_waitcnt {extra}")
            return
        a(f"s_waitcnt vmcnt({n}) {extra}".rstrip())
def vwait(names, extra=""): CUR["vm"].wait(names, extra)
def lab(s): L.append(s + ":")
def cm(s): L.append("    ; " + s)
def stamp(i, p0=False):
    if PROF0 and not p0 and i not in (0, 15): return
    if PROF2 and p0 != 2 and i not in (0, 15): return
    if PROF:
        r = 100 if i == 0 else 64 + 2*(i-1)
        L.append(f"    s_memtime s[{r}:{r+1}]")

SLOT = 36864
LDS_NONCE = 4 * SLOT
LDS_SIZE = 4 * SLOT + 64
WS_RS = 32 << 20
WS_FLAG_H = 64 << 20
WS_FLAG_RS = (64 << 20) + (1 << 20)
LOG2E_NEG = 0xbfb8aa3b

sX, sW1, sW2, sOUT, sWS, sDBG = 4, 8, 12, 16, 20, 24
sMT, sG, sNB, sJ, sWV, sW, sGRP, sNONCE = 28, 29, 30, 31, 32, 33, 34, 35
sF0B = 36
sXB = 37
sT0, sT1, sT2, sT3, sT4, sT5 = 38, 39, 40, 41, 42, 43
sSLOTN = 44
sSLOTD = 45
sHB = 46
sFLH = 47
sFS = 50
sLOG = 51
sST = 52
sHL = 53
sW2B = 54
sW2E = 55
sPEND2 = 56
sNT = 57
sEX = 58
sFLC = 60
sT6, sT7 = 62, 63
sSPIN = 61
SPIN_MAX = 200000

def srd(r): return f"s[{r}:{r+3}]"

vX = 0
vACC1 = 144
vACC2 = 176
vAF = 208
vXR = 232
vWR = 236
vW1R = 238
vXOFF = 240
vW0OFF = 241
vW1OFF = 242
vLANE = 243
vHST = 244
vCUR = 245
vT = 248
vACCP = 0
vAF2 = 72
vHS = 96
vW2R = 160
vW2C = 161
vW2N = 162
vPOLL = 163
vFLA = 164
vL16 = 165
vP2T = 168
sS0, sS1 = 48, 49
sPK1 = 94
sPK2 = 96

def vr(b, n=4): return f"v[{b}:{b+n-1}]"

lab(KNAME)
a("s_cmp_ge_u32 s2, 256")
a("s_cbranch_scc1 L_end")
stamp(0)
a("s_load_dwordx4 s[80:83], s[0:1], 0")
a("s_load_dwordx4 s[84:87], s[0:1], 16")
a("s_load_dwordx4 s[88:91], s[0:1], 32")
a("s_memrealtime s[92:93]")
if PROF: a("s_memrealtime s[98:99]")
a(f"v_and_b32 v{vLANE}, 63, v0")
a(f"v_lshrrev_b32 v{vT}, 6, v0")
a("s_nop 0")
a(f"v_readfirstlane_b32 s{sWV}, v{vT}")
a(f"s_and_b32 s{sT0}, s2, 7")
a(f"s_lshr_b32 s{sT1}, s2, 3")
a(f"s_lshr_b32 s{sG}, s{sT0}, 1")
a(f"s_and_b32 s{sT2}, s{sT0}, 1")
a(f"s_lshl_b32 s{sT2}, s{sT2}, 3")
a(f"s_lshr_b32 s{sT3}, s{sT1}, 2")
a(f"s_add_u32 s{sMT}, s{sT2}, s{sT3}")
a(f"s_and_b32 s{sNB}, s{sT1}, 3")
a(f"s_lshl_b32 s{sJ}, s{sG}, 2")
a(f"s_add_u32 s{sJ}, s{sJ}, s{sNB}")
a(f"s_and_b32 s{sW}, s{sWV}, 3")
a(f"s_lshr_b32 s{sGRP}, s{sWV}, 2")
a(f"s_mul_i32 s{sT0}, s{sJ}, 576")
a(f"s_and_b32 s{sT1}, s{sJ}, 1")
a(f"s_lshl_b32 s{sT2}, s{sT1}, 6")
a(f"s_add_u32 s{sF0B}, s{sT0}, s{sT2}")
a(f"s_xor_b32 s{sT1}, s{sT1}, 1")
a(f"s_lshl_b32 s{sT1}, s{sT1}, 9")
a(f"s_add_u32 s{sFS}, s{sT0}, s{sT1}")
a(f"s_mul_i32 s{sXB}, s{sMT}, {128*1152}")
sRHO = 97
if ROT:
    a(f"s_add_u32 s{sT0}, s{sMT}, s{sJ}")
    a(f"s_mul_i32 s{sT1}, s{sT0}, 57")
    a(f"s_lshr_b32 s{sT1}, s{sT1}, 9")
    a(f"s_mul_i32 s{sT1}, s{sT1}, 9")
    a(f"s_sub_u32 s{sT0}, s{sT0}, s{sT1}")
    a(f"s_lshl_b32 s{sRHO}, s{sT0}, 7")
    a(f"s_mul_i32 s{sT0}, s{sT0}, {64*9216}")
    a(f"s_add_u32 s{sF0B}, s{sF0B}, s{sT0}")
    a(f"s_add_u32 s{sFS}, s{sFS}, s{sT0}")
a(f"s_mov_b32 s{sLOG}, 0x{LOG2E_NEG:08x}")

l = vLANE
t0, t1, t2, t3 = vT, vT+1, vT+2, vT+3
a(f"v_lshrrev_b32 v{t0}, 3, v{l}")
a(f"v_mul_u32_u24 v{vXOFF}, 1152, v{t0}")
a(f"v_and_b32 v{t1}, 7, v{l}")
a(f"v_lshrrev_b32 v{t2}, 4, v{l}")
a(f"v_xor_b32 v{t1}, v{t1}, v{t2}")
a(f"s_and_b32 s{sT0}, s{sWV}, 1")
a(f"s_lshl_b32 s{sT0}, s{sT0}, 2")
a(f"v_xor_b32 v{t1}, s{sT0}, v{t1}")
a(f"v_lshlrev_b32 v{t1}, 4, v{t1}")
a(f"v_add_u32 v{vXOFF}, v{vXOFF}, v{t1}")
a(f"v_lshrrev_b32 v{t0}, 4, v{l}")
a(f"v_mul_u32_u24 v{vW0OFF}, 9216, v{t0}")
a(f"v_bfe_u32 v{t1}, v{l}, 2, 2")
a(f"v_xor_b32 v{t1}, v{t1}, v{t0}")
a(f"v_lshlrev_b32 v{t1}, 6, v{t1}")
a(f"v_and_b32 v{t2}, 3, v{l}")
a(f"v_lshlrev_b32 v{t2}, 4, v{t2}")
a(f"v_add3_u32 v{vW0OFF}, v{vW0OFF}, v{t1}, v{t2}")
a(f"s_mul_i32 s{sT4}, s{sWV}, {8*1152}")
a(f"s_add_u32 s{sT4}, s{sT4}, s{sXB}")
a(f"s_mul_i32 s{sT5}, s{sWV}, {4*9216}")
a(f"s_add_u32 s{sT5}, s{sT5}, s{sF0B}")
a(f"s_lshl_b32 s{sT6}, s{sWV}, 10")
a("s_waitcnt lgkmcnt(0)")
for (r, src, nbytes) in ((sX, 80, 2048*576*2), (sW1, 82, 576*4608*2), (sW2, 84, 4608*576*2), (sOUT, 86, 2048*576*2), (sDBG, 88, 256), (sWS, 90, 256 << 20)):
    a(f"s_mov_b32 s{r}, s{src}")
    a(f"s_mov_b32 s{r+1}, s{src+1}")
    a(f"s_mov_b32 s{r+2}, {nbytes}")
    a(f"s_mov_b32 s{r+3}, 0x20000")

def dma_p0_list(t):
    slot = (t % 4) * SLOT
    G = []
    for k in range(2):
        if ROT:
            G.append([f"s_add_u32 m0, s{sT6}, {slot + 8192*k}",
                      f"s_add_u32 s{sT1}, s{sRHO}, {128*t}",
                      f"s_sub_u32 s{sS1}, s{sT1}, 1152",
                      f"s_cselect_b32 s{sT1}, s{sT1}, s{sS1}",
                      f"s_add_u32 s{sT1}, s{sT1}, s{sT4}",
                      f"s_add_u32 s{sT1}, s{sT1}, {64*1152*k}",
                      f"buffer_load_dwordx4 v{vXOFF}, {srd(sX)}, s{sT1} offen lds"])
        else:
            G.append([f"s_add_u32 m0, s{sT6}, {slot + 8192*k}",
                  f"s_add_u32 s{sT1}, s{sT4}, {128*t + 64*1152*k}",
                  f"buffer_load_dwordx4 v{vXOFF}, {srd(sX)}, s{sT1} offen lds"])
        G.append([f"s_add_u32 m0, s{sT6}, {slot + 16384 + 8192*k}",
                  f"s_add_u32 s{sT1}, s{sT5}, {(64*t + 32*k)*9216}",
                  f"buffer_load_dwordx4 v{vW0OFF}, {srd(sW1)}, s{sT1} offen lds"])
    return G

def dma_t1_8w(stage, dr0, fcoff):
    slot = (stage % 4) * SLOT
    G = [[f"s_mul_i32 s{sT2}, s{sWV}, {8*9216}", f"s_add_u32 s{sT2}, s{sT2}, s{sF0B}"]]
    for k in range(4):
        G.append([f"s_add_u32 m0, s{sT6}, {slot + 8192*k}",
                  f"s_add_u32 s{sT1}, s{sT2}, {(dr0 + 64*k)*9216 + fcoff}",
                  f"buffer_load_dwordx4 v{vW1OFF}, {srd(sW1)}, s{sT1} offen lds"])
    G.append([f"s_cmp_ge_u32 s{sWV}, 4",
              f"s_cbranch_scc1 L_t18_{stage}",
              f"s_add_u32 m0, s{sT6}, {slot + 8192*4}",
              f"s_add_u32 s{sT1}, s{sT2}, {(dr0 + 64*4)*9216 + fcoff}",
              f"buffer_load_dwordx4 v{vW1OFF}, {srd(sW1)}, s{sT1} offen lds",
              f"L_t18_{stage}:"])
    return G

_gid = [0]
def emit_groups_A(G):
    _gid[0] += 1
    a(f"s_cmp_lg_u32 s{sGRP}, 0")
    a(f"s_cbranch_scc1 L_gskip_{_gid[0]}")
    emit_groups(G)
    lab(f"L_gskip_{_gid[0]}")

vPFX, vPFA, vPFB, vPFC = 176, 177, 178, 179
sPFX, sPFW1, sPFW2 = 94, 95, 96
def PFx(k): return (sX, vPFX, sPFX, k*256)
def PFa(k): return (sW1, vPFA, sPFW1, k*256*9216)
def PFb(k): return (sW1, vPFB, sPFW1, k*128*9216)
def PFc(k): return (sW2, vPFC, sPFW2, k*2048*128)
PF_SCHED = {
  2: [PFb(0)], 3: [PFb(1)], 4: [PFb(2)], 5: [PFb(3)], 6: [PFb(4)], 7: [PFc(0)], 8: [PFc(1)],
  "b10": [PFc(2), PFc(3), PFc(4), PFc(5)],
}
if "--pf2" in sys.argv:
  PF_SCHED = {
  0: [PFx(2), PFa(1)], 1: [PFx(3)], 2: [PFx(4), PFa(2)], 3: [PFb(0)], 4: [PFb(1), PFb(2)], 5: [PFb(3)], 6: [PFb(4)], 7: [PFc(0)], 8: [PFc(1)],
  "b10": [PFc(2), PFc(3), PFc(4), PFc(5)],
  }
if "--pf4" in sys.argv:
  PF_SCHED = { 4: [PFc(0)], 5: [PFc(1)], 6: [PFc(2)], 7: [PFc(3)], 8: [PFc(4)], "b10": [PFc(5)] }
if "--pf5" in sys.argv:
  PF_SCHED = { 1: [PFb(0)], 2: [PFb(1)], 3: [PFb(2)], 4: [PFb(3), PFc(0)], 5: [PFb(4), PFc(1)], 6: [PFc(2)], 7: [PFc(3)], 8: [PFc(4)], "b10": [PFc(5)] }
if "--pf3" in sys.argv:
  PF_SCHED = {
  "start": [PFx(2), PFa(1)], 0: [PFx(3)], 1: [PFx(4), PFa(2)], 2: [PFb(0)], 3: [PFb(1)], 4: [PFb(2)], 5: [PFb(3)], 6: [PFb(4)], 7: [PFc(0)], 8: [PFc(1)],
  "b10": [PFc(2), PFc(3), PFc(4), PFc(5)],
  }
_pfn = [0]
def pf_emit(key, guard_grp=False):
    items = PF_SCHED.get(key, []) if not NOPF else []
    for (sr, vo, sb, off) in items:
        wv = 4 + (_pfn[0] % 4)
        _pfn[0] += 1
        a(f"s_cmp_lg_u32 s{sWV}, {wv}")
        a(f"s_cbranch_scc1 L_pfs_{_pfn[0]}")
        a(f"s_add_u32 s{sS0}, s{sb}, {off}")
        a(f"buffer_load_dword v247, v{vo}, {srd(sr)}, s{sS0} offen")
        lab(f"L_pfs_{_pfn[0]}")

def emit_groups(G):
    for g in G:
        for ins in g: a(ins)

a(f"s_lshl_b32 s{sT0}, s{sMT}, 2")
if PROFDBG: a(f"s_add_u32 s{sT0}, s{sT0}, 64")
a(f"v_mov_b32 v{vT+6}, s{sT0}")
a(f"s_lshl_b32 s{sT1}, s{sJ}, 3")
a(f"s_add_u32 s{sT1}, s{sT1}, s{sWV}")
a(f"s_cmp_lg_u32 s{sT1}, 4")
a("s_cbranch_scc1 L_no_nonce")
a(f"s_or_b32 s{sNT}, s92, 1")
a(f"v_mov_b32 v{vT+4}, s{sNT}")
a(f"buffer_store_dword v{vT+4}, v{vT+6}, {srd(sDBG)}, 0 offen sc1")
lab("L_no_nonce")
emit_groups(dma_p0_list(0))
a("s_barrier")
emit_groups(dma_p0_list(1))
emit_groups(dma_p0_list(2))
a(f"s_lshr_b32 s{sT0}, s2, 3")
a(f"s_lshl_b32 s{sT0}, s{sT0}, 6")
a(f"v_add_u32 v{vT}, s{sT0}, v{l}")
a(f"v_and_b32 v{vPFX}, 1023, v{vT}")
a(f"v_mul_u32_u24 v{vPFX}, 1152, v{vPFX}")
a(f"v_lshrrev_b32 v{vT+2}, 10, v{vT}")
a(f"v_lshl_add_u32 v{vPFX}, v{vT+2}, 7, v{vPFX}")
a(f"s_lshr_b32 s{sPFX}, s{sMT}, 3")
a(f"s_mul_i32 s{sPFX}, s{sPFX}, {1024*1152}")
a(f"v_lshrrev_b32 v{vPFA}, 3, v{vT}")
a(f"v_mul_u32_u24 v{vPFA}, 9216, v{vPFA}")
a(f"v_and_b32 v{vT+3}, 3, v{vT}")
a(f"v_bfe_u32 v{vT+7}, v{vT}, 1, 1")
a(f"v_mul_u32_u24 v{vT+7}, 3, v{vT+7}")
a(f"v_add_u32 v{vT+3}, v{vT+3}, v{vT+7}")
a(f"v_bfe_u32 v{vT+7}, v{vT}, 2, 1")
a(f"v_mul_u32_u24 v{vT+7}, 9, v{vT+7}")
a(f"v_add_u32 v{vT+3}, v{vT+3}, v{vT+7}")
a(f"v_lshl_add_u32 v{vPFA}, v{vT+3}, 7, v{vPFA}")
a(f"s_mul_i32 s{sPFW1}, s{sG}, 2304")
a(f"v_lshrrev_b32 v{vPFB}, 4, v{vT}")
a(f"v_mul_u32_u24 v{vPFB}, 9216, v{vPFB}")
a(f"v_and_b32 v{vT+7}, 7, v{vT}")
a(f"v_min_u32 v{vT+7}, 4, v{vT+7}")
a(f"v_cmp_le_u32 vcc, 3, v{vT+7}")
a(f"v_add_u32 v{vT+7}, 2, v{vT+7}")
a("s_nop 1")
a(f"v_cndmask_b32 v{vT+3}, 0, 2, vcc")
a(f"v_add_u32 v{vT+7}, v{vT+7}, v{vT+3}")
a(f"v_bfe_u32 v{vT+3}, v{vT}, 3, 1")
a(f"v_mul_u32_u24 v{vT+3}, 9, v{vT+3}")
a(f"v_add_u32 v{vT+7}, v{vT+7}, v{vT+3}")
a(f"v_lshl_add_u32 v{vPFB}, v{vT+7}, 7, v{vPFB}")
a(f"v_lshlrev_b32 v{vPFC}, 7, v{vT}")
a(f"s_mul_i32 s{sPFW2}, s{sG}, {1152*1152}")
pf_emit("start")


a(f"v_lshrrev_b32 v{t0}, 3, v{l}")
a(f"v_mul_u32_u24 v{vW1OFF}, 9216, v{t0}")
a(f"v_bfe_u32 v{t1}, v{l}, 2, 1")
a(f"v_bfe_u32 v{t2}, v{l}, 4, 1")
a(f"v_xor_b32 v{t1}, v{t1}, v{t2}")
a(f"v_lshlrev_b32 v{t1}, 6, v{t1}")
a(f"v_and_b32 v{t2}, 3, v{l}")
a(f"v_lshlrev_b32 v{t2}, 4, v{t2}")
a(f"v_add3_u32 v{vW1OFF}, v{vW1OFF}, v{t1}, v{t2}")

a(f"v_and_b32 v{t0}, 31, v{l}")
a(f"s_lshl_b32 s{sT0}, s{sW}, 12")
a(f"v_lshlrev_b32 v{t1}, 7, v{t0}")
a(f"v_add_u32 v{t1}, s{sT0}, v{t1}")
a(f"v_bfe_u32 v{t2}, v{l}, 1, 3")
a(f"v_lshrrev_b32 v{t3}, 5, v{l}")
a(f"v_xor_b32 v{t2}, v{t2}, v{t3}")
a(f"v_lshlrev_b32 v{t2}, 4, v{t2}")
a(f"v_add_u32 v{vXR}, v{t1}, v{t2}")
a(f"v_xor_b32 v{vXR+1}, 32, v{vXR}")
a(f"v_xor_b32 v{vXR+2}, 64, v{vXR}")
a(f"v_xor_b32 v{vXR+3}, 0x60, v{vXR}")
a(f"v_lshrrev_b32 v{t0}, 5, v{l}")
a(f"v_bfe_u32 v{t1}, v{l}, 2, 2")
a(f"v_lshl_add_u32 v{t0}, v{t0}, 3, v{t1}")
a(f"v_lshlrev_b32 v{t0}, 8, v{t0}")
a(f"v_bfe_u32 v{t2}, v{l}, 4, 1")
a(f"v_lshlrev_b32 v{t2}, 5, v{t2}")
a(f"v_and_b32 v{t3}, 3, v{l}")
a(f"v_lshlrev_b32 v{t3}, 3, v{t3}")
a(f"v_add3_u32 v{t0}, v{t0}, v{t2}, v{t3}")
a(f"v_add_u32 v{t0}, 16384, v{t0}")
a(f"s_lshl_b32 s{sT0}, s{sGRP}, 1")
a(f"v_xor_b32 v{t2}, s{sT0}, v{t1}")
a(f"v_lshl_add_u32 v{vWR}, v{t2}, 6, v{t0}")
a(f"v_xor_b32 v{vWR+1}, 64, v{vWR}")
a(f"v_lshrrev_b32 v{t0}, 5, v{l}")
a(f"v_lshl_add_u32 v{t0}, v{t0}, 3, v{t1}")
a(f"v_lshlrev_b32 v{t0}, 7, v{t0}")
a(f"v_bfe_u32 v{t2}, v{l}, 4, 1")
a(f"v_lshlrev_b32 v{t2}, 5, v{t2}")
a(f"v_add3_u32 v{t0}, v{t0}, v{t2}, v{t3}")
a(f"v_bfe_u32 v{t2}, v{l}, 3, 1")
a(f"v_lshl_add_u32 v{vW1R}, v{t2}, 6, v{t0}")
a(f"v_xor_b32 v{vW1R+1}, 64, v{vW1R}")
a(f"v_bfe_u32 v{t0}, v{l}, 4, 1")
a(f"v_lshlrev_b32 v{t0}, 10, v{t0}")
a(f"v_lshrrev_b32 v{t1}, 5, v{l}")
a(f"v_lshlrev_b32 v{t1}, 8, v{t1}")
a(f"v_and_b32 v{t2}, 15, v{l}")
a(f"v_lshlrev_b32 v{t2}, 4, v{t2}")
a(f"v_add3_u32 v{vHST}, v{t0}, v{t1}, v{t2}")
a(f"s_lshl_b32 s{sT0}, s{sMT}, 2")
a(f"s_add_u32 s{sT0}, s{sT0}, s{sW}")
a(f"s_mul_i32 s{sT1}, s{sT0}, 144")
a(f"s_mul_i32 s{sT2}, s{sJ}, 9")
a(f"s_add_u32 s{sT2}, s{sT1}, s{sT2}")
a(f"s_lshl_b32 s{sHB}, s{sT2}, 11")
a(f"s_mul_i32 s{sT2}, s{sG}, 36")
a(f"s_add_u32 s{sT2}, s{sT1}, s{sT2}")
a(f"s_mul_i32 s{sT3}, s{sGRP}, 18")
a(f"s_add_u32 s{sT2}, s{sT2}, s{sT3}")
a(f"s_lshl_b32 s{sHL}, s{sT2}, 11")
a(f"s_lshl_b32 s{sT0}, s{sMT}, 2")
a(f"s_add_u32 s{sT0}, s{sT0}, s{sG}")
a(f"s_lshl_b32 s{sT0}, s{sT0}, 2")
a(f"s_add_u32 s{sT0}, s{sT0}, s{sW}")
a(f"s_lshl_b32 s{sT0}, s{sT0}, 8")
a(f"s_add_u32 s{sFLC}, s{sT0}, {WS_FLAG_H}")
a(f"s_lshl_b32 s{sT1}, s{sNB}, 2")
a(f"s_add_u32 s{sFLH}, s{sFLC}, s{sT1}")
a(f"s_mul_i32 s{sT0}, s{sG}, {1152*1152}")
a(f"s_lshl_b32 s{sT1}, s{sNB}, 8")
a(f"s_add_u32 s{sW2B}, s{sT0}, s{sT1}")
a(f"s_mul_i32 s{sT1}, s{sW}, {4*1152}")
a(f"s_add_u32 s{sW2B}, s{sW2B}, s{sT1}")
a(f"s_lshl_b32 s{sT1}, s{sNB}, 5")
a(f"s_add_u32 s{sW2E}, s{sT0}, s{sT1}")
a(f"s_add_u32 s{sW2E}, s{sW2E}, 1024")
a(f"s_mul_i32 s{sT1}, s{sW}, {288*1152}")
a(f"s_add_u32 s{sW2E}, s{sW2E}, s{sT1}")

def dma_t1_all(stage, dr0, fcoff):
    slot = (stage % 4) * SLOT
    a(f"s_mul_i32 s{sT2}, s{sWV}, {8*9216}")
    a(f"s_add_u32 s{sT2}, s{sT2}, s{sF0B}")
    for k in range(5):
        if k == 4:
            a(f"s_cmp_ge_u32 s{sWV}, 4")
            a(f"s_cbranch_scc1 L_skip_t1_{stage}")
        a(f"s_add_u32 m0, s{sT6}, {slot + 8192*k}")
        a(f"s_add_u32 s{sT1}, s{sT2}, {(dr0 + 64*k)*9216 + fcoff}")
        a(f"buffer_load_dwordx4 v{vW1OFF}, {srd(sW1)}, s{sT1} offen lds")
    lab(f"L_skip_t1_{stage}")

def dma_t1_4w(stage, dr0, fcoff):
    slot = (stage % 4) * SLOT
    G = [[f"s_mul_i32 s{sT2}, s{sW}, {8*9216}", f"s_add_u32 s{sT2}, s{sT2}, s{sF0B}"]]
    for k in range(9):
        G.append([f"s_add_u32 m0, s{sT6}, {slot + 4096*k}",
                  f"s_add_u32 s{sT1}, s{sT2}, {(dr0 + 32*k)*9216 + fcoff}",
                  f"buffer_load_dwordx4 v{vW1OFF}, {srd(sW1)}, s{sT1} offen lds"])
    return G

def dma_x_8w(stage, dr0):
    slot = (stage % 4) * SLOT
    G = [[f"s_mul_i32 s{sT2}, s{sWV}, {8*9216}", f"s_add_u32 s{sT2}, s{sT2}, s{sF0B}",
          f"s_mul_i32 s{sT3}, s{sWV}, {16*9216}", f"s_add_u32 s{sT3}, s{sT3}, s{sFS}"]]
    for k in range(3):
        G.append([f"s_add_u32 m0, s{sT6}, {slot + 8192*k}",
                  f"s_add_u32 s{sT1}, s{sT2}, {(dr0 + 64*k)*9216 + 384}",
                  f"buffer_load_dwordx4 v{vW1OFF}, {srd(sW1)}, s{sT1} offen lds"])
    G.append([f"s_add_u32 m0, s{sT6}, {slot + 24576}",
              f"s_add_u32 s{sT1}, s{sT3}, {dr0*9216}",
              f"buffer_load_dwordx4 v{vXOFF}, {srd(sW1)}, s{sT1} offen lds"])
    G.append([f"s_cmp_ge_u32 s{sWV}, 4", f"s_cbranch_scc1 L_x8_{stage}",
              f"s_add_u32 m0, s{sT6}, {slot + 24576 + 8192}",
              f"s_add_u32 s{sT1}, s{sT3}, {(dr0 + 128)*9216}",
              f"buffer_load_dwordx4 v{vXOFF}, {srd(sW1)}, s{sT1} offen lds", f"L_x8_{stage}:"])
    return G

def dma_x_4w(stage, dr0):
    slot = (stage % 4) * SLOT
    G = [[f"s_mul_i32 s{sT2}, s{sW}, {8*9216}", f"s_add_u32 s{sT2}, s{sT2}, s{sF0B}",
          f"s_mul_i32 s{sT3}, s{sW}, {16*9216}", f"s_add_u32 s{sT3}, s{sT3}, s{sFS}"]]
    for k in range(6):
        G.append([f"s_add_u32 m0, s{sT6}, {slot + 4096*k}",
                  f"s_add_u32 s{sT1}, s{sT2}, {(dr0 + 32*k)*9216 + 384}",
                  f"buffer_load_dwordx4 v{vW1OFF}, {srd(sW1)}, s{sT1} offen lds ;@d{stage}"])
    for k in range(3):
        G.append([f"s_add_u32 m0, s{sT6}, {slot + 24576 + 4096*k}",
                  f"s_add_u32 s{sT1}, s{sT3}, {(dr0 + 64*k)*9216}",
                  f"buffer_load_dwordx4 v{vXOFF}, {srd(sW1)}, s{sT1} offen lds ;@d{stage}"])
    return G

def p0_reads(ks):
    t, sp = ks // 4, ks % 4
    so = (t % 2) * SLOT
    buf = ks % 3
    R = []
    R.append(f"ds_read_b128 {vr(vX+4*ks)}, v{vXR+sp} offset:{so}")
    for tl in range(2):
        for e4 in range(2):
            d = vAF + buf*8 + tl*4 + e4*2
            R.append(f"ds_read_b64_tr_b16 v[{d}:{d+1}], v{vWR+tl} offset:{so + (16*sp + 4*e4)*256}")
    return R

def toggle_p0(t):
    if t % 2 == 0 and t > 0:
        op = "v_add_u32" if (t % 4) == 2 else "v_subrev_u32"
        for r in list(range(vXR, vXR+4)) + [vWR, vWR+1]:
            a(f"{op} v{r}, {2*SLOT}, v{r}")

a("s_waitcnt vmcnt(8)")
a("s_barrier")
stamp(1, True)
pf_emit(0)
dq0 = dma_p0_list(3)
for ins in p0_reads(0): a(ins)
for ins in p0_reads(1): a(ins)
for ks in range(36):
    nxt = ks + 2
    pend = []
    if nxt % 4 == 0:
        t = nxt // 4
        a(f"s_waitcnt vmcnt(8) lgkmcnt(0)")
        if t == 8:
            a(f"s_cmp_lg_u32 s{sWV}, 4")
            a("s_cbranch_scc1 L_no_nonce2")
            a(f"s_mov_b32 s{sSPIN}, 0")
            lab("L_nonce_chk")
            a(f"v_readfirstlane_b32 s{sT0}, v{vT+4}")
            a(f"s_cmp_lg_u32 s{sT0}, 0")
            a("s_cbranch_scc1 L_nonce_ok")
            a(f"s_add_u32 s{sSPIN}, s{sSPIN}, 1")
            a(f"s_cmp_gt_u32 s{sSPIN}, {SPIN_MAX}")
            a("s_cbranch_scc1 L_nonce_ok")
            a(f"buffer_load_dword v{vT+4}, v{vT+6}, {srd(sDBG)}, 0 offen sc1")
            a("s_waitcnt vmcnt(0)")
            a("s_branch L_nonce_chk")
            lab("L_nonce_ok")
            a(f"v_mov_b32 v{vT+5}, s{sT0}")
            a(f"v_mov_b32 v{vT+6}, {LDS_NONCE}")
            a(f"ds_write_b32 v{vT+6}, v{vT+5}")
            lab("L_no_nonce2")
        a("s_barrier")
        stamp(1 + t, True) if PROF0 else None
        pf_emit(t)
        if t == 4:
            a(f"s_cmp_lg_u32 s{sWV}, 4")
            a("s_cbranch_scc1 L_no_nonce3")
            a(f"buffer_load_dword v{vT+4}, v{vT+6}, {srd(sDBG)}, 0 offen sc1")
            lab("L_no_nonce3")
        assert not dq0
        if t <= 5:
            dq0 = dma_p0_list(t + 3)
        elif t == 6:
            dq0 = dma_t1_8w(9, 0, 256)
        elif t == 7:
            dq0 = dma_t1_8w(10, 288, 256)
            a(f"v_lshrrev_b32 v{vXOFF}, 2, v{vLANE}")
            a(f"v_mul_u32_u24 v{vXOFF}, 9216, v{vXOFF}")
            a(f"v_and_b32 v{vT+7}, 3, v{vLANE}")
            a(f"v_lshl_add_u32 v{vXOFF}, v{vT+7}, 4, v{vXOFF}")
        elif t == 8:
            dq0 = dma_x_8w(11, 0)
        if t <= 8:
            toggle_p0(t)
    if nxt < 36:
        pend = p0_reads(nxt)
    nout = 5 if ks + 1 < 36 else 0
    a(f"s_waitcnt lgkmcnt({nout})")
    buf = ks % 3
    for tl in range(2):
        acc = vACC1 + 16*tl
        af = vAF + buf*8 + tl*4
        a(f"v_mfma_f32_32x32x16_bf16 {vr(acc,16)}, {vr(af)}, {vr(vX+4*ks)}, {vr(acc,16) if ks else 0}")
        for ins in (pend[:3] if tl == 0 else pend[3:]): a(ins)
        nb_ = next(k for k in range(ks+1, 40) if (k + 2) % 4 == 0)
        slots = (nb_ - ks)*2 - tl
        if dq0:
            ng = -(-len(dq0) // slots)
            emit_groups([dq0.pop(0) for _ in range(ng)])

stamp(2)
a(f"v_mov_b32 v{vT}, {LDS_NONCE}")
a(f"ds_read_b32 v{vT+1}, v{vT}")
a(f"s_lshl_b32 s{sT6}, s{sW}, 10")
a("s_waitcnt lgkmcnt(0)")
a(f"v_readfirstlane_b32 s{sNONCE}, v{vT+1}")
a(f"s_cmp_lg_u32 s{sGRP}, 0")
a("s_cbranch_scc1 L_pathB")

def epi_tile(A, P, tt, side=None, per=2):
    for b in range(4):
        if side:
            for _ in range(per):
                if side:
                    for ins in side.pop(0): a(ins)
        rr = [A + 4*b + i for i in range(4)]
        tt_ = [vT + i for i in range(4)]
        for i in range(4): a(f"v_mul_f32 v{tt_[i]}, s{sLOG}, v{rr[i]}")
        for i in range(4): a(f"v_exp_f32 v{tt_[i]}, v{tt_[i]}")
        for i in range(4): a(f"v_add_f32 v{tt_[i]}, 1.0, v{tt_[i]}")
        for i in range(4): a(f"v_rcp_f32 v{tt_[i]}, v{tt_[i]}")
        for i in range(4): a(f"v_mul_f32 v{tt_[i]}, v{rr[i]}, v{tt_[i]}")
        a(f"v_cvt_pk_bf16_f32 v{P+2*b}, v{tt_[0]}, v{tt_[1]}")
        a(f"v_cvt_pk_bf16_f32 v{P+2*b+1}, v{tt_[2]}, v{tt_[3]}")
        if b % 2 == 1:
            p = b // 2
            if p == 0:
                a(f"s_add_u32 s{sT0}, s{sHB}, {tt*2048}")
            a(f"buffer_store_dwordx4 {vr(P+4*p)}, v{vHST}, {srd(sWS)}, s{sT0} offen offset:{512*p}" + ("" if PLAINH else " sc1") + f" ;@st{tt}")

_pk = [0]
def epi(acc, ntiles, tt0, side=None, per=2):
    for ti in range(ntiles):
        epi_tile(acc + 16*ti, vAF + 8*(_pk[0] % 3), tt0 + ti, side, per)
        _pk[0] += 1
    while side:
        for ins in side.pop(0): a(ins)

def hreg(hset): return vHS + 16*hset
def h_groups(boff, tile, hset, tag):
    d = hreg(hset)
    o = tile*2048 + boff
    G = [[(f"s_add_u32 s{sS0}, s{sHL}, {o}" if o >= 0 else f"s_sub_u32 s{sS0}, s{sHL}, {-o}"),
          f"buffer_load_dwordx4 {vr(d)}, v{vL16}, {srd(sWS)}, s{sS0} offen sc1 ;@{tag}"],
         [f"buffer_load_dwordx4 {vr(d+4)}, v{vL16}, {srd(sWS)}, s{sS0} offen offset:1024 sc1 ;@{tag}"],
         [f"s_add_u32 s{sS1}, s{sS0}, {9*2048}",
          f"buffer_load_dwordx4 {vr(d+8)}, v{vL16}, {srd(sWS)}, s{sS1} offen sc1 ;@{tag}"],
         [f"buffer_load_dwordx4 {vr(d+12)}, v{vL16}, {srd(sWS)}, s{sS1} offen offset:1024 sc1 ;@{tag}"]]
    return G

def flags(tt0, n, tmp=vT+4):
    a(f"v_lshlrev_b32 v{tmp}, 4, v{vLANE}")
    a(f"v_mov_b32 v{tmp+1}, s{sNONCE}")
    a(f"v_cmp_gt_u32 vcc, {n}, v{vLANE}")
    a(f"s_add_u32 s{sT0}, s{sFLH}, {tt0*16}")
    a(f"s_and_saveexec_b64 s[{sEX}:{sEX+1}], vcc")
    a(f"buffer_store_dword v{tmp+1}, v{tmp}, {srd(sWS)}, s{sT0} offen sc1 ;@fl")
    a(f"s_mov_b64 exec, s[{sEX}:{sEX+1}]")
    return
    a(f"v_lshlrev_b32 v{tmp}, 7, v{vLANE}")
    a(f"v_cmp_gt_u32 vcc, {16*n}, v{vLANE}")
    a(f"s_add_u32 s{sT0}, s{sHB}, {tt0*2048}")
    a(f"s_and_saveexec_b64 s[{sEX}:{sEX+1}], vcc")
    a(f"buffer_load_dword v247, v{tmp}, {srd(sWS)}, s{sT0} offen sc1")
    a(f"s_mov_b64 exec, s[{sEX}:{sEX+1}]")

def blk_reads(ks, ntl, rowbytes, steps_per_stage):
    sp = ks % steps_per_stage
    buf = ks % 3
    R = []
    for tl in range(ntl):
        for e4 in range(2):
            d = vAF + buf*8 + tl*4 + e4*2
            R.append(f"ds_read_b64_tr_b16 v[{d}:{d+1}], v{vCUR+tl} offset:{(16*sp + 4*e4)*rowbytes}")
    return R

def dma_t3_4w(stage):
    slot = (stage % 4) * SLOT
    G = [[f"s_mul_i32 s{sT2}, s{sW}, {16*9216}", f"s_add_u32 s{sT2}, s{sT2}, s{sFS}"]]
    for k in range(9):
        G.append([f"s_add_u32 m0, s{sT6}, {slot + 4096*k}",
                  f"s_add_u32 s{sT1}, s{sT2}, {64*k*9216}",
                  f"buffer_load_dwordx4 v{vXOFF}, {srd(sW1)}, s{sT1} offen lds"])
    return G

TORDER = [2, 3, 0, 1, 4, 5, 6, 7, 8]
def fo_rows(tile, apar):
    if tile < 8: return apar*32 + 32*tile
    return 0 if apar else 256

def p2_extra(stage):
    slot = (stage % 4) * SLOT
    tile = TORDER[stage - 14]
    r0, r1 = fo_rows(tile, 0), fo_rows(tile, 1)
    return [f"s_add_u32 m0, s{sT6}, {slot + 32768}",
            f"s_and_b32 s{sT2}, s{sW}, 1",
            f"s_mul_i32 s{sT2}, s{sT2}, {(r1 - r0)*1152}",
            f"s_add_u32 s{sT2}, s{sT2}, s{sW2E}",
            f"s_add_u32 s{sT2}, s{sT2}, {r0*1152}",
            f"buffer_load_dwordx4 v{vXR+2}, {srd(sW2)}, s{sT2} offen lds ;@d{stage}"]

def p2_main(stage, half):
    slot = (stage % 4) * SLOT
    tile = TORDER[stage - 14]
    return [[f"s_add_u32 m0, s{sT6}, {slot + aa*8192 + half*4096}",
             f"s_add_u32 s{sT2}, s{sW2B}, {(288*aa + fo_rows(tile, aa & 1) + 16*half)*1152}",
             f"buffer_load_dwordx4 v{vXR}, {srd(sW2)}, s{sT2} offen lds ;@d{stage}"] for aa in range(4)]

def dma_p2_4w(stage, offs):
    return p2_main(stage, 0) + p2_main(stage, 1) + [p2_extra(stage)]

def w2offs3_l():
    return [
     f"v_lshrrev_b32 v{vT}, 4, v{vLANE}",
     f"v_mul_u32_u24 v{vXR}, 1152, v{vT}",
     f"s_and_b32 s{sS0}, s{sW}, 1",
     f"s_lshl_b32 s{sS0}, s{sS0}, 2",
     f"v_add_u32 v{vT}, s{sS0}, v{vT}",
     f"v_bfe_u32 v{vT+1}, v{vLANE}, 1, 3",
     f"v_xor_b32 v{vT+1}, v{vT+1}, v{vT}",
     f"v_lshl_add_u32 v{vXR}, v{vT+1}, 5, v{vXR}",
     f"v_and_b32 v{vT+1}, 1, v{vLANE}",
     f"v_lshl_add_u32 v{vXR}, v{vT+1}, 4, v{vXR}",
     f"v_lshrrev_b32 v{vT}, 1, v{vLANE}",
     f"v_mul_u32_u24 v{vXR+2}, 1152, v{vT}",
     f"v_lshl_add_u32 v{vXR+2}, v{vT+1}, 4, v{vXR+2}"]

vW2E = 166
def p2_misc_l():
    return [
     f"v_lshlrev_b32 v{vL16}, 4, v{vLANE}",
     f"v_lshlrev_b32 v{vFLA}, 2, v{vLANE}",
     f"v_bfe_u32 v{vP2T+1}, v{vLANE}, 4, 1",
     f"v_bfe_u32 v{vP2T+2}, v{vLANE}, 2, 2",
     f"v_lshl_add_u32 v{vP2T+1}, v{vP2T+1}, 2, v{vP2T+2}",
     f"v_lshrrev_b32 v{vP2T}, 5, v{vLANE}",
     f"v_lshl_add_u32 v{vP2T}, v{vP2T}, 4, v{vP2T+1}",
     f"v_and_b32 v{vP2T+2}, 3, v{vLANE}",
     f"v_lshlrev_b32 v{vP2T+2}, 3, v{vP2T+2}",
     f"v_lshl_add_u32 v{vW2R}, v{vP2T}, 8, v{vP2T+2}",
     f"v_lshl_add_u32 v{vW2R}, v{vP2T+1}, 5, v{vW2R}",
     f"s_lshl_b32 s{sS0}, s{sGRP}, 14",
     f"v_add_u32 v{vW2R}, s{sS0}, v{vW2R}",
     f"v_lshl_add_u32 v{vW2E}, v{vP2T}, 5, v{vP2T+2}",
     f"s_lshl_b32 s{sS0}, s{sGRP}, 11",
     f"s_add_u32 s{sS0}, s{sS0}, 32768",
     f"v_add_u32 v{vW2E}, s{sS0}, v{vW2E}"]

def poll0_l():
    return [f"buffer_load_dword v{vPOLL}, v{vFLA}, {srd(sWS)}, s{sFLC} offen sc1"]

class Side:
    def __init__(self): self.q = []
    def add(self, min_step, instrs):
        for i in instrs: self.q.append((min_step, i))
    def emit(self, step, n):
        k = 0
        while self.q and k < n and self.q[0][0] <= step:
            a(self.q.pop(0)[1]); k += 1
    def flush(self):
        while self.q: a(self.q.pop(0)[1])

def block2(stA, stB, dma0, dma1, side, at={}, wmid=None, wend=None):
    a(f"v_add_u32 v{vCUR}, {(stA%4)*SLOT}, v{vW1R}")
    a(f"v_add_u32 v{vCUR+1}, {(stA%4)*SLOT}, v{vW1R+1}")
    for ins in blk_reads(0, 2, 128, 18): a(ins)
    for ins in blk_reads(1, 2, 128, 18): a(ins)
    dq = list(dma0)
    for ks in range(36):
        nxt = ks + 2
        if nxt == 18:
            vwait(wmid, "lgkmcnt(0)")
            a("s_barrier")
            a(f"v_add_u32 v{vCUR}, {(stB%4)*SLOT}, v{vW1R}")
            a(f"v_add_u32 v{vCUR+1}, {(stB%4)*SLOT}, v{vW1R+1}")
            dq = list(dma1)
        if nxt == 36:
            vwait(wend, "lgkmcnt(0)")
            a("s_barrier")
        for ins in at.get(ks, []): a(ins)
        pend = blk_reads(nxt, 2, 128, 18) if nxt < 36 else []
        buf = ks % 3
        for tl in range(2):
            acc = vACC2 + 16*tl
            af = vAF + buf*8 + tl*4
            nx1 = 4 if ks + 1 < 36 else 0
            nx2 = 2 if (tl == 1 and nxt < 36) else 0
            a(f"s_waitcnt lgkmcnt({(2 if tl == 0 else 0) + nx1 + nx2})")
            a(f"v_mfma_f32_32x32x16_bf16 {vr(acc,16)}, {vr(af)}, {vr(vX+4*ks)}, {vr(acc,16) if ks else 0}")
            for ins in (pend[:2] if tl == 0 else pend[2:]): a(ins)
            if tl == 1 and dq:
                for ins in dq.pop(0): a(ins)
            else:
                side.emit(ks, 3)
    side.flush()

_pc = [0]
def snap_l(tag="snap"):
    return [f"buffer_load_dword v{vPOLL}, v{vFLA}, {srd(sWS)}, s{sFLC} offen sc1 ;@{tag}"]

def snap_check(tiles):
    _pc[0] += 1
    n = _pc[0]
    lo = sum(0xF << (4*t) for t in tiles if t < 8)
    hi = 0xF if 8 in tiles else 0
    def chk():
        a(f"v_cmp_ne_u32 vcc, s{sNONCE}, v{vPOLL}")
        a(f"s_and_b32 s{sT0}, vcc_lo, 0x{lo:x}")
        if hi:
            a(f"s_and_b32 s{sT1}, vcc_hi, 0x{hi:x}")
            a(f"s_or_b32 s{sT0}, s{sT0}, s{sT1}")
    chk()
    a(f"s_cbranch_scc0 L_ok_{n}")
    a(f"s_mov_b32 s{sSPIN}, 0")
    lab(f"L_spin_{n}")
    for ins in snap_l("skip"): a(ins)
    a(f"s_add_u32 s{sSPIN}, s{sSPIN}, 1")
    a(f"s_cmp_gt_u32 s{sSPIN}, {SPIN_MAX}")
    a(f"s_cbranch_scc1 L_ok_{n}")
    a("s_waitcnt vmcnt(0)")
    chk()
    a(f"s_cbranch_scc1 L_spin_{n}")
    lab(f"L_ok_{n}")

def h_issue(tile, hset):
    d = vHS + 16*hset
    if isinstance(tile, int):
        a(f"s_add_u32 s{sT0}, s{sHL}, {tile*2048}")
    else:
        a(f"s_lshl_b32 s{sT0}, {tile}, 11")
        a(f"s_add_u32 s{sT0}, s{sT0}, s{sHL}")
    a(f"s_add_u32 s{sT1}, s{sT0}, {9*2048}")
    a(f"buffer_load_dwordx4 {vr(d)}, v{vL16}, {srd(sWS)}, s{sT0} offen sc1")
    a(f"buffer_load_dwordx4 {vr(d+4)}, v{vL16}, {srd(sWS)}, s{sT0} offen offset:1024 sc1")
    a(f"buffer_load_dwordx4 {vr(d+8)}, v{vL16}, {srd(sWS)}, s{sT1} offen sc1")
    a(f"buffer_load_dwordx4 {vr(d+12)}, v{vL16}, {srd(sWS)}, s{sT1} offen offset:1024 sc1")

def h_issue_base(base_sgpr_expr, tile, hset):
    d = vHS + 16*hset
    a(f"s_add_u32 s{sT0}, s{sHL}, {tile*2048 + base_sgpr_expr}" if tile*2048 + base_sgpr_expr >= 0 else f"s_sub_u32 s{sT0}, s{sHL}, {-(tile*2048 + base_sgpr_expr)}")
    a(f"s_add_u32 s{sT1}, s{sT0}, {9*2048}")
    a(f"buffer_load_dwordx4 {vr(d)}, v{vL16}, {srd(sWS)}, s{sT0} offen sc1")
    a(f"buffer_load_dwordx4 {vr(d+4)}, v{vL16}, {srd(sWS)}, s{sT0} offen offset:1024 sc1")
    a(f"buffer_load_dwordx4 {vr(d+8)}, v{vL16}, {srd(sWS)}, s{sT1} offen sc1")
    a(f"buffer_load_dwordx4 {vr(d+12)}, v{vL16}, {srd(sWS)}, s{sT1} offen offset:1024 sc1")

def zero_accp_l():
    return [f"v_mov_b32 v{vACCP+r}, 0" for r in range(72)]

cm("---- path A")
vmA = VM(["d10"]*4 + ["d11"]*4)
CUR["vm"] = vmA
sd = Side()
sd.add(0, w2offs3_l())
block2(9, 10, dma_x_4w(12, 192), dma_x_4w(13, 384), sd, wmid=["d10"], wend=["d11"])
stamp(3)
epi(vACC1+16, 1, 1)
for ins in p2_misc_l(): a(ins)
for ins in snap_l(): a(ins)
epi(vACC1, 1, 0)
vwait(["d12", "snap"])
stamp(4)
a("s_barrier")
snap_check([2, 3])
epi(vACC2, 2, 4, side=h_groups(18*2048, TORDER[0], 2, "h0x") + h_groups(0, TORDER[0], 0, "h0"), per=1)
vwait(["st0", "st1", "d13"])
flags(0, 2)
stamp(5)
a("s_barrier")
stamp(6)
stamp(7)
a("s_branch L_p2")

lab("L_pathB")
cm("---- path B")
vmB = VM(["d10"]*4 + ["d11"]*4)
CUR["vm"] = vmB
a("s_nop 7")
epi(vACC1, 2, 2)
vwait(["d10"])
stamp(3)
a("s_barrier")
for ins in w2offs3_l(): a(ins)
for ins in [f"v_lshrrev_b32 v{vT}, 5, v{vLANE}",
            f"v_bfe_u32 v{vT+1}, v{vLANE}, 2, 2",
            f"v_lshl_add_u32 v{vT}, v{vT}, 3, v{vT+1}",
            f"v_lshlrev_b32 v{vT}, 6, v{vT}",
            f"v_bfe_u32 v{vT+1}, v{vLANE}, 4, 1",
            f"v_lshlrev_b32 v{vT+1}, 5, v{vT+1}",
            f"v_and_b32 v{vT+2}, 3, v{vLANE}",
            f"v_lshlrev_b32 v{vT+2}, 3, v{vT+2}",
            f"v_add3_u32 v{vWR}, v{vT}, v{vT+1}, v{vT+2}",
            f"v_add_u32 v{vWR}, 24576, v{vWR}"]: a(ins)
a("s_waitcnt vmcnt(0)")
vmB.q = []
flags(2, 2)
pf_emit("b10")
stamp(4)
a("s_barrier")
stamp(5)
vAFX = 160
def b3_set(stage):
    sl = (stage % 4)*SLOT
    a(f"v_add_u32 v{vCUR}, {sl}, v{vW1R}")
    a(f"v_add_u32 v{vCUR+1}, {sl}, v{vW1R+1}")
    a(f"v_add_u32 v{vWR+1}, {sl}, v{vWR}")
def b3_reads(ks):
    sp, buf = ks % 12, ks % 3
    R = []
    for tl in range(2):
        for e4 in range(2):
            d = vAF + buf*8 + tl*4 + e4*2
            R.append(f"ds_read_b64_tr_b16 v[{d}:{d+1}], v{vCUR+tl} offset:{(16*sp + 4*e4)*128}")
    for e4 in range(2):
        d = vAFX + buf*4 + e4*2
        R.append(f"ds_read_b64_tr_b16 v[{d}:{d+1}], v{vWR+1} offset:{(16*sp + 4*e4)*64}")
    return R
b3_set(11)
for ins in b3_reads(0): a(ins)
for ins in b3_reads(1): a(ins)
dq = dma_p2_4w(14, vXR)
for ks in range(36):
    nxt = ks + 2
    if nxt == 12:
        a("s_waitcnt lgkmcnt(0)")
        a("s_barrier")
        b3_set(12)
        dq = dma_p2_4w(15, vXR)
    if nxt == 24:
        vwait(["d14"], "lgkmcnt(0)")
        a("s_barrier")
        b3_set(13)
        dq = dma_p2_4w(16, vXR)
    if nxt == 36:
        vwait(["d15"], "lgkmcnt(0)")
        a("s_barrier")
    pend = b3_reads(nxt) if nxt < 36 else []
    buf = ks % 3
    for tl in range(3):
        acc = (vACC2 + 16*tl) if tl < 2 else vACC1
        af = (vAF + buf*8 + tl*4) if tl < 2 else (vAFX + buf*4)
        nx1 = 6 if ks + 1 < 36 else 0
        nx2 = 2*tl if nxt < 36 else 0
        a(f"s_waitcnt lgkmcnt({min(15, 2*(2 - tl) + nx1 + nx2)})")
        a(f"v_mfma_f32_32x32x16_bf16 {vr(acc,16)}, {vr(af)}, {vr(vX+4*ks)}, {vr(acc,16) if ks else 0}")
        for ins in pend[2*tl:2*tl+2]: a(ins)
        if tl == 2 and dq:
            for ins in dq.pop(0): a(ins)
stamp(6)
def dmaB_part(T): return p2_main(T, 1)
for ins in p2_misc_l(): a(ins)
epi(vACC2, 1, 6, side=[snap_l()] + dmaB_part(17), per=2)
epi(vACC2+16, 1, 7)
vwait(["d16", "snap"])
a("s_barrier")
snap_check([0, 1, 4, 5])
epi(vACC1, 1, 8, side=h_groups(0, TORDER[3], 0, "h3") + dmaB_part(18) + h_groups(0, TORDER[4], 1, "h4"), per=3)
vwait(["d17"])
a("s_barrier")
emit_groups(dmaB_part(19))
stamp(7)

vRA = 176
vRE = 192
def p2_reads(idx, sl, hoff):
    st, jn = idx // 9, idx % 9
    d = vAF2 + (idx % 6)*4
    so = (sl % 2)*SLOT
    if jn < 8:
        return [f"ds_read_b64_tr_b16 v[{d+2*e4}:{d+2*e4+1}], v{vRA + 8*(sl//2) + jn} offset:{so + hoff*16384 + st*8192 + e4*2048}" for e4 in range(2)]
    return [f"ds_read_b64_tr_b16 v[{d+2*e4}:{d+2*e4+1}], v{vRE + sl//2} offset:{so + hoff*2048 + st*1024 + e4*256}" for e4 in range(2)]

def p2_unrolled(G):
    tg = "AB"[G]
    for jn in range(8):
        a(f"v_xor_b32 v{vRA+jn}, {jn << 5}, v{vW2R}")
        a(f"v_add_u32 v{vRA+8+jn}, {2*SLOT}, v{vRA+jn}")
    a(f"v_mov_b32 v{vRE}, v{vW2E}")
    a(f"v_add_u32 v{vRE+1}, {2*SLOT}, v{vW2E}")
    a(f"s_add_u32 s95, s{sHL}, {9*2048}")
    if G == 0:
        segs = [(0, "x", 2, "h0x"), (0, "o", 0, "h0"), (1, "x", 3, "h1x"), (1, "o", 1, "h1"), (2, "x", 0, "h2x"), (2, "o", 2, "h2")] + [(s_, "o", (s_ % 3) if s_ != 3 else 3, f"h{s_}") for s_ in range(3, 9)]
    else:
        segs = [(s_, "o", s_ % 3, f"h{s_}") for s_ in range(3, 9)]
    def rd(si, idx):
        stage, kind, _, _ = segs[si]
        return p2_reads(idx, (14 + stage) % 4, 1 if kind == "x" else 0)
    for i in range(4):
        for ins in rd(0, i): a(ins)
    for si, (s_, kind, hset, hname) in enumerate(segs):
        ev = {}
        def add(pos, blk): ev.setdefault(pos, []).append(blk)
        def add_h(pos, sh, hs=None, other=False):
            t2 = TORDER[sh]
            d = hreg(sh % 3 if hs is None else hs)
            for k in range(4):
                blk = []
                if k % 2 == 0:
                    blk.append(f"s_add_u32 s{sT1}, {'s95' if k >= 2 else f's{sHL}'}, {t2*2048 + (18*2048 if other else 0)}")
                blk += [f"buffer_load_dwordx4 {vr(d+4*k)}, v{vL16}, {srd(sWS)}, s{sT1} offen offset:{1024*(k%2)} sc1"]
                add(pos + k, blk)
        def add_d(dpos, T):
            for aa, g_ in enumerate(p2_main(T, G)):
                add(dpos + aa, g_)
            if G == 0:
                add(dpos + 4, p2_extra(T))
        p0 = 0 if G == 0 else 9
        if G == 0 and s_ <= 2:
            if (s_, kind) == (0, "x"):
                add_h(1, 1, hs=3, other=True)
                add_h(6, 1, hs=1)
                add(12, snap_l())
            if (s_, kind) == (0, "o"):
                add(2, [("WAIT", ["st4", "st5"]), ("FLAGS", 4, 2)])
                add(9, [("WAIT", ["snap"]), ("CHK", [0, 1])])
                add_h(10, 2, hs=2)
            if (s_, kind) == (1, "x"):
                add_h(1, 2, hs=0, other=True)
                add_d(5, 17)
            if (s_, kind) == (1, "o"):
                add_h(1, 3, hs=3)
                add(8, snap_l())
            if (s_, kind) == (2, "x"):
                add(0, [("WAIT", ["snap"]), ("CHK", [4, 5])])
                add_h(1, 4, hs=1)
                add_d(5, 18)
        else:
            if s_ + 2 <= 8:
                if s_ == 4: p0 = 10
                chk = {4: [6, 7, 8]}.get(s_)
                if chk:
                    add(p0, [("WAIT", ["snap"]), ("CHK", chk)])
                if s_ == 4: add(0, snap_l())
                if G == 1 and s_ == 3:
                    add(0, [("WAIT", ["st6", "st7", "st8"]), ("FLAGS", 6, 3)])
                add_h(p0 + 1, s_ + 2)
            T = 16 + G + s_
            if T <= 22:
                add_d(5 if G == 0 else 14, T)
        if PROF2 and kind == "o": stamp(1 + s_, 2)
        vwait([hname])
        last = (si == len(segs) - 1)
        for idx in range(18):
            st, jn = idx // 9, idx % 9
            if idx == 14 and kind == "o" and s_ < 8:
                vwait([f"d{15+s_}"])
                a("s_barrier")
            nout = 6 if not (last and idx >= 15) else 2*(17 - idx)
            a(f"s_waitcnt lgkmcnt({nout})")
            af = vAF2 + (idx % 6)*4
            nx = idx + 4
            r_ = rd(si, nx) if nx < 18 else (rd(si+1, nx - 18) if not last else [None, None])
            for mh in range(2):
                acc = vACCP + (jn*2 + mh)*4
                hf = hreg(hset) + st*8 + mh*4
                a(f"v_mfma_f32_16x16x32_bf16 {vr(acc)}, {vr(af)}, {vr(hf)}, {vr(acc) if not (si == 0 and st == 0) else 0}")
                if r_[mh]: a(r_[mh])
            for blk in ev.get(idx, []):
                for ins in blk:
                    if isinstance(ins, tuple):
                        if ins[0] == "CHK": snap_check(ins[1])
                        elif ins[0] == "WAIT": vwait(ins[1])
                        elif ins[0] == "FLAGS": flags(ins[1], ins[2], tmp=vP2T)
                    else: a(ins)

stamp(8)
CUR["vm"] = vmB
p2_unrolled(1)
a("s_branch L_p2_done")
lab("L_p2")
stamp(8)
CUR["vm"] = vmA
p2_unrolled(0)
CUR["vm"] = None
lab("L_p2_done")
stamp(9)
if PROF4: a("s_memrealtime s[64:65]")
a(f"s_mul_i32 s{sT0}, s{sW}, 9216")
a(f"v_add_u32 v{vP2T+1}, s{sT0}, v{vL16}")
a(f"v_add_u32 v{vP2T}, {3*SLOT}, v{vP2T+1}")
a(f"s_lshl_b32 s{sT2}, s{sMT}, 2")
a(f"s_add_u32 s{sT2}, s{sT2}, s{sNB}")
a(f"s_lshl_b32 s{sT2}, s{sT2}, 2")
a(f"s_add_u32 s{sT2}, s{sT2}, s{sW}")
a(f"s_lshl_b32 s{sT2}, s{sT2}, 1")
a(f"s_add_u32 s{sT2}, s{sT2}, s{sGRP}")
a(f"s_mul_i32 s{sT2}, s{sT2}, {4*6*1024}")
a(f"s_add_u32 s{sHL}, s{sT2}, {WS_RS}")
a(f"s_cmp_lg_u32 s{sGRP}, 0")
a("s_cbranch_scc1 L_rsB")

def rs_path(tag, send, keep, send_addr, recv_addr):
    for i, t in enumerate(send):
        a(f"ds_write_b128 v{send_addr}, {vr(vACCP+4*t)} offset:{i*1024}")
    a("s_waitcnt lgkmcnt(0)")
    a("s_barrier")
    for i, t in enumerate(keep):
        a(f"ds_read_b128 {vr(72+4*i)}, v{recv_addr} offset:{i*1024}")
    Q = 176
    for k in range(6):
        a(f"v_mov_b32 v{Q+4*k+3}, s{sNONCE}")
    for i, t in enumerate(keep):
        a(f"s_waitcnt lgkmcnt({len(keep)-1-i})")
        for r in range(4):
            a(f"v_add_f32 v{vACCP+4*t+r}, v{vACCP+4*t+r}, v{72+4*i+r}")
    if PROF4: stamp(10)
    K0 = vACCP + 4*keep[0]
    a(f"s_cmp_eq_u32 s{sW}, s{sG}")
    a(f"s_cbranch_scc1 L_rs_own_{tag}")
    a(f"s_mul_i32 s{sT0}, s{sG}, {6*1024}")
    a(f"s_add_u32 s{sT0}, s{sT0}, s{sHL}")
    a(f"s_add_u32 s{sT1}, s{sT0}, 4096")
    for k in range(6):
        for i in range(3):
            d = 3*k + i
            a(f"v_cvt_pk_bf16_f32 v{Q+4*k+i}, v{K0+2*d}, v{K0+2*d+1}")
        a(f"buffer_store_dwordx4 {vr(Q+4*k)}, v{vL16}, {srd(sWS)}, s{sT0 if k < 4 else sT1} offen offset:{(k%4)*1024} sc1")
    a("s_branch L_end")
    lab(f"L_rs_own_{tag}")
    a(f"v_and_b32 v{vP2T+2}, 15, v{vLANE}")
    a(f"v_mul_u32_u24 v{vP2T+2}, 1152, v{vP2T+2}")
    a(f"v_lshrrev_b32 v{vP2T+3}, 4, v{vLANE}")
    a(f"v_lshl_add_u32 v{vP2T+2}, v{vP2T+3}, 3, v{vP2T+2}")
    a(f"s_mul_i32 s{sT4}, s{sW}, {32*1152}")
    a(f"s_add_u32 s{sT4}, s{sT4}, s{sXB}")
    a(f"s_lshl_b32 s{sT5}, s{sNB}, 5")
    a(f"s_add_u32 s{sT6}, s{sT4}, s{sT5}")
    a(f"s_add_u32 s{sT6}, s{sT6}, 1024")
    a(f"s_add_u32 s{sT7}, s{sT6}, {16*1152}")
    a(f"s_lshl_b32 s{sT5}, s{sNB}, 8")
    a(f"s_add_u32 s{sT4}, s{sT4}, s{sT5}")
    a(f"s_add_u32 s{sT5}, s{sT4}, {16*1152}")
    R = 72
    for p in range(1, 4):
        a(f"s_add_u32 s{sT0}, s{sG}, {p}")
        a(f"s_and_b32 s{sT0}, s{sT0}, 3")
        a(f"s_mul_i32 s{sT0}, s{sT0}, {6*1024}")
        a(f"s_add_u32 s{93+p}, s{sT0}, s{sHL}")
    a(f"v_mov_b32 v{vP2T+4}, {5*1024 + 63*16 + 12}")
    a(f"s_mov_b32 s{sSPIN}, 0")
    lab(f"L_rs_poll_{tag}")
    for p in range(3):
        a(f"buffer_load_dword v{R+p}, v{vP2T+4}, {srd(sWS)}, s{94+p} offen sc1")
    a(f"s_add_u32 s{sSPIN}, s{sSPIN}, 1")
    a(f"s_cmp_gt_u32 s{sSPIN}, {SPIN_MAX}")
    a(f"s_cbranch_scc1 L_rs_spin_{tag}")
    a(f"s_mov_b64 s[{sT2}:{sT2+1}], 0")
    a("s_waitcnt vmcnt(0)")
    for p in range(3):
        a(f"v_cmp_ne_u32 vcc, s{sNONCE}, v{R+p}")
        a(f"s_or_b64 s[{sT2}:{sT2+1}], s[{sT2}:{sT2+1}], vcc")
    a(f"s_cbranch_scc1 L_rs_poll_{tag}")
    lab(f"L_rs_spin_{tag}")
    for p in range(1, 4):
        a(f"s_add_u32 s{sT1}, s{93+p}, 4096")
        for k in range(6):
            a(f"buffer_load_dwordx4 {vr(R+24*(p-1)+4*k)}, v{vL16}, {srd(sWS)}, s{93+p if k < 4 else sT1} offen offset:{(k%4)*1024} sc1")
    a(f"s_add_u32 s{sSPIN}, s{sSPIN}, 1")
    a(f"s_cmp_gt_u32 s{sSPIN}, {SPIN_MAX}")
    a(f"s_cbranch_scc1 L_rs_spin_out_{tag}")
    a(f"s_mov_b64 s[{sT2}:{sT2+1}], 0")
    for q in range(18):
        a(f"s_waitcnt vmcnt({17-q})")
        a(f"v_cmp_ne_u32 vcc, s{sNONCE}, v{R+4*q+3}")
        a(f"s_or_b64 s[{sT2}:{sT2+1}], s[{sT2}:{sT2+1}], vcc")
    a(f"s_cbranch_scc1 L_rs_spin_{tag}")
    lab(f"L_rs_spin_out_{tag}")
    a("s_waitcnt vmcnt(0)")
    if PROF4: stamp(11)
    T = vP2T + 4
    for p in range(3):
        for k in range(6):
            for i in range(3):
                d = 3*k + i
                src = R + 24*p + 4*k + i
                a(f"v_lshlrev_b32 v{T}, 16, v{src}")
                a(f"v_and_b32 v{T+1}, 0xffff0000, v{src}")
                a(f"v_add_f32 v{K0+2*d}, v{K0+2*d}, v{T}")
                a(f"v_add_f32 v{K0+2*d+1}, v{K0+2*d+1}, v{T+1}")
    if PROF4: stamp(12)
    for i, t in enumerate(keep):
        jn, mh = t // 2, t % 2
        d = Q + 2*(i % 8)
        a(f"v_cvt_pk_bf16_f32 v{d}, v{vACCP+4*t}, v{vACCP+4*t+1}")
        a(f"v_cvt_pk_bf16_f32 v{d+1}, v{vACCP+4*t+2}, v{vACCP+4*t+3}")
        if jn < 8:
            a(f"buffer_store_dwordx2 v[{d}:{d+1}], v{vP2T+2}, {srd(sOUT)}, s{sT5 if mh else sT4} offen offset:{jn*32}")
        else:
            a(f"buffer_store_dwordx2 v[{d}:{d+1}], v{vP2T+2}, {srd(sOUT)}, s{sT7 if mh else sT6} offen")
    a("s_branch L_end")

rs_path("A", list(range(9, 18)), list(range(0, 9)), vP2T, vP2T+1)
lab("L_rsB")
rs_path("B", list(range(0, 9)), list(range(9, 18)), vP2T+1, vP2T)

lab("L_end")
if PROF:
    stamp(15)
    a("s_memrealtime s[96:97]")
    a("s_mov_b64 exec, -1")
    a("s_cmp_ge_u32 s2, 256")
    a("s_cbranch_scc1 L_end2")
    a("s_waitcnt lgkmcnt(0)")
    for i in range(1, 16):
        a(f"s_sub_u32 s{64+2*(i-1)}, s{64+2*(i-1)}, s100")
    a(f"v_mov_b32 v0, 0")
    for i in range(1, 16):
        a(f"v_writelane_b32 v0, s{64+2*(i-1)}, {i}")
    if PROF4:
        a("s_add_u32 s64, s64, s100")
        a("s_and_b32 s64, s64, 0xfffff")
        a("v_writelane_b32 v0, s64, 1")
        a("s_and_b32 s66, s98, 0xfffff")
        a("v_writelane_b32 v0, s66, 2")
        a("s_and_b32 s66, s96, 0xfffff")
        a("v_writelane_b32 v0, s66, 3")
    a("s_sub_u32 s96, s96, s98")
    a("v_writelane_b32 v0, s96, 14")
    a(f"s_lshl_b32 s{sT0}, s2, 3")
    a(f"s_add_u32 s{sT0}, s{sT0}, s{sWV}")
    a(f"s_lshl_b32 s{sT0}, s{sT0}, 6")
    a(f"s_add_u32 s{sT0}, s{sT0}, {WS_PROF}")
    a(f"v_lshlrev_b32 v1, 2, v{vLANE}")
    a(f"v_cmp_gt_u32 vcc, 16, v{vLANE}")
    a(f"s_and_saveexec_b64 s[{sEX}:{sEX+1}], vcc")
    a(f"buffer_store_dword v0, v1, {srd(sWS)}, s{sT0} offen")
    if PROFDBG:
        a(f"s_cmp_lg_u32 s{sT0}, {WS_PROF}")
        a("s_cbranch_scc1 L_end2")
        a(f"buffer_store_dword v0, v1, {srd(sDBG)}, 0 offen")
    lab("L_end2")
a("s_endpgm")

hdr = [
 f"; @launch grid=(256,1,1) block=(512,1,1) lds={LDS_SIZE}",
 '.amdgcn_target "amdgcn-amd-amdhsa--gfx950"',
 ".text",
 f".globl {KNAME}",
 ".p2align 8",
 f".type {KNAME},@function",
]
ftr = [
 '.section .rodata,"a"',
 ".p2align 6",
 f".amdhsa_kernel {KNAME}",
 "  .amdhsa_next_free_vgpr 256",
 "  .amdhsa_next_free_sgpr 102",
 "  .amdhsa_accum_offset 256",
 "  .amdhsa_group_segment_fixed_size 0",
 "  .amdhsa_kernarg_size 48",
 "  .amdhsa_user_sgpr_count 2",
 "  .amdhsa_user_sgpr_kernarg_segment_ptr 1",
 "  .amdhsa_system_sgpr_workgroup_id_x 1",
 ".end_amdhsa_kernel",
]
if ROT:
    L2 = []
    for i, l in enumerate(L):
        if " lds" in l and "s[8:11]" in l:
            L2.append(f"    s_sub_u32 s{sS1}, s{sT1}, {576*9216}")
            L2.append(f"    s_cselect_b32 s{sT1}, s{sT1}, s{sS1}")
        L2.append(l)
    L = L2
if "--nt" in sys.argv:
    L = [ (l.replace(" offen lds", " offen nt lds") if (" lds" in l and ("s[4:7]" in l or "s[8:11]" in l)) else l) for l in L]
if "--nt2" in sys.argv:
    L = [ (l.replace(" offen lds", " offen nt lds") if (" lds" in l) else l) for l in L]
print("\n".join(hdr + L + ftr))
```

```python
import sys

PROF = "--prof" in sys.argv or "--prof0" in sys.argv or "--prof2" in sys.argv or "--prof3" in sys.argv or "--prof4" in sys.argv or "--prof5" in sys.argv
PROF2 = "--prof2" in sys.argv
PROF3 = "--prof3" in sys.argv
PROF4 = "--prof4" in sys.argv
PROF5 = "--prof5" in sys.argv
PROF0 = "--prof0" in sys.argv
PROFDBG = "--dbgout" in sys.argv
NOH = "--noh" in sys.argv
NODMA = "--nodma" in sys.argv
NORD = "--nord" in sys.argv
NOPF = "--nopf" in sys.argv
NOBAR = "--nobar" in sys.argv
ROT = "--rot" in sys.argv
DEEP = "--deep" in sys.argv
RING = 9 if DEEP else 6
LA = 7 if DEEP else 4
PLAINH = "--plainh" in sys.argv
NORETOUCH = "--noretouch" in sys.argv
WS_PROF = 96 << 20

KNAME = "standalone__dense_activation_silu__prompt_kernel"
L = []
CUR = {"vm": None}
def a(s):
    if ";@" in s:
        s, tag = s.split(";@")
        s = s.rstrip()
        if CUR["vm"] is not None and tag != "skip": CUR["vm"].issue(tag)
    L.append(s if s.endswith(":") else "    " + s)

class VM:
    def __init__(self, init): self.q = list(init)
    def issue(self, name): self.q.append(name)
    def need(self, names):
        idx = [i for i, n in enumerate(self.q) if n in names]
        if not idx: return None
        n = len(self.q) - 1 - max(idx)
        self.q = self.q[max(idx)+1:]
        return n
    def wait(self, names, extra=""):
        n = self.need(names)
        if n is None:
            if extra: a(f"s_waitcnt {extra}")
            return
        a(f"s_waitcnt vmcnt({n}) {extra}".rstrip())
def vwait(names, extra=""): CUR["vm"].wait(names, extra)
def lab(s): L.append(s + ":")
def cm(s): L.append("    ; " + s)
def stamp(i, p0=False):
    if PROF0 and not p0 and i not in (0, 15): return
    if PROF2 and p0 != 2 and i not in (0, 15): return
    if PROF:
        r = 100 if i == 0 else 64 + 2*(i-1)
        L.append(f"    s_memtime s[{r}:{r+1}]")

SLOT = 36864
LDS_NONCE = 4 * SLOT
LDS_SIZE = 4 * SLOT + 64
WS_RS = 32 << 20
WS_FLAG_H = 64 << 20
WS_FLAG_RS = (64 << 20) + (1 << 20)
LOG2E_NEG = 0xbfb8aa3b

sX, sW1, sW2, sOUT, sWS, sDBG = 4, 8, 12, 16, 20, 24
sMT, sG, sNB, sJ, sWV, sW, sGRP, sNONCE = 28, 29, 30, 31, 32, 33, 34, 35
sF0B = 36
sXB = 37
sT0, sT1, sT2, sT3, sT4, sT5 = 38, 39, 40, 41, 42, 43
sSLOTN = 44
sSLOTD = 45
sHB = 46
sFLH = 47
sFS = 50
sLOG = 51
sST = 52
sHL = 53
sW2B = 54
sW2E = 55
sPEND2 = 56
sNT = 57
sEX = 58
sFLC = 60
sT6, sT7 = 62, 63
sSPIN = 61
SPIN_MAX = 200000

def srd(r): return f"s[{r}:{r+3}]"

vX = 0
vACC1 = 144
vACC2 = 176
vAF = 208
vXR = 232
vWR = 236
vW1R = 238
vXOFF = 240
vW0OFF = 241
vW1OFF = 242
vLANE = 243
vHST = 244
vCUR = 245
vT = 248
vACCP = 0
vAF2 = 72
vHS = 96
vW2R = 160
vW2C = 161
vW2N = 162
vPOLL = 163
vFLA = 164
vL16 = 165
vP2T = 168
sS0, sS1 = 48, 49
sPK1 = 94
sPK2 = 96

def vr(b, n=4): return f"v[{b}:{b+n-1}]"

lab(KNAME)
a("s_cmp_ge_u32 s2, 256")
a("s_cbranch_scc1 L_end")
stamp(0)
a("s_load_dwordx4 s[80:83], s[0:1], 0")
a("s_load_dwordx4 s[84:87], s[0:1], 16")
a("s_load_dwordx4 s[88:91], s[0:1], 32")
a("s_memrealtime s[92:93]")
if PROF: a("s_memrealtime s[98:99]")
a(f"v_and_b32 v{vLANE}, 63, v0")
a(f"v_lshrrev_b32 v{vT}, 6, v0")
a("s_nop 0")
a(f"v_readfirstlane_b32 s{sWV}, v{vT}")
a(f"s_and_b32 s{sT0}, s2, 7")
a(f"s_lshr_b32 s{sT1}, s2, 3")
a(f"s_lshr_b32 s{sG}, s{sT0}, 1")
a(f"s_and_b32 s{sT2}, s{sT0}, 1")
a(f"s_lshl_b32 s{sT2}, s{sT2}, 3")
a(f"s_lshr_b32 s{sT3}, s{sT1}, 2")
a(f"s_add_u32 s{sMT}, s{sT2}, s{sT3}")
a(f"s_and_b32 s{sNB}, s{sT1}, 3")
a(f"s_lshl_b32 s{sJ}, s{sG}, 2")
a(f"s_add_u32 s{sJ}, s{sJ}, s{sNB}")
a(f"s_and_b32 s{sW}, s{sWV}, 3")
a(f"s_lshr_b32 s{sGRP}, s{sWV}, 2")
a(f"s_mul_i32 s{sT0}, s{sJ}, 576")
a(f"s_and_b32 s{sT1}, s{sJ}, 1")
a(f"s_lshl_b32 s{sT2}, s{sT1}, 6")
a(f"s_add_u32 s{sF0B}, s{sT0}, s{sT2}")
a(f"s_xor_b32 s{sT1}, s{sT1}, 1")
a(f"s_lshl_b32 s{sT1}, s{sT1}, 9")
a(f"s_add_u32 s{sFS}, s{sT0}, s{sT1}")
a(f"s_mul_i32 s{sXB}, s{sMT}, {128*1152}")
sRHO = 97
if ROT:
    a(f"s_add_u32 s{sT0}, s{sMT}, s{sJ}")
    a(f"s_mul_i32 s{sT1}, s{sT0}, 57")
    a(f"s_lshr_b32 s{sT1}, s{sT1}, 9")
    a(f"s_mul_i32 s{sT1}, s{sT1}, 9")
    a(f"s_sub_u32 s{sT0}, s{sT0}, s{sT1}")
    a(f"s_lshl_b32 s{sRHO}, s{sT0}, 7")
    a(f"s_mul_i32 s{sT0}, s{sT0}, {64*9216}")
    a(f"s_add_u32 s{sF0B}, s{sF0B}, s{sT0}")
    a(f"s_add_u32 s{sFS}, s{sFS}, s{sT0}")
a(f"s_mov_b32 s{sLOG}, 0x{LOG2E_NEG:08x}")

l = vLANE
t0, t1, t2, t3 = vT, vT+1, vT+2, vT+3
a(f"v_lshrrev_b32 v{t0}, 3, v{l}")
a(f"v_mul_u32_u24 v{vXOFF}, 1152, v{t0}")
a(f"v_and_b32 v{t1}, 7, v{l}")
a(f"v_lshrrev_b32 v{t2}, 4, v{l}")
a(f"v_xor_b32 v{t1}, v{t1}, v{t2}")
a(f"s_and_b32 s{sT0}, s{sWV}, 1")
a(f"s_lshl_b32 s{sT0}, s{sT0}, 2")
a(f"v_xor_b32 v{t1}, s{sT0}, v{t1}")
a(f"v_lshlrev_b32 v{t1}, 4, v{t1}")
a(f"v_add_u32 v{vXOFF}, v{vXOFF}, v{t1}")
a(f"v_lshrrev_b32 v{t0}, 4, v{l}")
a(f"v_mul_u32_u24 v{vW0OFF}, 9216, v{t0}")
a(f"v_bfe_u32 v{t1}, v{l}, 2, 2")
a(f"v_xor_b32 v{t1}, v{t1}, v{t0}")
a(f"v_lshlrev_b32 v{t1}, 6, v{t1}")
a(f"v_and_b32 v{t2}, 3, v{l}")
a(f"v_lshlrev_b32 v{t2}, 4, v{t2}")
a(f"v_add3_u32 v{vW0OFF}, v{vW0OFF}, v{t1}, v{t2}")
a(f"s_mul_i32 s{sT4}, s{sWV}, {8*1152}")
a(f"s_add_u32 s{sT4}, s{sT4}, s{sXB}")
a(f"s_mul_i32 s{sT5}, s{sWV}, {4*9216}")
a(f"s_add_u32 s{sT5}, s{sT5}, s{sF0B}")
a(f"s_lshl_b32 s{sT6}, s{sWV}, 10")
a("s_waitcnt lgkmcnt(0)")
for (r, src, nbytes) in ((sX, 80, 2048*576*2), (sW1, 82, 576*4608*2), (sW2, 84, 4608*576*2), (sOUT, 86, 2048*576*2), (sDBG, 88, 256), (sWS, 90, 256 << 20)):
    a(f"s_mov_b32 s{r}, s{src}")
    a(f"s_mov_b32 s{r+1}, s{src+1}")
    a(f"s_mov_b32 s{r+2}, {nbytes}")
    a(f"s_mov_b32 s{r+3}, 0x20000")

def dma_p0_list(t):
    slot = (t % 4) * SLOT
    G = []
    for k in range(2):
        if ROT:
            G.append([f"s_add_u32 m0, s{sT6}, {slot + 8192*k}",
                      f"s_add_u32 s{sT1}, s{sRHO}, {128*t}",
                      f"s_sub_u32 s{sS1}, s{sT1}, 1152",
                      f"s_cselect_b32 s{sT1}, s{sT1}, s{sS1}",
                      f"s_add_u32 s{sT1}, s{sT1}, s{sT4}",
                      f"s_add_u32 s{sT1}, s{sT1}, {64*1152*k}",
                      f"buffer_load_dwordx4 v{vXOFF}, {srd(sX)}, s{sT1} offen lds"])
        else:
            G.append([f"s_add_u32 m0, s{sT6}, {slot + 8192*k}",
                  f"s_add_u32 s{sT1}, s{sT4}, {128*t + 64*1152*k}",
                  f"buffer_load_dwordx4 v{vXOFF}, {srd(sX)}, s{sT1} offen lds"])
        G.append([f"s_add_u32 m0, s{sT6}, {slot + 16384 + 8192*k}",
                  f"s_add_u32 s{sT1}, s{sT5}, {(64*t + 32*k)*9216}",
                  f"buffer_load_dwordx4 v{vW0OFF}, {srd(sW1)}, s{sT1} offen lds"])
    return G

def dma_t1_8w(stage, dr0, fcoff):
    slot = (stage % 4) * SLOT
    G = [[f"s_mul_i32 s{sT2}, s{sWV}, {8*9216}", f"s_add_u32 s{sT2}, s{sT2}, s{sF0B}"]]
    for k in range(4):
        G.append([f"s_add_u32 m0, s{sT6}, {slot + 8192*k}",
                  f"s_add_u32 s{sT1}, s{sT2}, {(dr0 + 64*k)*9216 + fcoff}",
                  f"buffer_load_dwordx4 v{vW1OFF}, {srd(sW1)}, s{sT1} offen lds"])
    G.append([f"s_cmp_ge_u32 s{sWV}, 4",
              f"s_cbranch_scc1 L_t18_{stage}",
              f"s_add_u32 m0, s{sT6}, {slot + 8192*4}",
              f"s_add_u32 s{sT1}, s{sT2}, {(dr0 + 64*4)*9216 + fcoff}",
              f"buffer_load_dwordx4 v{vW1OFF}, {srd(sW1)}, s{sT1} offen lds",
              f"L_t18_{stage}:"])
    return G

_gid = [0]
def emit_groups_A(G):
    _gid[0] += 1
    a(f"s_cmp_lg_u32 s{sGRP}, 0")
    a(f"s_cbranch_scc1 L_gskip_{_gid[0]}")
    emit_groups(G)
    lab(f"L_gskip_{_gid[0]}")

vPFX, vPFA, vPFB, vPFC = 176, 177, 178, 179
sPFX, sPFW1, sPFW2 = 94, 95, 96
def PFx(k): return (sX, vPFX, sPFX, k*256)
def PFa(k): return (sW1, vPFA, sPFW1, k*256*9216)
def PFb(k): return (sW1, vPFB, sPFW1, k*128*9216)
def PFc(k): return (sW2, vPFC, sPFW2, k*2048*128)
PF_SCHED = {
  2: [PFb(0)], 3: [PFb(1)], 4: [PFb(2)], 5: [PFb(3)], 6: [PFb(4)], 7: [PFc(0)], 8: [PFc(1)],
  "b10": [PFc(2), PFc(3), PFc(4), PFc(5)],
}
if "--pf2" in sys.argv:
  PF_SCHED = {
  0: [PFx(2), PFa(1)], 1: [PFx(3)], 2: [PFx(4), PFa(2)], 3: [PFb(0)], 4: [PFb(1), PFb(2)], 5: [PFb(3)], 6: [PFb(4)], 7: [PFc(0)], 8: [PFc(1)],
  "b10": [PFc(2), PFc(3), PFc(4), PFc(5)],
  }
if "--pf4" in sys.argv:
  PF_SCHED = { 4: [PFc(0)], 5: [PFc(1)], 6: [PFc(2)], 7: [PFc(3)], 8: [PFc(4)], "b10": [PFc(5)] }
if "--pf5" in sys.argv:
  PF_SCHED = { 1: [PFb(0)], 2: [PFb(1)], 3: [PFb(2)], 4: [PFb(3), PFc(0)], 5: [PFb(4), PFc(1)], 6: [PFc(2)], 7: [PFc(3)], 8: [PFc(4)], "b10": [PFc(5)] }
if "--pf3" in sys.argv:
  PF_SCHED = {
  "start": [PFx(2), PFa(1)], 0: [PFx(3)], 1: [PFx(4), PFa(2)], 2: [PFb(0)], 3: [PFb(1)], 4: [PFb(2)], 5: [PFb(3)], 6: [PFb(4)], 7: [PFc(0)], 8: [PFc(1)],
  "b10": [PFc(2), PFc(3), PFc(4), PFc(5)],
  }
_pfn = [0]
def pf_emit(key, guard_grp=False):
    items = PF_SCHED.get(key, []) if not NOPF else []
    for (sr, vo, sb, off) in items:
        wv = 4 + (_pfn[0] % 4)
        _pfn[0] += 1
        a(f"s_cmp_lg_u32 s{sWV}, {wv}")
        a(f"s_cbranch_scc1 L_pfs_{_pfn[0]}")
        a(f"s_add_u32 s{sS0}, s{sb}, {off}")
        a(f"buffer_load_dword v247, v{vo}, {srd(sr)}, s{sS0} offen")
        lab(f"L_pfs_{_pfn[0]}")

def emit_groups(G):
    for g in G:
        for ins in g: a(ins)

a(f"s_lshl_b32 s{sT0}, s{sMT}, 2")
if PROFDBG: a(f"s_add_u32 s{sT0}, s{sT0}, 64")
a(f"v_mov_b32 v{vT+6}, s{sT0}")
a(f"s_lshl_b32 s{sT1}, s{sJ}, 3")
a(f"s_add_u32 s{sT1}, s{sT1}, s{sWV}")
a(f"s_cmp_lg_u32 s{sT1}, 4")
a("s_cbranch_scc1 L_no_nonce")
a(f"s_or_b32 s{sNT}, s92, 1")
a(f"v_mov_b32 v{vT+4}, s{sNT}")
a(f"buffer_store_dword v{vT+4}, v{vT+6}, {srd(sDBG)}, 0 offen sc1")
lab("L_no_nonce")
emit_groups(dma_p0_list(0))
a("s_barrier")
emit_groups(dma_p0_list(1))
emit_groups(dma_p0_list(2))
a(f"s_lshr_b32 s{sT0}, s2, 3")
a(f"s_lshl_b32 s{sT0}, s{sT0}, 6")
a(f"v_add_u32 v{vT}, s{sT0}, v{l}")
a(f"v_and_b32 v{vPFX}, 1023, v{vT}")
a(f"v_mul_u32_u24 v{vPFX}, 1152, v{vPFX}")
a(f"v_lshrrev_b32 v{vT+2}, 10, v{vT}")
a(f"v_lshl_add_u32 v{vPFX}, v{vT+2}, 7, v{vPFX}")
a(f"s_lshr_b32 s{sPFX}, s{sMT}, 3")
a(f"s_mul_i32 s{sPFX}, s{sPFX}, {1024*1152}")
a(f"v_lshrrev_b32 v{vPFA}, 3, v{vT}")
a(f"v_mul_u32_u24 v{vPFA}, 9216, v{vPFA}")
a(f"v_and_b32 v{vT+3}, 3, v{vT}")
a(f"v_bfe_u32 v{vT+7}, v{vT}, 1, 1")
a(f"v_mul_u32_u24 v{vT+7}, 3, v{vT+7}")
a(f"v_add_u32 v{vT+3}, v{vT+3}, v{vT+7}")
a(f"v_bfe_u32 v{vT+7}, v{vT}, 2, 1")
a(f"v_mul_u32_u24 v{vT+7}, 9, v{vT+7}")
a(f"v_add_u32 v{vT+3}, v{vT+3}, v{vT+7}")
a(f"v_lshl_add_u32 v{vPFA}, v{vT+3}, 7, v{vPFA}")
a(f"s_mul_i32 s{sPFW1}, s{sG}, 2304")
a(f"v_lshrrev_b32 v{vPFB}, 4, v{vT}")
a(f"v_mul_u32_u24 v{vPFB}, 9216, v{vPFB}")
a(f"v_and_b32 v{vT+7}, 7, v{vT}")
a(f"v_min_u32 v{vT+7}, 4, v{vT+7}")
a(f"v_cmp_le_u32 vcc, 3, v{vT+7}")
a(f"v_add_u32 v{vT+7}, 2, v{vT+7}")
a("s_nop 1")
a(f"v_cndmask_b32 v{vT+3}, 0, 2, vcc")
a(f"v_add_u32 v{vT+7}, v{vT+7}, v{vT+3}")
a(f"v_bfe_u32 v{vT+3}, v{vT}, 3, 1")
a(f"v_mul_u32_u24 v{vT+3}, 9, v{vT+3}")
a(f"v_add_u32 v{vT+7}, v{vT+7}, v{vT+3}")
a(f"v_lshl_add_u32 v{vPFB}, v{vT+7}, 7, v{vPFB}")
a(f"v_lshlrev_b32 v{vPFC}, 7, v{vT}")
a(f"s_mul_i32 s{sPFW2}, s{sG}, {1152*1152}")
pf_emit("start")


a(f"v_lshrrev_b32 v{t0}, 3, v{l}")
a(f"v_mul_u32_u24 v{vW1OFF}, 9216, v{t0}")
a(f"v_bfe_u32 v{t1}, v{l}, 2, 1")
a(f"v_bfe_u32 v{t2}, v{l}, 4, 1")
a(f"v_xor_b32 v{t1}, v{t1}, v{t2}")
a(f"v_lshlrev_b32 v{t1}, 6, v{t1}")
a(f"v_and_b32 v{t2}, 3, v{l}")
a(f"v_lshlrev_b32 v{t2}, 4, v{t2}")
a(f"v_add3_u32 v{vW1OFF}, v{vW1OFF}, v{t1}, v{t2}")

a(f"v_and_b32 v{t0}, 31, v{l}")
a(f"s_lshl_b32 s{sT0}, s{sW}, 12")
a(f"v_lshlrev_b32 v{t1}, 7, v{t0}")
a(f"v_add_u32 v{t1}, s{sT0}, v{t1}")
a(f"v_bfe_u32 v{t2}, v{l}, 1, 3")
a(f"v_lshrrev_b32 v{t3}, 5, v{l}")
a(f"v_xor_b32 v{t2}, v{t2}, v{t3}")
a(f"v_lshlrev_b32 v{t2}, 4, v{t2}")
a(f"v_add_u32 v{vXR}, v{t1}, v{t2}")
a(f"v_xor_b32 v{vXR+1}, 32, v{vXR}")
a(f"v_xor_b32 v{vXR+2}, 64, v{vXR}")
a(f"v_xor_b32 v{vXR+3}, 0x60, v{vXR}")
a(f"v_lshrrev_b32 v{t0}, 5, v{l}")
a(f"v_bfe_u32 v{t1}, v{l}, 2, 2")
a(f"v_lshl_add_u32 v{t0}, v{t0}, 3, v{t1}")
a(f"v_lshlrev_b32 v{t0}, 8, v{t0}")
a(f"v_bfe_u32 v{t2}, v{l}, 4, 1")
a(f"v_lshlrev_b32 v{t2}, 5, v{t2}")
a(f"v_and_b32 v{t3}, 3, v{l}")
a(f"v_lshlrev_b32 v{t3}, 3, v{t3}")
a(f"v_add3_u32 v{t0}, v{t0}, v{t2}, v{t3}")
a(f"v_add_u32 v{t0}, 16384, v{t0}")
a(f"s_lshl_b32 s{sT0}, s{sGRP}, 1")
a(f"v_xor_b32 v{t2}, s{sT0}, v{t1}")
a(f"v_lshl_add_u32 v{vWR}, v{t2}, 6, v{t0}")
a(f"v_xor_b32 v{vWR+1}, 64, v{vWR}")
a(f"v_lshrrev_b32 v{t0}, 5, v{l}")
a(f"v_lshl_add_u32 v{t0}, v{t0}, 3, v{t1}")
a(f"v_lshlrev_b32 v{t0}, 7, v{t0}")
a(f"v_bfe_u32 v{t2}, v{l}, 4, 1")
a(f"v_lshlrev_b32 v{t2}, 5, v{t2}")
a(f"v_add3_u32 v{t0}, v{t0}, v{t2}, v{t3}")
a(f"v_bfe_u32 v{t2}, v{l}, 3, 1")
a(f"v_lshl_add_u32 v{vW1R}, v{t2}, 6, v{t0}")
a(f"v_xor_b32 v{vW1R+1}, 64, v{vW1R}")
a(f"v_bfe_u32 v{t0}, v{l}, 4, 1")
a(f"v_lshlrev_b32 v{t0}, 10, v{t0}")
a(f"v_lshrrev_b32 v{t1}, 5, v{l}")
a(f"v_lshlrev_b32 v{t1}, 8, v{t1}")
a(f"v_and_b32 v{t2}, 15, v{l}")
a(f"v_lshlrev_b32 v{t2}, 4, v{t2}")
a(f"v_add3_u32 v{vHST}, v{t0}, v{t1}, v{t2}")
a(f"s_lshl_b32 s{sT0}, s{sMT}, 2")
a(f"s_add_u32 s{sT0}, s{sT0}, s{sW}")
a(f"s_mul_i32 s{sT1}, s{sT0}, 144")
a(f"s_mul_i32 s{sT2}, s{sJ}, 9")
a(f"s_add_u32 s{sT2}, s{sT1}, s{sT2}")
a(f"s_lshl_b32 s{sHB}, s{sT2}, 11")
a(f"s_mul_i32 s{sT2}, s{sG}, 36")
a(f"s_add_u32 s{sT2}, s{sT1}, s{sT2}")
a(f"s_mul_i32 s{sT3}, s{sGRP}, 18")
a(f"s_add_u32 s{sT2}, s{sT2}, s{sT3}")
a(f"s_lshl_b32 s{sHL}, s{sT2}, 11")
a(f"s_lshl_b32 s{sT0}, s{sMT}, 2")
a(f"s_add_u32 s{sT0}, s{sT0}, s{sG}")
a(f"s_lshl_b32 s{sT0}, s{sT0}, 2")
a(f"s_add_u32 s{sT0}, s{sT0}, s{sW}")
a(f"s_lshl_b32 s{sT0}, s{sT0}, 8")
a(f"s_add_u32 s{sFLC}, s{sT0}, {WS_FLAG_H}")
a(f"s_lshl_b32 s{sT1}, s{sNB}, 2")
a(f"s_add_u32 s{sFLH}, s{sFLC}, s{sT1}")
a(f"s_mul_i32 s{sT0}, s{sG}, {1152*1152}")
a(f"s_lshl_b32 s{sT1}, s{sNB}, 8")
a(f"s_add_u32 s{sW2B}, s{sT0}, s{sT1}")
a(f"s_mul_i32 s{sT1}, s{sW}, {4*1152}")
a(f"s_add_u32 s{sW2B}, s{sW2B}, s{sT1}")
a(f"s_lshl_b32 s{sT1}, s{sNB}, 5")
a(f"s_add_u32 s{sW2E}, s{sT0}, s{sT1}")
a(f"s_add_u32 s{sW2E}, s{sW2E}, 1024")
a(f"s_mul_i32 s{sT1}, s{sW}, {288*1152}")
a(f"s_add_u32 s{sW2E}, s{sW2E}, s{sT1}")

def dma_t1_all(stage, dr0, fcoff):
    slot = (stage % 4) * SLOT
    a(f"s_mul_i32 s{sT2}, s{sWV}, {8*9216}")
    a(f"s_add_u32 s{sT2}, s{sT2}, s{sF0B}")
    for k in range(5):
        if k == 4:
            a(f"s_cmp_ge_u32 s{sWV}, 4")
            a(f"s_cbranch_scc1 L_skip_t1_{stage}")
        a(f"s_add_u32 m0, s{sT6}, {slot + 8192*k}")
        a(f"s_add_u32 s{sT1}, s{sT2}, {(dr0 + 64*k)*9216 + fcoff}")
        a(f"buffer_load_dwordx4 v{vW1OFF}, {srd(sW1)}, s{sT1} offen lds")
    lab(f"L_skip_t1_{stage}")

def dma_t1_4w(stage, dr0, fcoff):
    slot = (stage % 4) * SLOT
    G = [[f"s_mul_i32 s{sT2}, s{sW}, {8*9216}", f"s_add_u32 s{sT2}, s{sT2}, s{sF0B}"]]
    for k in range(9):
        G.append([f"s_add_u32 m0, s{sT6}, {slot + 4096*k}",
                  f"s_add_u32 s{sT1}, s{sT2}, {(dr0 + 32*k)*9216 + fcoff}",
                  f"buffer_load_dwordx4 v{vW1OFF}, {srd(sW1)}, s{sT1} offen lds"])
    return G

def dma_x_8w(stage, dr0):
    slot = (stage % 4) * SLOT
    G = [[f"s_mul_i32 s{sT2}, s{sWV}, {8*9216}", f"s_add_u32 s{sT2}, s{sT2}, s{sF0B}",
          f"s_mul_i32 s{sT3}, s{sWV}, {16*9216}", f"s_add_u32 s{sT3}, s{sT3}, s{sFS}"]]
    for k in range(3):
        G.append([f"s_add_u32 m0, s{sT6}, {slot + 8192*k}",
                  f"s_add_u32 s{sT1}, s{sT2}, {(dr0 + 64*k)*9216 + 384}",
                  f"buffer_load_dwordx4 v{vW1OFF}, {srd(sW1)}, s{sT1} offen lds"])
    G.append([f"s_add_u32 m0, s{sT6}, {slot + 24576}",
              f"s_add_u32 s{sT1}, s{sT3}, {dr0*9216}",
              f"buffer_load_dwordx4 v{vXOFF}, {srd(sW1)}, s{sT1} offen lds"])
    G.append([f"s_cmp_ge_u32 s{sWV}, 4", f"s_cbranch_scc1 L_x8_{stage}",
              f"s_add_u32 m0, s{sT6}, {slot + 24576 + 8192}",
              f"s_add_u32 s{sT1}, s{sT3}, {(dr0 + 128)*9216}",
              f"buffer_load_dwordx4 v{vXOFF}, {srd(sW1)}, s{sT1} offen lds", f"L_x8_{stage}:"])
    return G

def dma_x_4w(stage, dr0):
    slot = (stage % 4) * SLOT
    G = [[f"s_mul_i32 s{sT2}, s{sW}, {8*9216}", f"s_add_u32 s{sT2}, s{sT2}, s{sF0B}",
          f"s_mul_i32 s{sT3}, s{sW}, {16*9216}", f"s_add_u32 s{sT3}, s{sT3}, s{sFS}"]]
    for k in range(6):
        G.append([f"s_add_u32 m0, s{sT6}, {slot + 4096*k}",
                  f"s_add_u32 s{sT1}, s{sT2}, {(dr0 + 32*k)*9216 + 384}",
                  f"buffer_load_dwordx4 v{vW1OFF}, {srd(sW1)}, s{sT1} offen lds ;@d{stage}"])
    for k in range(3):
        G.append([f"s_add_u32 m0, s{sT6}, {slot + 24576 + 4096*k}",
                  f"s_add_u32 s{sT1}, s{sT3}, {(dr0 + 64*k)*9216}",
                  f"buffer_load_dwordx4 v{vXOFF}, {srd(sW1)}, s{sT1} offen lds ;@d{stage}"])
    return G

def p0_reads(ks):
    t, sp = ks // 4, ks % 4
    so = (t % 2) * SLOT
    buf = ks % 3
    R = []
    R.append(f"ds_read_b128 {vr(vX+4*ks)}, v{vXR+sp} offset:{so}")
    for tl in range(2):
        for e4 in range(2):
            d = vAF + buf*8 + tl*4 + e4*2
            R.append(f"ds_read_b64_tr_b16 v[{d}:{d+1}], v{vWR+tl} offset:{so + (16*sp + 4*e4)*256}")
    return R

def toggle_p0(t):
    if t % 2 == 0 and t > 0:
        op = "v_add_u32" if (t % 4) == 2 else "v_subrev_u32"
        for r in list(range(vXR, vXR+4)) + [vWR, vWR+1]:
            a(f"{op} v{r}, {2*SLOT}, v{r}")

a("s_waitcnt vmcnt(8)")
a("s_barrier")
stamp(1, True)
pf_emit(0)
dq0 = dma_p0_list(3)
for ins in p0_reads(0): a(ins)
for ins in p0_reads(1): a(ins)
for ks in range(36):
    nxt = ks + 2
    pend = []
    if nxt % 4 == 0:
        t = nxt // 4
        a(f"s_waitcnt vmcnt(8) lgkmcnt(0)")
        if t == 8:
            a(f"s_cmp_lg_u32 s{sWV}, 4")
            a("s_cbranch_scc1 L_no_nonce2")
            a(f"s_mov_b32 s{sSPIN}, 0")
            lab("L_nonce_chk")
            a(f"v_readfirstlane_b32 s{sT0}, v{vT+4}")
            a(f"s_cmp_lg_u32 s{sT0}, 0")
            a("s_cbranch_scc1 L_nonce_ok")
            a(f"s_add_u32 s{sSPIN}, s{sSPIN}, 1")
            a(f"s_cmp_gt_u32 s{sSPIN}, {SPIN_MAX}")
            a("s_cbranch_scc1 L_nonce_ok")
            a(f"buffer_load_dword v{vT+4}, v{vT+6}, {srd(sDBG)}, 0 offen sc1")
            a("s_waitcnt vmcnt(0)")
            a("s_branch L_nonce_chk")
            lab("L_nonce_ok")
            a(f"v_mov_b32 v{vT+5}, s{sT0}")
            a(f"v_mov_b32 v{vT+6}, {LDS_NONCE}")
            a(f"ds_write_b32 v{vT+6}, v{vT+5}")
            lab("L_no_nonce2")
        a("s_barrier")
        stamp(1 + t, True) if PROF0 else None
        pf_emit(t)
        if t == 4:
            a(f"s_cmp_lg_u32 s{sWV}, 4")
            a("s_cbranch_scc1 L_no_nonce3")
            a(f"buffer_load_dword v{vT+4}, v{vT+6}, {srd(sDBG)}, 0 offen sc1")
            lab("L_no_nonce3")
        assert not dq0
        if t <= 5:
            dq0 = dma_p0_list(t + 3)
        elif t == 6:
            dq0 = dma_t1_8w(9, 0, 256)
        elif t == 7:
            dq0 = dma_t1_8w(10, 288, 256)
            a(f"v_lshrrev_b32 v{vXOFF}, 2, v{vLANE}")
            a(f"v_mul_u32_u24 v{vXOFF}, 9216, v{vXOFF}")
            a(f"v_and_b32 v{vT+7}, 3, v{vLANE}")
            a(f"v_lshl_add_u32 v{vXOFF}, v{vT+7}, 4, v{vXOFF}")
        elif t == 8:
            dq0 = dma_x_8w(11, 0)
        if t <= 8:
            toggle_p0(t)
    if nxt < 36:
        pend = p0_reads(nxt)
    nout = 5 if ks + 1 < 36 else 0
    a(f"s_waitcnt lgkmcnt({nout})")
    buf = ks % 3
    for tl in range(2):
        acc = vACC1 + 16*tl
        af = vAF + buf*8 + tl*4
        a(f"v_mfma_f32_32x32x16_bf16 {vr(acc,16)}, {vr(af)}, {vr(vX+4*ks)}, {vr(acc,16) if ks else 0}")
        for ins in (pend[:3] if tl == 0 else pend[3:]): a(ins)
        nb_ = next(k for k in range(ks+1, 40) if (k + 2) % 4 == 0)
        slots = (nb_ - ks)*2 - tl
        if dq0:
            ng = -(-len(dq0) // slots)
            emit_groups([dq0.pop(0) for _ in range(ng)])

stamp(2)
a(f"v_mov_b32 v{vT}, {LDS_NONCE}")
a(f"ds_read_b32 v{vT+1}, v{vT}")
a(f"s_lshl_b32 s{sT6}, s{sW}, 10")
a("s_waitcnt lgkmcnt(0)")
a(f"v_readfirstlane_b32 s{sNONCE}, v{vT+1}")
a(f"s_cmp_lg_u32 s{sGRP}, 0")
a("s_cbranch_scc1 L_pathB")

def epi_tile(A, P, tt, side=None, per=2):
    for b in range(4):
        if side:
            for _ in range(per):
                if side:
                    for ins in side.pop(0): a(ins)
        rr = [A + 4*b + i for i in range(4)]
        tt_ = [vT + i for i in range(4)]
        for i in range(4): a(f"v_mul_f32 v{tt_[i]}, s{sLOG}, v{rr[i]}")
        for i in range(4): a(f"v_exp_f32 v{tt_[i]}, v{tt_[i]}")
        for i in range(4): a(f"v_add_f32 v{tt_[i]}, 1.0, v{tt_[i]}")
        for i in range(4): a(f"v_rcp_f32 v{tt_[i]}, v{tt_[i]}")
        for i in range(4): a(f"v_mul_f32 v{tt_[i]}, v{rr[i]}, v{tt_[i]}")
        a(f"v_cvt_pk_bf16_f32 v{P+2*b}, v{tt_[0]}, v{tt_[1]}")
        a(f"v_cvt_pk_bf16_f32 v{P+2*b+1}, v{tt_[2]}, v{tt_[3]}")
        if b % 2 == 1:
            p = b // 2
            if p == 0:
                a(f"s_add_u32 s{sT0}, s{sHB}, {tt*2048}")
            a(f"buffer_store_dwordx4 {vr(P+4*p)}, v{vHST}, {srd(sWS)}, s{sT0} offen offset:{512*p}" + ("" if PLAINH else " sc1") + f" ;@st{tt}")

_pk = [0]
def epi(acc, ntiles, tt0, side=None, per=2):
    for ti in range(ntiles):
        epi_tile(acc + 16*ti, vAF + 8*(_pk[0] % 3), tt0 + ti, side, per)
        _pk[0] += 1
    while side:
        for ins in side.pop(0): a(ins)

def hreg(hset): return vHS + 16*hset
def h_groups(boff, tile, hset, tag):
    d = hreg(hset)
    o = tile*2048 + boff
    G = [[(f"s_add_u32 s{sS0}, s{sHL}, {o}" if o >= 0 else f"s_sub_u32 s{sS0}, s{sHL}, {-o}"),
          f"buffer_load_dwordx4 {vr(d)}, v{vL16}, {srd(sWS)}, s{sS0} offen sc1 ;@{tag}"],
         [f"buffer_load_dwordx4 {vr(d+4)}, v{vL16}, {srd(sWS)}, s{sS0} offen offset:1024 sc1 ;@{tag}"],
         [f"s_add_u32 s{sS1}, s{sS0}, {9*2048}",
          f"buffer_load_dwordx4 {vr(d+8)}, v{vL16}, {srd(sWS)}, s{sS1} offen sc1 ;@{tag}"],
         [f"buffer_load_dwordx4 {vr(d+12)}, v{vL16}, {srd(sWS)}, s{sS1} offen offset:1024 sc1 ;@{tag}"]]
    return G

def flags(tt0, n, tmp=vT+4):
    a(f"v_lshlrev_b32 v{tmp}, 4, v{vLANE}")
    a(f"v_mov_b32 v{tmp+1}, s{sNONCE}")
    a(f"v_cmp_gt_u32 vcc, {n}, v{vLANE}")
    a(f"s_add_u32 s{sT0}, s{sFLH}, {tt0*16}")
    a(f"s_and_saveexec_b64 s[{sEX}:{sEX+1}], vcc")
    a(f"buffer_store_dword v{tmp+1}, v{tmp}, {srd(sWS)}, s{sT0} offen sc1 ;@fl")
    a(f"s_mov_b64 exec, s[{sEX}:{sEX+1}]")
    return
    a(f"v_lshlrev_b32 v{tmp}, 7, v{vLANE}")
    a(f"v_cmp_gt_u32 vcc, {16*n}, v{vLANE}")
    a(f"s_add_u32 s{sT0}, s{sHB}, {tt0*2048}")
    a(f"s_and_saveexec_b64 s[{sEX}:{sEX+1}], vcc")
    a(f"buffer_load_dword v247, v{tmp}, {srd(sWS)}, s{sT0} offen sc1")
    a(f"s_mov_b64 exec, s[{sEX}:{sEX+1}]")

def blk_reads(ks, ntl, rowbytes, steps_per_stage):
    sp = ks % steps_per_stage
    buf = ks % 3
    R = []
    for tl in range(ntl):
        for e4 in range(2):
            d = vAF + buf*8 + tl*4 + e4*2
            R.append(f"ds_read_b64_tr_b16 v[{d}:{d+1}], v{vCUR+tl} offset:{(16*sp + 4*e4)*rowbytes}")
    return R

def dma_t3_4w(stage):
    slot = (stage % 4) * SLOT
    G = [[f"s_mul_i32 s{sT2}, s{sW}, {16*9216}", f"s_add_u32 s{sT2}, s{sT2}, s{sFS}"]]
    for k in range(9):
        G.append([f"s_add_u32 m0, s{sT6}, {slot + 4096*k}",
                  f"s_add_u32 s{sT1}, s{sT2}, {64*k*9216}",
                  f"buffer_load_dwordx4 v{vXOFF}, {srd(sW1)}, s{sT1} offen lds"])
    return G

TORDER = [2, 3, 0, 1, 4, 5, 6, 7, 8]
def fo_rows(tile, apar):
    if tile < 8: return apar*32 + 32*tile
    return 0 if apar else 256

def p2_extra(stage):
    slot = (stage % 4) * SLOT
    tile = TORDER[stage - 14]
    r0, r1 = fo_rows(tile, 0), fo_rows(tile, 1)
    return [f"s_add_u32 m0, s{sT6}, {slot + 32768}",
            f"s_and_b32 s{sT2}, s{sW}, 1",
            f"s_mul_i32 s{sT2}, s{sT2}, {(r1 - r0)*1152}",
            f"s_add_u32 s{sT2}, s{sT2}, s{sW2E}",
            f"s_add_u32 s{sT2}, s{sT2}, {r0*1152}",
            f"buffer_load_dwordx4 v{vXR+2}, {srd(sW2)}, s{sT2} offen lds ;@d{stage}"]

def p2_main(stage, half):
    slot = (stage % 4) * SLOT
    tile = TORDER[stage - 14]
    return [[f"s_add_u32 m0, s{sT6}, {slot + aa*8192 + half*4096}",
             f"s_add_u32 s{sT2}, s{sW2B}, {(288*aa + fo_rows(tile, aa & 1) + 16*half)*1152}",
             f"buffer_load_dwordx4 v{vXR}, {srd(sW2)}, s{sT2} offen lds ;@d{stage}"] for aa in range(4)]

def dma_p2_4w(stage, offs):
    return p2_main(stage, 0) + p2_main(stage, 1) + [p2_extra(stage)]

def w2offs3_l():
    return [
     f"v_lshrrev_b32 v{vT}, 4, v{vLANE}",
     f"v_mul_u32_u24 v{vXR}, 1152, v{vT}",
     f"s_and_b32 s{sS0}, s{sW}, 1",
     f"s_lshl_b32 s{sS0}, s{sS0}, 2",
     f"v_add_u32 v{vT}, s{sS0}, v{vT}",
     f"v_bfe_u32 v{vT+1}, v{vLANE}, 1, 3",
     f"v_xor_b32 v{vT+1}, v{vT+1}, v{vT}",
     f"v_lshl_add_u32 v{vXR}, v{vT+1}, 5, v{vXR}",
     f"v_and_b32 v{vT+1}, 1, v{vLANE}",
     f"v_lshl_add_u32 v{vXR}, v{vT+1}, 4, v{vXR}",
     f"v_lshrrev_b32 v{vT}, 1, v{vLANE}",
     f"v_mul_u32_u24 v{vXR+2}, 1152, v{vT}",
     f"v_lshl_add_u32 v{vXR+2}, v{vT+1}, 4, v{vXR+2}"]

vW2E = 166
def p2_misc_l():
    return [
     f"v_lshlrev_b32 v{vL16}, 4, v{vLANE}",
     f"v_lshlrev_b32 v{vFLA}, 2, v{vLANE}",
     f"v_bfe_u32 v{vP2T+1}, v{vLANE}, 4, 1",
     f"v_bfe_u32 v{vP2T+2}, v{vLANE}, 2, 2",
     f"v_lshl_add_u32 v{vP2T+1}, v{vP2T+1}, 2, v{vP2T+2}",
     f"v_lshrrev_b32 v{vP2T}, 5, v{vLANE}",
     f"v_lshl_add_u32 v{vP2T}, v{vP2T}, 4, v{vP2T+1}",
     f"v_and_b32 v{vP2T+2}, 3, v{vLANE}",
     f"v_lshlrev_b32 v{vP2T+2}, 3, v{vP2T+2}",
     f"v_lshl_add_u32 v{vW2R}, v{vP2T}, 8, v{vP2T+2}",
     f"v_lshl_add_u32 v{vW2R}, v{vP2T+1}, 5, v{vW2R}",
     f"s_lshl_b32 s{sS0}, s{sGRP}, 14",
     f"v_add_u32 v{vW2R}, s{sS0}, v{vW2R}",
     f"v_lshl_add_u32 v{vW2E}, v{vP2T}, 5, v{vP2T+2}",
     f"s_lshl_b32 s{sS0}, s{sGRP}, 11",
     f"s_add_u32 s{sS0}, s{sS0}, 32768",
     f"v_add_u32 v{vW2E}, s{sS0}, v{vW2E}"]

def poll0_l():
    return [f"buffer_load_dword v{vPOLL}, v{vFLA}, {srd(sWS)}, s{sFLC} offen sc1"]

class Side:
    def __init__(self): self.q = []
    def add(self, min_step, instrs):
        for i in instrs: self.q.append((min_step, i))
    def emit(self, step, n):
        k = 0
        while self.q and k < n and self.q[0][0] <= step:
            a(self.q.pop(0)[1]); k += 1
    def flush(self):
        while self.q: a(self.q.pop(0)[1])

def block2(stA, stB, dma0, dma1, side, at={}, wmid=None, wend=None):
    a(f"v_add_u32 v{vCUR}, {(stA%4)*SLOT}, v{vW1R}")
    a(f"v_add_u32 v{vCUR+1}, {(stA%4)*SLOT}, v{vW1R+1}")
    for ins in blk_reads(0, 2, 128, 18): a(ins)
    for ins in blk_reads(1, 2, 128, 18): a(ins)
    dq = list(dma0)
    for ks in range(36):
        nxt = ks + 2
        if nxt == 18:
            vwait(wmid, "lgkmcnt(0)")
            a("s_barrier")
            a(f"v_add_u32 v{vCUR}, {(stB%4)*SLOT}, v{vW1R}")
            a(f"v_add_u32 v{vCUR+1}, {(stB%4)*SLOT}, v{vW1R+1}")
            dq = list(dma1)
        if nxt == 36:
            vwait(wend, "lgkmcnt(0)")
            a("s_barrier")
        for ins in at.get(ks, []): a(ins)
        pend = blk_reads(nxt, 2, 128, 18) if nxt < 36 else []
        buf = ks % 3
        for tl in range(2):
            acc = vACC2 + 16*tl
            af = vAF + buf*8 + tl*4
            nx1 = 4 if ks + 1 < 36 else 0
            nx2 = 2 if (tl == 1 and nxt < 36) else 0
            a(f"s_waitcnt lgkmcnt({(2 if tl == 0 else 0) + nx1 + nx2})")
            a(f"v_mfma_f32_32x32x16_bf16 {vr(acc,16)}, {vr(af)}, {vr(vX+4*ks)}, {vr(acc,16) if ks else 0}")
            for ins in (pend[:2] if tl == 0 else pend[2:]): a(ins)
            if tl == 1 and dq:
                for ins in dq.pop(0): a(ins)
            else:
                side.emit(ks, 3)
    side.flush()

_pc = [0]
def snap_l(tag="snap"):
    return [f"buffer_load_dword v{vPOLL}, v{vFLA}, {srd(sWS)}, s{sFLC} offen sc1 ;@{tag}"]

def snap_check(tiles):
    _pc[0] += 1
    n = _pc[0]
    lo = sum(0xF << (4*t) for t in tiles if t < 8)
    hi = 0xF if 8 in tiles else 0
    def chk():
        a(f"v_cmp_ne_u32 vcc, s{sNONCE}, v{vPOLL}")
        a(f"s_and_b32 s{sT0}, vcc_lo, 0x{lo:x}")
        if hi:
            a(f"s_and_b32 s{sT1}, vcc_hi, 0x{hi:x}")
            a(f"s_or_b32 s{sT0}, s{sT0}, s{sT1}")
    chk()
    a(f"s_cbranch_scc0 L_ok_{n}")
    a(f"s_mov_b32 s{sSPIN}, 0")
    lab(f"L_spin_{n}")
    for ins in snap_l("skip"): a(ins)
    a(f"s_add_u32 s{sSPIN}, s{sSPIN}, 1")
    a(f"s_cmp_gt_u32 s{sSPIN}, {SPIN_MAX}")
    a(f"s_cbranch_scc1 L_ok_{n}")
    a("s_waitcnt vmcnt(0)")
    chk()
    a(f"s_cbranch_scc1 L_spin_{n}")
    lab(f"L_ok_{n}")

def h_issue(tile, hset):
    d = vHS + 16*hset
    if isinstance(tile, int):
        a(f"s_add_u32 s{sT0}, s{sHL}, {tile*2048}")
    else:
        a(f"s_lshl_b32 s{sT0}, {tile}, 11")
        a(f"s_add_u32 s{sT0}, s{sT0}, s{sHL}")
    a(f"s_add_u32 s{sT1}, s{sT0}, {9*2048}")
    a(f"buffer_load_dwordx4 {vr(d)}, v{vL16}, {srd(sWS)}, s{sT0} offen sc1")
    a(f"buffer_load_dwordx4 {vr(d+4)}, v{vL16}, {srd(sWS)}, s{sT0} offen offset:1024 sc1")
    a(f"buffer_load_dwordx4 {vr(d+8)}, v{vL16}, {srd(sWS)}, s{sT1} offen sc1")
    a(f"buffer_load_dwordx4 {vr(d+12)}, v{vL16}, {srd(sWS)}, s{sT1} offen offset:1024 sc1")

def h_issue_base(base_sgpr_expr, tile, hset):
    d = vHS + 16*hset
    a(f"s_add_u32 s{sT0}, s{sHL}, {tile*2048 + base_sgpr_expr}" if tile*2048 + base_sgpr_expr >= 0 else f"s_sub_u32 s{sT0}, s{sHL}, {-(tile*2048 + base_sgpr_expr)}")
    a(f"s_add_u32 s{sT1}, s{sT0}, {9*2048}")
    a(f"buffer_load_dwordx4 {vr(d)}, v{vL16}, {srd(sWS)}, s{sT0} offen sc1")
    a(f"buffer_load_dwordx4 {vr(d+4)}, v{vL16}, {srd(sWS)}, s{sT0} offen offset:1024 sc1")
    a(f"buffer_load_dwordx4 {vr(d+8)}, v{vL16}, {srd(sWS)}, s{sT1} offen sc1")
    a(f"buffer_load_dwordx4 {vr(d+12)}, v{vL16}, {srd(sWS)}, s{sT1} offen offset:1024 sc1")

def zero_accp_l():
    return [f"v_mov_b32 v{vACCP+r}, 0" for r in range(72)]

cm("---- path A")
vmA = VM(["d10"]*4 + ["d11"]*4)
CUR["vm"] = vmA
sd = Side()
sd.add(0, w2offs3_l())
block2(9, 10, dma_x_4w(12, 192), dma_x_4w(13, 384), sd, wmid=["d10"], wend=["d11"])
stamp(3)
epi(vACC1+16, 1, 1)
for ins in p2_misc_l(): a(ins)
for ins in snap_l(): a(ins)
epi(vACC1, 1, 0)
vwait(["d12", "snap"])
stamp(4)
a("s_barrier")
snap_check([2, 3])
epi(vACC2, 2, 4, side=h_groups(18*2048, TORDER[0], 2, "h0x") + h_groups(0, TORDER[0], 0, "h0"), per=1)
vwait(["st0", "st1", "d13"])
flags(0, 2)
stamp(5)
a("s_barrier")
stamp(6)
stamp(7)
a("s_branch L_p2")

lab("L_pathB")
cm("---- path B")
vmB = VM(["d10"]*4 + ["d11"]*4)
CUR["vm"] = vmB
a("s_nop 7")
epi(vACC1, 2, 2)
vwait(["d10"])
stamp(3)
a("s_barrier")
for ins in w2offs3_l(): a(ins)
for ins in [f"v_lshrrev_b32 v{vT}, 5, v{vLANE}",
            f"v_bfe_u32 v{vT+1}, v{vLANE}, 2, 2",
            f"v_lshl_add_u32 v{vT}, v{vT}, 3, v{vT+1}",
            f"v_lshlrev_b32 v{vT}, 6, v{vT}",
            f"v_bfe_u32 v{vT+1}, v{vLANE}, 4, 1",
            f"v_lshlrev_b32 v{vT+1}, 5, v{vT+1}",
            f"v_and_b32 v{vT+2}, 3, v{vLANE}",
            f"v_lshlrev_b32 v{vT+2}, 3, v{vT+2}",
            f"v_add3_u32 v{vWR}, v{vT}, v{vT+1}, v{vT+2}",
            f"v_add_u32 v{vWR}, 24576, v{vWR}"]: a(ins)
a("s_waitcnt vmcnt(0)")
vmB.q = []
flags(2, 2)
pf_emit("b10")
stamp(4)
a("s_barrier")
stamp(5)
vAFX = 160
def b3_set(stage):
    sl = (stage % 4)*SLOT
    a(f"v_add_u32 v{vCUR}, {sl}, v{vW1R}")
    a(f"v_add_u32 v{vCUR+1}, {sl}, v{vW1R+1}")
    a(f"v_add_u32 v{vWR+1}, {sl}, v{vWR}")
def b3_reads(ks):
    sp, buf = ks % 12, ks % 3
    R = []
    for tl in range(2):
        for e4 in range(2):
            d = vAF + buf*8 + tl*4 + e4*2
            R.append(f"ds_read_b64_tr_b16 v[{d}:{d+1}], v{vCUR+tl} offset:{(16*sp + 4*e4)*128}")
    for e4 in range(2):
        d = vAFX + buf*4 + e4*2
        R.append(f"ds_read_b64_tr_b16 v[{d}:{d+1}], v{vWR+1} offset:{(16*sp + 4*e4)*64}")
    return R
b3_set(11)
for ins in b3_reads(0): a(ins)
for ins in b3_reads(1): a(ins)
dq = dma_p2_4w(14, vXR)
for ks in range(36):
    nxt = ks + 2
    if nxt == 12:
        a("s_waitcnt lgkmcnt(0)")
        a("s_barrier")
        b3_set(12)
        dq = dma_p2_4w(15, vXR)
    if nxt == 24:
        vwait(["d14"], "lgkmcnt(0)")
        a("s_barrier")
        b3_set(13)
        dq = dma_p2_4w(16, vXR)
    if nxt == 36:
        vwait(["d15"], "lgkmcnt(0)")
        a("s_barrier")
    pend = b3_reads(nxt) if nxt < 36 else []
    buf = ks % 3
    for tl in range(3):
        acc = (vACC2 + 16*tl) if tl < 2 else vACC1
        af = (vAF + buf*8 + tl*4) if tl < 2 else (vAFX + buf*4)
        nx1 = 6 if ks + 1 < 36 else 0
        nx2 = 2*tl if nxt < 36 else 0
        a(f"s_waitcnt lgkmcnt({min(15, 2*(2 - tl) + nx1 + nx2)})")
        a(f"v_mfma_f32_32x32x16_bf16 {vr(acc,16)}, {vr(af)}, {vr(vX+4*ks)}, {vr(acc,16) if ks else 0}")
        for ins in pend[2*tl:2*tl+2]: a(ins)
        if tl == 2 and dq:
            for ins in dq.pop(0): a(ins)
stamp(6)
def dmaB_part(T): return p2_main(T, 1)
for ins in p2_misc_l(): a(ins)
epi(vACC2, 1, 6, side=[snap_l()] + dmaB_part(17), per=2)
epi(vACC2+16, 1, 7)
vwait(["d16", "snap"])
a("s_barrier")
snap_check([0, 1, 4, 5])
epi(vACC1, 1, 8, side=h_groups(0, TORDER[3], 0, "h3") + dmaB_part(18) + h_groups(0, TORDER[4], 1, "h4"), per=3)
vwait(["d17"])
a("s_barrier")
emit_groups(dmaB_part(19))
stamp(7)

vRA = 176
vRE = 192
def p2_reads(idx, sl, hoff):
    st, jn = idx // 9, idx % 9
    d = (196 if DEEP else vAF2) + (idx % RING)*4
    so = (sl % 2)*SLOT
    if jn < 8:
        return [f"ds_read_b64_tr_b16 v[{d+2*e4}:{d+2*e4+1}], v{vRA + 8*(sl//2) + jn} offset:{so + hoff*16384 + st*8192 + e4*2048}" for e4 in range(2)]
    return [f"ds_read_b64_tr_b16 v[{d+2*e4}:{d+2*e4+1}], v{vRE + sl//2} offset:{so + hoff*2048 + st*1024 + e4*256}" for e4 in range(2)]

def p2_unrolled(G):
    tg = "AB"[G]
    for jn in range(8):
        a(f"v_xor_b32 v{vRA+jn}, {jn << 5}, v{vW2R}")
        a(f"v_add_u32 v{vRA+8+jn}, {2*SLOT}, v{vRA+jn}")
    a(f"v_mov_b32 v{vRE}, v{vW2E}")
    a(f"v_add_u32 v{vRE+1}, {2*SLOT}, v{vW2E}")
    a(f"s_add_u32 s95, s{sHL}, {9*2048}")
    if G == 0:
        segs = [(0, "x", 2, "h0x"), (0, "o", 0, "h0"), (1, "x", 3, "h1x"), (1, "o", 1, "h1"), (2, "x", 0, "h2x"), (2, "o", 2, "h2")] + [(s_, "o", (s_ % 3) if s_ != 3 else 3, f"h{s_}") for s_ in range(3, 9)]
    else:
        segs = [(s_, "o", s_ % 3, f"h{s_}") for s_ in range(3, 9)]
    def rd(si, idx):
        stage, kind, _, _ = segs[si]
        return p2_reads(idx, (14 + stage) % 4, 1 if kind == "x" else 0)
    for i in range(LA):
        for ins in rd(0, i): a(ins)
    for si, (s_, kind, hset, hname) in enumerate(segs):
        ev = {}
        def add(pos, blk): ev.setdefault(pos, []).append(blk)
        def add_h(pos, sh, hs=None, other=False):
            t2 = TORDER[sh]
            d = hreg(sh % 3 if hs is None else hs)
            for k in range(4):
                blk = []
                if k % 2 == 0:
                    blk.append(f"s_add_u32 s{sT1}, {'s95' if k >= 2 else f's{sHL}'}, {t2*2048 + (18*2048 if other else 0)}")
                blk += [f"buffer_load_dwordx4 {vr(d+4*k)}, v{vL16}, {srd(sWS)}, s{sT1} offen offset:{1024*(k%2)} sc1"]
                add(pos + k, blk)
        def add_d(dpos, T):
            for aa, g_ in enumerate(p2_main(T, G)):
                add(dpos + aa, g_)
            if G == 0:
                add(dpos + 4, p2_extra(T))
        p0 = 0 if G == 0 else 9
        if G == 0 and s_ <= 2:
            if (s_, kind) == (0, "x"):
                add_h(1, 1, hs=3, other=True)
                add_h(6, 1, hs=1)
                add(12, snap_l())
            if (s_, kind) == (0, "o"):
                add(2, [("WAIT", ["st4", "st5"]), ("FLAGS", 4, 2)])
                add(9, [("WAIT", ["snap"]), ("CHK", [0, 1])])
                add_h(10, 2, hs=2)
            if (s_, kind) == (1, "x"):
                add_h(1, 2, hs=0, other=True)
                add_d(5, 17)
            if (s_, kind) == (1, "o"):
                add_h(1, 3, hs=3)
                add(8, snap_l())
            if (s_, kind) == (2, "x"):
                add(0, [("WAIT", ["snap"]), ("CHK", [4, 5])])
                add_h(1, 4, hs=1)
                add_d(5, 18)
        else:
            if s_ + 2 <= 8:
                if G == 1 and s_ == 3:
                    add(0, [("WAIT", ["st6", "st7", "st8"]), ("FLAGS", 6, 3)])
                if s_ == 4:
                    add(10, snap_l())
                elif s_ == 5:
                    add(0, [("WAIT", ["snap"]), ("CHK", [6, 7, 8])])
                    add_h(1, 6)
                    add_h(10, 7)
                else:
                    add_h(p0 + 1, s_ + 2)
            T = 16 + G + s_
            if T <= 22:
                add_d(5 if G == 0 else 14, T)
        if PROF2 and kind == "o": stamp(1 + s_, 2)
        vwait([hname])
        last = (si == len(segs) - 1)
        for idx in range(18):
            st, jn = idx // 9, idx % 9
            if idx == 18 - LA and kind == "o" and s_ < 8:
                vwait([f"d{15+s_}"])
                a("s_barrier")
            nout = 2*(LA - 1) if not last else 2*min(LA - 1, 17 - idx)
            a(f"s_waitcnt lgkmcnt({nout})")
            af = (196 if DEEP else vAF2) + (idx % RING)*4
            nx = idx + LA
            r_ = rd(si, nx) if nx < 18 else (rd(si+1, nx - 18) if not last else [None, None])
            for mh in range(2):
                acc = vACCP + (jn*2 + mh)*4
                hf = hreg(hset) + st*8 + mh*4
                a(f"v_mfma_f32_16x16x32_bf16 {vr(acc)}, {vr(af)}, {vr(hf)}, {vr(acc) if not (si == 0 and st == 0) else 0}")
                if r_[mh]: a(r_[mh])
            for blk in ev.get(idx, []):
                for ins in blk:
                    if isinstance(ins, tuple):
                        if ins[0] == "CHK": snap_check(ins[1])
                        elif ins[0] == "WAIT": vwait(ins[1])
                        elif ins[0] == "FLAGS": flags(ins[1], ins[2], tmp=vP2T)
                    else: a(ins)

stamp(8)
CUR["vm"] = vmB
p2_unrolled(1)
a("s_branch L_p2_done")
lab("L_p2")
stamp(8)
CUR["vm"] = vmA
p2_unrolled(0)
CUR["vm"] = None
lab("L_p2_done")
stamp(9)
if PROF4: a("s_memrealtime s[64:65]")
a(f"s_mul_i32 s{sT0}, s{sW}, 9216")
a(f"v_add_u32 v{vP2T+1}, s{sT0}, v{vL16}")
a(f"v_add_u32 v{vP2T}, {3*SLOT}, v{vP2T+1}")
a(f"s_lshl_b32 s{sT2}, s{sMT}, 2")
a(f"s_add_u32 s{sT2}, s{sT2}, s{sNB}")
a(f"s_lshl_b32 s{sT2}, s{sT2}, 2")
a(f"s_add_u32 s{sT2}, s{sT2}, s{sW}")
a(f"s_lshl_b32 s{sT2}, s{sT2}, 1")
a(f"s_add_u32 s{sT2}, s{sT2}, s{sGRP}")
a(f"s_mul_i32 s{sT2}, s{sT2}, {4*6*1024}")
a(f"s_add_u32 s{sHL}, s{sT2}, {WS_RS}")
a(f"s_cmp_lg_u32 s{sGRP}, 0")
a("s_cbranch_scc1 L_rsB")

def rs_path(tag, send, keep, send_addr, recv_addr):
    for i, t in enumerate(send):
        a(f"ds_write_b128 v{send_addr}, {vr(vACCP+4*t)} offset:{i*1024}")
    a("s_waitcnt lgkmcnt(0)")
    a("s_barrier")
    for i, t in enumerate(keep):
        a(f"ds_read_b128 {vr(72+4*i)}, v{recv_addr} offset:{i*1024}")
    Q = 176
    for k in range(6):
        a(f"v_mov_b32 v{Q+4*k+3}, s{sNONCE}")
    for i, t in enumerate(keep):
        a(f"s_waitcnt lgkmcnt({len(keep)-1-i})")
        for r in range(4):
            a(f"v_add_f32 v{vACCP+4*t+r}, v{vACCP+4*t+r}, v{72+4*i+r}")
    if PROF4: stamp(10)
    K0 = vACCP + 4*keep[0]
    a(f"s_cmp_eq_u32 s{sW}, s{sG}")
    a(f"s_cbranch_scc1 L_rs_own_{tag}")
    a(f"s_mul_i32 s{sT0}, s{sG}, {6*1024}")
    a(f"s_add_u32 s{sT0}, s{sT0}, s{sHL}")
    a(f"s_add_u32 s{sT1}, s{sT0}, 4096")
    for k in range(6):
        for i in range(3):
            d = 3*k + i
            a(f"v_cvt_pk_bf16_f32 v{Q+4*k+i}, v{K0+2*d}, v{K0+2*d+1}")
        a(f"buffer_store_dwordx4 {vr(Q+4*k)}, v{vL16}, {srd(sWS)}, s{sT0 if k < 4 else sT1} offen offset:{(k%4)*1024} sc1")
    a("s_branch L_end")
    lab(f"L_rs_own_{tag}")
    a(f"v_and_b32 v{vP2T+2}, 15, v{vLANE}")
    a(f"v_mul_u32_u24 v{vP2T+2}, 1152, v{vP2T+2}")
    a(f"v_lshrrev_b32 v{vP2T+3}, 4, v{vLANE}")
    a(f"v_lshl_add_u32 v{vP2T+2}, v{vP2T+3}, 3, v{vP2T+2}")
    a(f"s_mul_i32 s{sT4}, s{sW}, {32*1152}")
    a(f"s_add_u32 s{sT4}, s{sT4}, s{sXB}")
    a(f"s_lshl_b32 s{sT5}, s{sNB}, 5")
    a(f"s_add_u32 s{sT6}, s{sT4}, s{sT5}")
    a(f"s_add_u32 s{sT6}, s{sT6}, 1024")
    a(f"s_add_u32 s{sT7}, s{sT6}, {16*1152}")
    a(f"s_lshl_b32 s{sT5}, s{sNB}, 8")
    a(f"s_add_u32 s{sT4}, s{sT4}, s{sT5}")
    a(f"s_add_u32 s{sT5}, s{sT4}, {16*1152}")
    R = 72
    for p in range(1, 4):
        a(f"s_add_u32 s{sT0}, s{sG}, {p}")
        a(f"s_and_b32 s{sT0}, s{sT0}, 3")
        a(f"s_mul_i32 s{sT0}, s{sT0}, {6*1024}")
        a(f"s_add_u32 s{93+p}, s{sT0}, s{sHL}")
    a(f"v_mov_b32 v{vP2T+4}, {5*1024 + 63*16 + 12}")
    a(f"s_mov_b32 s{sSPIN}, 0")
    lab(f"L_rs_poll_{tag}")
    for p in range(3):
        a(f"buffer_load_dword v{R+p}, v{vP2T+4}, {srd(sWS)}, s{94+p} offen sc1")
    a(f"s_add_u32 s{sSPIN}, s{sSPIN}, 1")
    a(f"s_cmp_gt_u32 s{sSPIN}, {SPIN_MAX}")
    a(f"s_cbranch_scc1 L_rs_spin_{tag}")
    a(f"s_mov_b64 s[{sT2}:{sT2+1}], 0")
    a("s_waitcnt vmcnt(0)")
    for p in range(3):
        a(f"v_cmp_ne_u32 vcc, s{sNONCE}, v{R+p}")
        a(f"s_or_b64 s[{sT2}:{sT2+1}], s[{sT2}:{sT2+1}], vcc")
    a(f"s_cbranch_scc1 L_rs_poll_{tag}")
    lab(f"L_rs_spin_{tag}")
    for p in range(1, 4):
        a(f"s_add_u32 s{sT1}, s{93+p}, 4096")
        for k in range(6):
            a(f"buffer_load_dwordx4 {vr(R+24*(p-1)+4*k)}, v{vL16}, {srd(sWS)}, s{93+p if k < 4 else sT1} offen offset:{(k%4)*1024} sc1")
    a(f"s_add_u32 s{sSPIN}, s{sSPIN}, 1")
    a(f"s_cmp_gt_u32 s{sSPIN}, {SPIN_MAX}")
    a(f"s_cbranch_scc1 L_rs_spin_out_{tag}")
    a(f"s_mov_b64 s[{sT2}:{sT2+1}], 0")
    TS = 196
    T = vP2T + 4
    for q in range(18):
        p, k = q // 6, q % 6
        a(f"s_waitcnt vmcnt({17-q})")
        a(f"v_cmp_ne_u32 vcc, s{sNONCE}, v{R+4*q+3}")
        for i in range(3):
            d = 3*k + i
            src = R + 4*q + i
            if p == 0:
                a(f"v_lshlrev_b32 v{TS+2*d}, 16, v{src}")
                a(f"v_and_b32 v{TS+2*d+1}, 0xffff0000, v{src}")
            else:
                a(f"v_lshlrev_b32 v{T}, 16, v{src}")
                a(f"v_and_b32 v{T+1}, 0xffff0000, v{src}")
                a(f"v_add_f32 v{TS+2*d}, v{TS+2*d}, v{T}")
                a(f"v_add_f32 v{TS+2*d+1}, v{TS+2*d+1}, v{T+1}")
        a(f"s_or_b64 s[{sT2}:{sT2+1}], s[{sT2}:{sT2+1}], vcc")
    a(f"s_cbranch_scc1 L_rs_spin_{tag}")
    lab(f"L_rs_spin_out_{tag}")
    a("s_waitcnt vmcnt(0)")
    if PROF4: stamp(11)
    for r in range(36):
        a(f"v_add_f32 v{K0+r}, v{K0+r}, v{TS+r}")
    if PROF4: stamp(12)
    for i, t in enumerate(keep):
        jn, mh = t // 2, t % 2
        d = Q + 2*(i % 8)
        a(f"v_cvt_pk_bf16_f32 v{d}, v{vACCP+4*t}, v{vACCP+4*t+1}")
        a(f"v_cvt_pk_bf16_f32 v{d+1}, v{vACCP+4*t+2}, v{vACCP+4*t+3}")
        if jn < 8:
            a(f"buffer_store_dwordx2 v[{d}:{d+1}], v{vP2T+2}, {srd(sOUT)}, s{sT5 if mh else sT4} offen offset:{jn*32}")
        else:
            a(f"buffer_store_dwordx2 v[{d}:{d+1}], v{vP2T+2}, {srd(sOUT)}, s{sT7 if mh else sT6} offen")
    a("s_branch L_end")

rs_path("A", list(range(9, 18)), list(range(0, 9)), vP2T, vP2T+1)
lab("L_rsB")
rs_path("B", list(range(0, 9)), list(range(9, 18)), vP2T+1, vP2T)

lab("L_end")
if PROF:
    stamp(15)
    a("s_memrealtime s[96:97]")
    a("s_mov_b64 exec, -1")
    a("s_cmp_ge_u32 s2, 256")
    a("s_cbranch_scc1 L_end2")
    a("s_waitcnt lgkmcnt(0)")
    for i in range(1, 16):
        a(f"s_sub_u32 s{64+2*(i-1)}, s{64+2*(i-1)}, s100")
    a(f"v_mov_b32 v0, 0")
    for i in range(1, 16):
        a(f"v_writelane_b32 v0, s{64+2*(i-1)}, {i}")
    if PROF4:
        a("s_add_u32 s64, s64, s100")
        a("s_and_b32 s64, s64, 0xfffff")
        a("v_writelane_b32 v0, s64, 1")
        a("s_and_b32 s66, s98, 0xfffff")
        a("v_writelane_b32 v0, s66, 2")
        a("s_and_b32 s66, s96, 0xfffff")
        a("v_writelane_b32 v0, s66, 3")
    a("s_sub_u32 s96, s96, s98")
    a("v_writelane_b32 v0, s96, 14")
    a(f"s_lshl_b32 s{sT0}, s2, 3")
    a(f"s_add_u32 s{sT0}, s{sT0}, s{sWV}")
    a(f"s_lshl_b32 s{sT0}, s{sT0}, 6")
    a(f"s_add_u32 s{sT0}, s{sT0}, {WS_PROF}")
    a(f"v_lshlrev_b32 v1, 2, v{vLANE}")
    a(f"v_cmp_gt_u32 vcc, 16, v{vLANE}")
    a(f"s_and_saveexec_b64 s[{sEX}:{sEX+1}], vcc")
    a(f"buffer_store_dword v0, v1, {srd(sWS)}, s{sT0} offen")
    if PROFDBG:
        a(f"s_cmp_lg_u32 s{sT0}, {WS_PROF}")
        a("s_cbranch_scc1 L_end2")
        a(f"buffer_store_dword v0, v1, {srd(sDBG)}, 0 offen")
    lab("L_end2")
a("s_endpgm")

hdr = [
 f"; @launch grid=(256,1,1) block=(512,1,1) lds={LDS_SIZE}",
 '.amdgcn_target "amdgcn-amd-amdhsa--gfx950"',
 ".text",
 f".globl {KNAME}",
 ".p2align 8",
 f".type {KNAME},@function",
]
ftr = [
 '.section .rodata,"a"',
 ".p2align 6",
 f".amdhsa_kernel {KNAME}",
 "  .amdhsa_next_free_vgpr 256",
 "  .amdhsa_next_free_sgpr 102",
 "  .amdhsa_accum_offset 256",
 "  .amdhsa_group_segment_fixed_size 0",
 "  .amdhsa_kernarg_size 48",
 "  .amdhsa_user_sgpr_count 2",
 "  .amdhsa_user_sgpr_kernarg_segment_ptr 1",
 "  .amdhsa_system_sgpr_workgroup_id_x 1",
 ".end_amdhsa_kernel",
]
if ROT:
    L2 = []
    for i, l in enumerate(L):
        if " lds" in l and "s[8:11]" in l:
            L2.append(f"    s_sub_u32 s{sS1}, s{sT1}, {576*9216}")
            L2.append(f"    s_cselect_b32 s{sT1}, s{sT1}, s{sS1}")
        L2.append(l)
    L = L2
if "--nt" in sys.argv:
    L = [ (l.replace(" offen lds", " offen nt lds") if (" lds" in l and ("s[4:7]" in l or "s[8:11]" in l)) else l) for l in L]
if "--nt2" in sys.argv:
    L = [ (l.replace(" offen lds", " offen nt lds") if (" lds" in l) else l) for l in L]
print("\n".join(hdr + L + ftr))
```

```python
import sys

PROF = "--prof" in sys.argv or "--prof0" in sys.argv or "--prof2" in sys.argv or "--prof3" in sys.argv or "--prof4" in sys.argv or "--prof5" in sys.argv
PROF2 = "--prof2" in sys.argv
PROF3 = "--prof3" in sys.argv
PROF4 = "--prof4" in sys.argv
PROF5 = "--prof5" in sys.argv
PROF0 = "--prof0" in sys.argv
PROFDBG = "--dbgout" in sys.argv
NOH = "--noh" in sys.argv
NODMA = "--nodma" in sys.argv
NORD = "--nord" in sys.argv
NOPF = "--nopf" in sys.argv
NOBAR = "--nobar" in sys.argv
ROT = "--rot" in sys.argv or "--rotx" in sys.argv
DEEP = "--deep" in sys.argv
RING = 9 if DEEP else 6
LA = 7 if DEEP else 4
PLAINH = "--plainh" in sys.argv
NORETOUCH = "--noretouch" in sys.argv
WS_PROF = 96 << 20

KNAME = "standalone__dense_activation_silu__prompt_kernel"
L = []
CUR = {"vm": None}
def a(s):
    if ";@" in s:
        s, tag = s.split(";@")
        s = s.rstrip()
        if CUR["vm"] is not None and tag != "skip": CUR["vm"].issue(tag)
    L.append(s if s.endswith(":") else "    " + s)

class VM:
    def __init__(self, init): self.q = list(init)
    def issue(self, name): self.q.append(name)
    def need(self, names):
        idx = [i for i, n in enumerate(self.q) if n in names]
        if not idx: return None
        n = len(self.q) - 1 - max(idx)
        self.q = self.q[max(idx)+1:]
        return n
    def wait(self, names, extra=""):
        n = self.need(names)
        if n is None:
            if extra: a(f"s_waitcnt {extra}")
            return
        a(f"s_waitcnt vmcnt({n}) {extra}".rstrip())
def vwait(names, extra=""): CUR["vm"].wait(names, extra)
def lab(s): L.append(s + ":")
def cm(s): L.append("    ; " + s)
def stamp(i, p0=False):
    if PROF0 and not p0 and i not in (0, 15): return
    if PROF2 and p0 != 2 and i not in (0, 15): return
    if PROF:
        r = 100 if i == 0 else 64 + 2*(i-1)
        L.append(f"    s_memtime s[{r}:{r+1}]")

SLOT = 36864
LDS_NONCE = 4 * SLOT
LDS_SIZE = 4 * SLOT + 64
WS_RS = 32 << 20
WS_FLAG_H = 64 << 20
WS_FLAG_RS = (64 << 20) + (1 << 20)
LOG2E_NEG = 0xbfb8aa3b

sX, sW1, sW2, sOUT, sWS, sDBG = 4, 8, 12, 16, 20, 24
sMT, sG, sNB, sJ, sWV, sW, sGRP, sNONCE = 28, 29, 30, 31, 32, 33, 34, 35
sF0B = 36
sXB = 37
sT0, sT1, sT2, sT3, sT4, sT5 = 38, 39, 40, 41, 42, 43
sSLOTN = 44
sSLOTD = 45
sHB = 46
sFLH = 47
sFS = 50
sLOG = 51
sST = 52
sHL = 53
sW2B = 54
sW2E = 55
sPEND2 = 56
sNT = 57
sEX = 58
sFLC = 60
sT6, sT7 = 62, 63
sSPIN = 61
SPIN_MAX = 200000

def srd(r): return f"s[{r}:{r+3}]"

vX = 0
vACC1 = 144
vACC2 = 176
vAF = 208
vXR = 232
vWR = 236
vW1R = 238
vXOFF = 240
vW0OFF = 241
vW1OFF = 242
vLANE = 243
vHST = 244
vCUR = 245
vT = 248
vACCP = 0
vAF2 = 72
vHS = 96
vW2R = 160
vW2C = 161
vW2N = 162
vPOLL = 163
vFLA = 164
vL16 = 165
vP2T = 168
sS0, sS1 = 48, 49
sPK1 = 94
sPK2 = 96

def vr(b, n=4): return f"v[{b}:{b+n-1}]"

lab(KNAME)
a("s_cmp_ge_u32 s2, 256")
a("s_cbranch_scc1 L_end")
stamp(0)
a("s_load_dwordx4 s[80:83], s[0:1], 0")
a("s_load_dwordx4 s[84:87], s[0:1], 16")
a("s_load_dwordx4 s[88:91], s[0:1], 32")
a("s_memrealtime s[92:93]")
if PROF: a("s_memrealtime s[98:99]")
a(f"v_and_b32 v{vLANE}, 63, v0")
a(f"v_lshrrev_b32 v{vT}, 6, v0")
a("s_nop 0")
a(f"v_readfirstlane_b32 s{sWV}, v{vT}")
a(f"s_and_b32 s{sT0}, s2, 7")
a(f"s_lshr_b32 s{sT1}, s2, 3")
a(f"s_lshr_b32 s{sG}, s{sT0}, 1")
a(f"s_and_b32 s{sT2}, s{sT0}, 1")
a(f"s_lshl_b32 s{sT2}, s{sT2}, 3")
a(f"s_lshr_b32 s{sT3}, s{sT1}, 2")
a(f"s_add_u32 s{sMT}, s{sT2}, s{sT3}")
a(f"s_and_b32 s{sNB}, s{sT1}, 3")
a(f"s_lshl_b32 s{sJ}, s{sG}, 2")
a(f"s_add_u32 s{sJ}, s{sJ}, s{sNB}")
a(f"s_and_b32 s{sW}, s{sWV}, 3")
a(f"s_lshr_b32 s{sGRP}, s{sWV}, 2")
a(f"s_mul_i32 s{sT0}, s{sJ}, 576")
a(f"s_and_b32 s{sT1}, s{sJ}, 1")
a(f"s_lshl_b32 s{sT2}, s{sT1}, 6")
a(f"s_add_u32 s{sF0B}, s{sT0}, s{sT2}")
a(f"s_xor_b32 s{sT1}, s{sT1}, 1")
a(f"s_lshl_b32 s{sT1}, s{sT1}, 9")
a(f"s_add_u32 s{sFS}, s{sT0}, s{sT1}")
a(f"s_mul_i32 s{sXB}, s{sMT}, {128*1152}")
sRHO = 97
if ROT:
    if "--rotx" in sys.argv:
        a(f"s_lshl_b32 s{sT0}, s{sG}, 1")
        a(f"s_lshr_b32 s{sT1}, s{sMT}, 3")
        a(f"s_add_u32 s{sT0}, s{sT0}, s{sT1}")
    else:
        a(f"s_add_u32 s{sT0}, s{sMT}, s{sJ}")
        a(f"s_mul_i32 s{sT1}, s{sT0}, 57")
        a(f"s_lshr_b32 s{sT1}, s{sT1}, 9")
        a(f"s_mul_i32 s{sT1}, s{sT1}, 9")
        a(f"s_sub_u32 s{sT0}, s{sT0}, s{sT1}")
    a(f"s_lshl_b32 s{sRHO}, s{sT0}, 7")
    a(f"s_mul_i32 s{sT0}, s{sT0}, {64*9216}")
    a(f"s_add_u32 s{sF0B}, s{sF0B}, s{sT0}")
    a(f"s_add_u32 s{sFS}, s{sFS}, s{sT0}")
a(f"s_mov_b32 s{sLOG}, 0x{LOG2E_NEG:08x}")

l = vLANE
t0, t1, t2, t3 = vT, vT+1, vT+2, vT+3
a(f"v_lshrrev_b32 v{t0}, 3, v{l}")
a(f"v_mul_u32_u24 v{vXOFF}, 1152, v{t0}")
a(f"v_and_b32 v{t1}, 7, v{l}")
a(f"v_lshrrev_b32 v{t2}, 4, v{l}")
a(f"v_xor_b32 v{t1}, v{t1}, v{t2}")
a(f"s_and_b32 s{sT0}, s{sWV}, 1")
a(f"s_lshl_b32 s{sT0}, s{sT0}, 2")
a(f"v_xor_b32 v{t1}, s{sT0}, v{t1}")
a(f"v_lshlrev_b32 v{t1}, 4, v{t1}")
a(f"v_add_u32 v{vXOFF}, v{vXOFF}, v{t1}")
a(f"v_lshrrev_b32 v{t0}, 4, v{l}")
a(f"v_mul_u32_u24 v{vW0OFF}, 9216, v{t0}")
a(f"v_bfe_u32 v{t1}, v{l}, 2, 2")
a(f"v_xor_b32 v{t1}, v{t1}, v{t0}")
a(f"v_lshlrev_b32 v{t1}, 6, v{t1}")
a(f"v_and_b32 v{t2}, 3, v{l}")
a(f"v_lshlrev_b32 v{t2}, 4, v{t2}")
a(f"v_add3_u32 v{vW0OFF}, v{vW0OFF}, v{t1}, v{t2}")
a(f"s_mul_i32 s{sT4}, s{sWV}, {8*1152}")
a(f"s_add_u32 s{sT4}, s{sT4}, s{sXB}")
a(f"s_mul_i32 s{sT5}, s{sWV}, {4*9216}")
a(f"s_add_u32 s{sT5}, s{sT5}, s{sF0B}")
a(f"s_lshl_b32 s{sT6}, s{sWV}, 10")
a("s_waitcnt lgkmcnt(0)")
for (r, src, nbytes) in ((sX, 80, 2048*576*2), (sW1, 82, 576*4608*2), (sW2, 84, 4608*576*2), (sOUT, 86, 2048*576*2), (sDBG, 88, 256), (sWS, 90, 256 << 20)):
    a(f"s_mov_b32 s{r}, s{src}")
    a(f"s_mov_b32 s{r+1}, s{src+1}")
    a(f"s_mov_b32 s{r+2}, {nbytes}")
    a(f"s_mov_b32 s{r+3}, 0x20000")

def dma_p0_list(t):
    slot = (t % 4) * SLOT
    G = []
    for k in range(2):
        if ROT:
            G.append([f"s_add_u32 m0, s{sT6}, {slot + 8192*k}",
                      f"s_add_u32 s{sT1}, s{sRHO}, {128*t}",
                      f"s_sub_u32 s{sS1}, s{sT1}, 1152",
                      f"s_cselect_b32 s{sT1}, s{sT1}, s{sS1}",
                      f"s_add_u32 s{sT1}, s{sT1}, s{sT4}",
                      f"s_add_u32 s{sT1}, s{sT1}, {64*1152*k}",
                      f"buffer_load_dwordx4 v{vXOFF}, {srd(sX)}, s{sT1} offen lds"])
        else:
            G.append([f"s_add_u32 m0, s{sT6}, {slot + 8192*k}",
                  f"s_add_u32 s{sT1}, s{sT4}, {128*t + 64*1152*k}",
                  f"buffer_load_dwordx4 v{vXOFF}, {srd(sX)}, s{sT1} offen lds"])
        G.append([f"s_add_u32 m0, s{sT6}, {slot + 16384 + 8192*k}",
                  f"s_add_u32 s{sT1}, s{sT5}, {(64*t + 32*k)*9216}",
                  f"buffer_load_dwordx4 v{vW0OFF}, {srd(sW1)}, s{sT1} offen lds"])
    return G

def dma_t1_8w(stage, dr0, fcoff):
    slot = (stage % 4) * SLOT
    G = [[f"s_mul_i32 s{sT2}, s{sWV}, {8*9216}", f"s_add_u32 s{sT2}, s{sT2}, s{sF0B}"]]
    for k in range(4):
        G.append([f"s_add_u32 m0, s{sT6}, {slot + 8192*k}",
                  f"s_add_u32 s{sT1}, s{sT2}, {(dr0 + 64*k)*9216 + fcoff}",
                  f"buffer_load_dwordx4 v{vW1OFF}, {srd(sW1)}, s{sT1} offen lds"])
    G.append([f"s_cmp_ge_u32 s{sWV}, 4",
              f"s_cbranch_scc1 L_t18_{stage}",
              f"s_add_u32 m0, s{sT6}, {slot + 8192*4}",
              f"s_add_u32 s{sT1}, s{sT2}, {(dr0 + 64*4)*9216 + fcoff}",
              f"buffer_load_dwordx4 v{vW1OFF}, {srd(sW1)}, s{sT1} offen lds",
              f"L_t18_{stage}:"])
    return G

_gid = [0]
def emit_groups_A(G):
    _gid[0] += 1
    a(f"s_cmp_lg_u32 s{sGRP}, 0")
    a(f"s_cbranch_scc1 L_gskip_{_gid[0]}")
    emit_groups(G)
    lab(f"L_gskip_{_gid[0]}")

vPFX, vPFA, vPFB, vPFC = 176, 177, 178, 179
sPFX, sPFW1, sPFW2 = 94, 95, 96
def PFx(k): return (sX, vPFX, sPFX, k*256)
def PFa(k): return (sW1, vPFA, sPFW1, k*256*9216)
def PFb(k): return (sW1, vPFB, sPFW1, k*128*9216)
def PFc(k): return (sW2, vPFC, sPFW2, k*2048*128)
PF_SCHED = {
  2: [PFb(0)], 3: [PFb(1)], 4: [PFb(2)], 5: [PFb(3)], 6: [PFb(4)], 7: [PFc(0)], 8: [PFc(1)],
  "b10": [PFc(2), PFc(3), PFc(4), PFc(5)],
}
if "--pf2" in sys.argv:
  PF_SCHED = {
  0: [PFx(2), PFa(1)], 1: [PFx(3)], 2: [PFx(4), PFa(2)], 3: [PFb(0)], 4: [PFb(1), PFb(2)], 5: [PFb(3)], 6: [PFb(4)], 7: [PFc(0)], 8: [PFc(1)],
  "b10": [PFc(2), PFc(3), PFc(4), PFc(5)],
  }
if "--pf4" in sys.argv:
  PF_SCHED = { 4: [PFc(0)], 5: [PFc(1)], 6: [PFc(2)], 7: [PFc(3)], 8: [PFc(4)], "b10": [PFc(5)] }
if "--pf5" in sys.argv:
  PF_SCHED = { 1: [PFb(0)], 2: [PFb(1)], 3: [PFb(2)], 4: [PFb(3), PFc(0)], 5: [PFb(4), PFc(1)], 6: [PFc(2)], 7: [PFc(3)], 8: [PFc(4)], "b10": [PFc(5)] }
if "--pf3" in sys.argv:
  PF_SCHED = {
  "start": [PFx(2), PFa(1)], 0: [PFx(3)], 1: [PFx(4), PFa(2)], 2: [PFb(0)], 3: [PFb(1)], 4: [PFb(2)], 5: [PFb(3)], 6: [PFb(4)], 7: [PFc(0)], 8: [PFc(1)],
  "b10": [PFc(2), PFc(3), PFc(4), PFc(5)],
  }
_pfn = [0]
def pf_emit(key, guard_grp=False):
    items = PF_SCHED.get(key, []) if not NOPF else []
    for (sr, vo, sb, off) in items:
        wv = 4 + (_pfn[0] % 4)
        _pfn[0] += 1
        a(f"s_cmp_lg_u32 s{sWV}, {wv}")
        a(f"s_cbranch_scc1 L_pfs_{_pfn[0]}")
        a(f"s_add_u32 s{sS0}, s{sb}, {off}")
        a(f"buffer_load_dword v247, v{vo}, {srd(sr)}, s{sS0} offen")
        lab(f"L_pfs_{_pfn[0]}")

def emit_groups(G):
    for g in G:
        for ins in g: a(ins)

a(f"s_lshl_b32 s{sT0}, s{sMT}, 2")
if PROFDBG: a(f"s_add_u32 s{sT0}, s{sT0}, 64")
a(f"v_mov_b32 v{vT+6}, s{sT0}")
a(f"s_lshl_b32 s{sT1}, s{sJ}, 3")
a(f"s_add_u32 s{sT1}, s{sT1}, s{sWV}")
a(f"s_cmp_lg_u32 s{sT1}, 4")
a("s_cbranch_scc1 L_no_nonce")
a(f"s_or_b32 s{sNT}, s92, 1")
a(f"v_mov_b32 v{vT+4}, s{sNT}")
a(f"buffer_store_dword v{vT+4}, v{vT+6}, {srd(sDBG)}, 0 offen sc1")
lab("L_no_nonce")
emit_groups(dma_p0_list(0))
a("s_barrier")
emit_groups(dma_p0_list(1))
emit_groups(dma_p0_list(2))
a(f"s_lshr_b32 s{sT0}, s2, 3")
a(f"s_lshl_b32 s{sT0}, s{sT0}, 6")
a(f"v_add_u32 v{vT}, s{sT0}, v{l}")
a(f"v_and_b32 v{vPFX}, 1023, v{vT}")
a(f"v_mul_u32_u24 v{vPFX}, 1152, v{vPFX}")
a(f"v_lshrrev_b32 v{vT+2}, 10, v{vT}")
a(f"v_lshl_add_u32 v{vPFX}, v{vT+2}, 7, v{vPFX}")
a(f"s_lshr_b32 s{sPFX}, s{sMT}, 3")
a(f"s_mul_i32 s{sPFX}, s{sPFX}, {1024*1152}")
a(f"v_lshrrev_b32 v{vPFA}, 3, v{vT}")
a(f"v_mul_u32_u24 v{vPFA}, 9216, v{vPFA}")
a(f"v_and_b32 v{vT+3}, 3, v{vT}")
a(f"v_bfe_u32 v{vT+7}, v{vT}, 1, 1")
a(f"v_mul_u32_u24 v{vT+7}, 3, v{vT+7}")
a(f"v_add_u32 v{vT+3}, v{vT+3}, v{vT+7}")
a(f"v_bfe_u32 v{vT+7}, v{vT}, 2, 1")
a(f"v_mul_u32_u24 v{vT+7}, 9, v{vT+7}")
a(f"v_add_u32 v{vT+3}, v{vT+3}, v{vT+7}")
a(f"v_lshl_add_u32 v{vPFA}, v{vT+3}, 7, v{vPFA}")
a(f"s_mul_i32 s{sPFW1}, s{sG}, 2304")
a(f"v_lshrrev_b32 v{vPFB}, 4, v{vT}")
a(f"v_mul_u32_u24 v{vPFB}, 9216, v{vPFB}")
a(f"v_and_b32 v{vT+7}, 7, v{vT}")
a(f"v_min_u32 v{vT+7}, 4, v{vT+7}")
a(f"v_cmp_le_u32 vcc, 3, v{vT+7}")
a(f"v_add_u32 v{vT+7}, 2, v{vT+7}")
a("s_nop 1")
a(f"v_cndmask_b32 v{vT+3}, 0, 2, vcc")
a(f"v_add_u32 v{vT+7}, v{vT+7}, v{vT+3}")
a(f"v_bfe_u32 v{vT+3}, v{vT}, 3, 1")
a(f"v_mul_u32_u24 v{vT+3}, 9, v{vT+3}")
a(f"v_add_u32 v{vT+7}, v{vT+7}, v{vT+3}")
a(f"v_lshl_add_u32 v{vPFB}, v{vT+7}, 7, v{vPFB}")
a(f"v_lshlrev_b32 v{vPFC}, 7, v{vT}")
a(f"s_mul_i32 s{sPFW2}, s{sG}, {1152*1152}")
pf_emit("start")


a(f"v_lshrrev_b32 v{t0}, 3, v{l}")
a(f"v_mul_u32_u24 v{vW1OFF}, 9216, v{t0}")
a(f"v_bfe_u32 v{t1}, v{l}, 2, 1")
a(f"v_bfe_u32 v{t2}, v{l}, 4, 1")
a(f"v_xor_b32 v{t1}, v{t1}, v{t2}")
a(f"v_lshlrev_b32 v{t1}, 6, v{t1}")
a(f"v_and_b32 v{t2}, 3, v{l}")
a(f"v_lshlrev_b32 v{t2}, 4, v{t2}")
a(f"v_add3_u32 v{vW1OFF}, v{vW1OFF}, v{t1}, v{t2}")

a(f"v_and_b32 v{t0}, 31, v{l}")
a(f"s_lshl_b32 s{sT0}, s{sW}, 12")
a(f"v_lshlrev_b32 v{t1}, 7, v{t0}")
a(f"v_add_u32 v{t1}, s{sT0}, v{t1}")
a(f"v_bfe_u32 v{t2}, v{l}, 1, 3")
a(f"v_lshrrev_b32 v{t3}, 5, v{l}")
a(f"v_xor_b32 v{t2}, v{t2}, v{t3}")
a(f"v_lshlrev_b32 v{t2}, 4, v{t2}")
a(f"v_add_u32 v{vXR}, v{t1}, v{t2}")
a(f"v_xor_b32 v{vXR+1}, 32, v{vXR}")
a(f"v_xor_b32 v{vXR+2}, 64, v{vXR}")
a(f"v_xor_b32 v{vXR+3}, 0x60, v{vXR}")
a(f"v_lshrrev_b32 v{t0}, 5, v{l}")
a(f"v_bfe_u32 v{t1}, v{l}, 2, 2")
a(f"v_lshl_add_u32 v{t0}, v{t0}, 3, v{t1}")
a(f"v_lshlrev_b32 v{t0}, 8, v{t0}")
a(f"v_bfe_u32 v{t2}, v{l}, 4, 1")
a(f"v_lshlrev_b32 v{t2}, 5, v{t2}")
a(f"v_and_b32 v{t3}, 3, v{l}")
a(f"v_lshlrev_b32 v{t3}, 3, v{t3}")
a(f"v_add3_u32 v{t0}, v{t0}, v{t2}, v{t3}")
a(f"v_add_u32 v{t0}, 16384, v{t0}")
a(f"s_lshl_b32 s{sT0}, s{sGRP}, 1")
a(f"v_xor_b32 v{t2}, s{sT0}, v{t1}")
a(f"v_lshl_add_u32 v{vWR}, v{t2}, 6, v{t0}")
a(f"v_xor_b32 v{vWR+1}, 64, v{vWR}")
a(f"v_lshrrev_b32 v{t0}, 5, v{l}")
a(f"v_lshl_add_u32 v{t0}, v{t0}, 3, v{t1}")
a(f"v_lshlrev_b32 v{t0}, 7, v{t0}")
a(f"v_bfe_u32 v{t2}, v{l}, 4, 1")
a(f"v_lshlrev_b32 v{t2}, 5, v{t2}")
a(f"v_add3_u32 v{t0}, v{t0}, v{t2}, v{t3}")
a(f"v_bfe_u32 v{t2}, v{l}, 3, 1")
a(f"v_lshl_add_u32 v{vW1R}, v{t2}, 6, v{t0}")
a(f"v_xor_b32 v{vW1R+1}, 64, v{vW1R}")
a(f"v_bfe_u32 v{t0}, v{l}, 4, 1")
a(f"v_lshlrev_b32 v{t0}, 10, v{t0}")
a(f"v_lshrrev_b32 v{t1}, 5, v{l}")
a(f"v_lshlrev_b32 v{t1}, 8, v{t1}")
a(f"v_and_b32 v{t2}, 15, v{l}")
a(f"v_lshlrev_b32 v{t2}, 4, v{t2}")
a(f"v_add3_u32 v{vHST}, v{t0}, v{t1}, v{t2}")
a(f"s_lshl_b32 s{sT0}, s{sMT}, 2")
a(f"s_add_u32 s{sT0}, s{sT0}, s{sW}")
a(f"s_mul_i32 s{sT1}, s{sT0}, 144")
a(f"s_mul_i32 s{sT2}, s{sJ}, 9")
a(f"s_add_u32 s{sT2}, s{sT1}, s{sT2}")
a(f"s_lshl_b32 s{sHB}, s{sT2}, 11")
a(f"s_mul_i32 s{sT2}, s{sG}, 36")
a(f"s_add_u32 s{sT2}, s{sT1}, s{sT2}")
a(f"s_mul_i32 s{sT3}, s{sGRP}, 18")
a(f"s_add_u32 s{sT2}, s{sT2}, s{sT3}")
a(f"s_lshl_b32 s{sHL}, s{sT2}, 11")
a(f"s_lshl_b32 s{sT0}, s{sMT}, 2")
a(f"s_add_u32 s{sT0}, s{sT0}, s{sG}")
a(f"s_lshl_b32 s{sT0}, s{sT0}, 2")
a(f"s_add_u32 s{sT0}, s{sT0}, s{sW}")
a(f"s_lshl_b32 s{sT0}, s{sT0}, 8")
a(f"s_add_u32 s{sFLC}, s{sT0}, {WS_FLAG_H}")
a(f"s_lshl_b32 s{sT1}, s{sNB}, 2")
a(f"s_add_u32 s{sFLH}, s{sFLC}, s{sT1}")
a(f"s_mul_i32 s{sT0}, s{sG}, {1152*1152}")
a(f"s_lshl_b32 s{sT1}, s{sNB}, 8")
a(f"s_add_u32 s{sW2B}, s{sT0}, s{sT1}")
a(f"s_mul_i32 s{sT1}, s{sW}, {4*1152}")
a(f"s_add_u32 s{sW2B}, s{sW2B}, s{sT1}")
a(f"s_lshl_b32 s{sT1}, s{sNB}, 5")
a(f"s_add_u32 s{sW2E}, s{sT0}, s{sT1}")
a(f"s_add_u32 s{sW2E}, s{sW2E}, 1024")
a(f"s_mul_i32 s{sT1}, s{sW}, {288*1152}")
a(f"s_add_u32 s{sW2E}, s{sW2E}, s{sT1}")

def dma_t1_all(stage, dr0, fcoff):
    slot = (stage % 4) * SLOT
    a(f"s_mul_i32 s{sT2}, s{sWV}, {8*9216}")
    a(f"s_add_u32 s{sT2}, s{sT2}, s{sF0B}")
    for k in range(5):
        if k == 4:
            a(f"s_cmp_ge_u32 s{sWV}, 4")
            a(f"s_cbranch_scc1 L_skip_t1_{stage}")
        a(f"s_add_u32 m0, s{sT6}, {slot + 8192*k}")
        a(f"s_add_u32 s{sT1}, s{sT2}, {(dr0 + 64*k)*9216 + fcoff}")
        a(f"buffer_load_dwordx4 v{vW1OFF}, {srd(sW1)}, s{sT1} offen lds")
    lab(f"L_skip_t1_{stage}")

def dma_t1_4w(stage, dr0, fcoff):
    slot = (stage % 4) * SLOT
    G = [[f"s_mul_i32 s{sT2}, s{sW}, {8*9216}", f"s_add_u32 s{sT2}, s{sT2}, s{sF0B}"]]
    for k in range(9):
        G.append([f"s_add_u32 m0, s{sT6}, {slot + 4096*k}",
                  f"s_add_u32 s{sT1}, s{sT2}, {(dr0 + 32*k)*9216 + fcoff}",
                  f"buffer_load_dwordx4 v{vW1OFF}, {srd(sW1)}, s{sT1} offen lds"])
    return G

def dma_x_8w(stage, dr0):
    slot = (stage % 4) * SLOT
    G = [[f"s_mul_i32 s{sT2}, s{sWV}, {8*9216}", f"s_add_u32 s{sT2}, s{sT2}, s{sF0B}",
          f"s_mul_i32 s{sT3}, s{sWV}, {16*9216}", f"s_add_u32 s{sT3}, s{sT3}, s{sFS}"]]
    for k in range(3):
        G.append([f"s_add_u32 m0, s{sT6}, {slot + 8192*k}",
                  f"s_add_u32 s{sT1}, s{sT2}, {(dr0 + 64*k)*9216 + 384}",
                  f"buffer_load_dwordx4 v{vW1OFF}, {srd(sW1)}, s{sT1} offen lds"])
    G.append([f"s_add_u32 m0, s{sT6}, {slot + 24576}",
              f"s_add_u32 s{sT1}, s{sT3}, {dr0*9216}",
              f"buffer_load_dwordx4 v{vXOFF}, {srd(sW1)}, s{sT1} offen lds"])
    G.append([f"s_cmp_ge_u32 s{sWV}, 4", f"s_cbranch_scc1 L_x8_{stage}",
              f"s_add_u32 m0, s{sT6}, {slot + 24576 + 8192}",
              f"s_add_u32 s{sT1}, s{sT3}, {(dr0 + 128)*9216}",
              f"buffer_load_dwordx4 v{vXOFF}, {srd(sW1)}, s{sT1} offen lds", f"L_x8_{stage}:"])
    return G

def dma_x_4w(stage, dr0):
    slot = (stage % 4) * SLOT
    G = [[f"s_mul_i32 s{sT2}, s{sW}, {8*9216}", f"s_add_u32 s{sT2}, s{sT2}, s{sF0B}",
          f"s_mul_i32 s{sT3}, s{sW}, {16*9216}", f"s_add_u32 s{sT3}, s{sT3}, s{sFS}"]]
    for k in range(6):
        G.append([f"s_add_u32 m0, s{sT6}, {slot + 4096*k}",
                  f"s_add_u32 s{sT1}, s{sT2}, {(dr0 + 32*k)*9216 + 384}",
                  f"buffer_load_dwordx4 v{vW1OFF}, {srd(sW1)}, s{sT1} offen lds ;@d{stage}"])
    for k in range(3):
        G.append([f"s_add_u32 m0, s{sT6}, {slot + 24576 + 4096*k}",
                  f"s_add_u32 s{sT1}, s{sT3}, {(dr0 + 64*k)*9216}",
                  f"buffer_load_dwordx4 v{vXOFF}, {srd(sW1)}, s{sT1} offen lds ;@d{stage}"])
    return G

def p0_reads(ks):
    t, sp = ks // 4, ks % 4
    so = (t % 2) * SLOT
    buf = ks % 3
    R = []
    R.append(f"ds_read_b128 {vr(vX+4*ks)}, v{vXR+sp} offset:{so}")
    for tl in range(2):
        for e4 in range(2):
            d = vAF + buf*8 + tl*4 + e4*2
            R.append(f"ds_read_b64_tr_b16 v[{d}:{d+1}], v{vWR+tl} offset:{so + (16*sp + 4*e4)*256}")
    return R

def toggle_p0(t):
    if t % 2 == 0 and t > 0:
        op = "v_add_u32" if (t % 4) == 2 else "v_subrev_u32"
        for r in list(range(vXR, vXR+4)) + [vWR, vWR+1]:
            a(f"{op} v{r}, {2*SLOT}, v{r}")

a("s_waitcnt vmcnt(8)")
a("s_barrier")
stamp(1, True)
pf_emit(0)
dq0 = dma_p0_list(3)
for ins in p0_reads(0): a(ins)
for ins in p0_reads(1): a(ins)
for ks in range(36):
    nxt = ks + 2
    pend = []
    if nxt % 4 == 0:
        t = nxt // 4
        a(f"s_waitcnt vmcnt(8) lgkmcnt(0)")
        if t == 8:
            a(f"s_cmp_lg_u32 s{sWV}, 4")
            a("s_cbranch_scc1 L_no_nonce2")
            a(f"s_mov_b32 s{sSPIN}, 0")
            lab("L_nonce_chk")
            a(f"v_readfirstlane_b32 s{sT0}, v{vT+4}")
            a(f"s_cmp_lg_u32 s{sT0}, 0")
            a("s_cbranch_scc1 L_nonce_ok")
            a(f"s_add_u32 s{sSPIN}, s{sSPIN}, 1")
            a(f"s_cmp_gt_u32 s{sSPIN}, {SPIN_MAX}")
            a("s_cbranch_scc1 L_nonce_ok")
            a(f"buffer_load_dword v{vT+4}, v{vT+6}, {srd(sDBG)}, 0 offen sc1")
            a("s_waitcnt vmcnt(0)")
            a("s_branch L_nonce_chk")
            lab("L_nonce_ok")
            a(f"v_mov_b32 v{vT+5}, s{sT0}")
            a(f"v_mov_b32 v{vT+6}, {LDS_NONCE}")
            a(f"ds_write_b32 v{vT+6}, v{vT+5}")
            lab("L_no_nonce2")
        a("s_barrier")
        stamp(1 + t, True) if PROF0 else None
        pf_emit(t)
        if t == 4:
            a(f"s_cmp_lg_u32 s{sWV}, 4")
            a("s_cbranch_scc1 L_no_nonce3")
            a(f"buffer_load_dword v{vT+4}, v{vT+6}, {srd(sDBG)}, 0 offen sc1")
            lab("L_no_nonce3")
        assert not dq0
        if t <= 5:
            dq0 = dma_p0_list(t + 3)
        elif t == 6:
            dq0 = dma_t1_8w(9, 0, 256)
        elif t == 7:
            dq0 = dma_t1_8w(10, 288, 256)
            a(f"v_lshrrev_b32 v{vXOFF}, 2, v{vLANE}")
            a(f"v_mul_u32_u24 v{vXOFF}, 9216, v{vXOFF}")
            a(f"v_and_b32 v{vT+7}, 3, v{vLANE}")
            a(f"v_lshl_add_u32 v{vXOFF}, v{vT+7}, 4, v{vXOFF}")
        elif t == 8:
            dq0 = dma_x_8w(11, 0)
        if t <= 8:
            toggle_p0(t)
    if nxt < 36:
        pend = p0_reads(nxt)
    nout = 5 if ks + 1 < 36 else 0
    a(f"s_waitcnt lgkmcnt({nout})")
    buf = ks % 3
    for tl in range(2):
        acc = vACC1 + 16*tl
        af = vAF + buf*8 + tl*4
        a(f"v_mfma_f32_32x32x16_bf16 {vr(acc,16)}, {vr(af)}, {vr(vX+4*ks)}, {vr(acc,16) if ks else 0}")
        for ins in (pend[:3] if tl == 0 else pend[3:]): a(ins)
        nb_ = next(k for k in range(ks+1, 40) if (k + 2) % 4 == 0)
        slots = (nb_ - ks)*2 - tl
        if dq0:
            ng = -(-len(dq0) // slots)
            emit_groups([dq0.pop(0) for _ in range(ng)])

stamp(2)
a(f"v_mov_b32 v{vT}, {LDS_NONCE}")
a(f"ds_read_b32 v{vT+1}, v{vT}")
a(f"s_lshl_b32 s{sT6}, s{sW}, 10")
a("s_waitcnt lgkmcnt(0)")
a(f"v_readfirstlane_b32 s{sNONCE}, v{vT+1}")
a(f"s_cmp_lg_u32 s{sGRP}, 0")
a("s_cbranch_scc1 L_pathB")

def epi_tile(A, P, tt, side=None, per=2):
    for b in range(4):
        if side:
            for _ in range(per):
                if side:
                    for ins in side.pop(0): a(ins)
        rr = [A + 4*b + i for i in range(4)]
        tt_ = [vT + i for i in range(4)]
        for i in range(4): a(f"v_mul_f32 v{tt_[i]}, s{sLOG}, v{rr[i]}")
        for i in range(4): a(f"v_exp_f32 v{tt_[i]}, v{tt_[i]}")
        for i in range(4): a(f"v_add_f32 v{tt_[i]}, 1.0, v{tt_[i]}")
        for i in range(4): a(f"v_rcp_f32 v{tt_[i]}, v{tt_[i]}")
        for i in range(4): a(f"v_mul_f32 v{tt_[i]}, v{rr[i]}, v{tt_[i]}")
        a(f"v_cvt_pk_bf16_f32 v{P+2*b}, v{tt_[0]}, v{tt_[1]}")
        a(f"v_cvt_pk_bf16_f32 v{P+2*b+1}, v{tt_[2]}, v{tt_[3]}")
        if b % 2 == 1:
            p = b // 2
            if p == 0:
                a(f"s_add_u32 s{sT0}, s{sHB}, {tt*2048}")
            a(f"buffer_store_dwordx4 {vr(P+4*p)}, v{vHST}, {srd(sWS)}, s{sT0} offen offset:{512*p}" + ("" if PLAINH else " sc1") + f" ;@st{tt}")

_pk = [0]
def epi(acc, ntiles, tt0, side=None, per=2):
    for ti in range(ntiles):
        epi_tile(acc + 16*ti, vAF + 8*(_pk[0] % 3), tt0 + ti, side, per)
        _pk[0] += 1
    while side:
        for ins in side.pop(0): a(ins)

def hreg(hset): return vHS + 16*hset
def h_groups(boff, tile, hset, tag):
    d = hreg(hset)
    o = tile*2048 + boff
    G = [[(f"s_add_u32 s{sS0}, s{sHL}, {o}" if o >= 0 else f"s_sub_u32 s{sS0}, s{sHL}, {-o}"),
          f"buffer_load_dwordx4 {vr(d)}, v{vL16}, {srd(sWS)}, s{sS0} offen sc1 ;@{tag}"],
         [f"buffer_load_dwordx4 {vr(d+4)}, v{vL16}, {srd(sWS)}, s{sS0} offen offset:1024 sc1 ;@{tag}"],
         [f"s_add_u32 s{sS1}, s{sS0}, {9*2048}",
          f"buffer_load_dwordx4 {vr(d+8)}, v{vL16}, {srd(sWS)}, s{sS1} offen sc1 ;@{tag}"],
         [f"buffer_load_dwordx4 {vr(d+12)}, v{vL16}, {srd(sWS)}, s{sS1} offen offset:1024 sc1 ;@{tag}"]]
    return G

def flags(tt0, n, tmp=vT+4):
    a(f"v_lshlrev_b32 v{tmp}, 4, v{vLANE}")
    a(f"v_mov_b32 v{tmp+1}, s{sNONCE}")
    a(f"v_cmp_gt_u32 vcc, {n}, v{vLANE}")
    a(f"s_add_u32 s{sT0}, s{sFLH}, {tt0*16}")
    a(f"s_and_saveexec_b64 s[{sEX}:{sEX+1}], vcc")
    a(f"buffer_store_dword v{tmp+1}, v{tmp}, {srd(sWS)}, s{sT0} offen sc1 ;@fl")
    a(f"s_mov_b64 exec, s[{sEX}:{sEX+1}]")
    return
    a(f"v_lshlrev_b32 v{tmp}, 7, v{vLANE}")
    a(f"v_cmp_gt_u32 vcc, {16*n}, v{vLANE}")
    a(f"s_add_u32 s{sT0}, s{sHB}, {tt0*2048}")
    a(f"s_and_saveexec_b64 s[{sEX}:{sEX+1}], vcc")
    a(f"buffer_load_dword v247, v{tmp}, {srd(sWS)}, s{sT0} offen sc1")
    a(f"s_mov_b64 exec, s[{sEX}:{sEX+1}]")

def blk_reads(ks, ntl, rowbytes, steps_per_stage):
    sp = ks % steps_per_stage
    buf = ks % 3
    R = []
    for tl in range(ntl):
        for e4 in range(2):
            d = vAF + buf*8 + tl*4 + e4*2
            R.append(f"ds_read_b64_tr_b16 v[{d}:{d+1}], v{vCUR+tl} offset:{(16*sp + 4*e4)*rowbytes}")
    return R

def dma_t3_4w(stage):
    slot = (stage % 4) * SLOT
    G = [[f"s_mul_i32 s{sT2}, s{sW}, {16*9216}", f"s_add_u32 s{sT2}, s{sT2}, s{sFS}"]]
    for k in range(9):
        G.append([f"s_add_u32 m0, s{sT6}, {slot + 4096*k}",
                  f"s_add_u32 s{sT1}, s{sT2}, {64*k*9216}",
                  f"buffer_load_dwordx4 v{vXOFF}, {srd(sW1)}, s{sT1} offen lds"])
    return G

TORDER = [2, 3, 0, 1, 4, 5, 6, 7, 8]
def fo_rows(tile, apar):
    if tile < 8: return apar*32 + 32*tile
    return 0 if apar else 256

def p2_extra(stage):
    slot = (stage % 4) * SLOT
    tile = TORDER[stage - 14]
    r0, r1 = fo_rows(tile, 0), fo_rows(tile, 1)
    return [f"s_add_u32 m0, s{sT6}, {slot + 32768}",
            f"s_and_b32 s{sT2}, s{sW}, 1",
            f"s_mul_i32 s{sT2}, s{sT2}, {(r1 - r0)*1152}",
            f"s_add_u32 s{sT2}, s{sT2}, s{sW2E}",
            f"s_add_u32 s{sT2}, s{sT2}, {r0*1152}",
            f"buffer_load_dwordx4 v{vXR+2}, {srd(sW2)}, s{sT2} offen lds ;@d{stage}"]

def p2_main(stage, half):
    slot = (stage % 4) * SLOT
    tile = TORDER[stage - 14]
    return [[f"s_add_u32 m0, s{sT6}, {slot + aa*8192 + half*4096}",
             f"s_add_u32 s{sT2}, s{sW2B}, {(288*aa + fo_rows(tile, aa & 1) + 16*half)*1152}",
             f"buffer_load_dwordx4 v{vXR}, {srd(sW2)}, s{sT2} offen lds ;@d{stage}"] for aa in range(4)]

def dma_p2_4w(stage, offs):
    return p2_main(stage, 0) + p2_main(stage, 1) + [p2_extra(stage)]

def w2offs3_l():
    return [
     f"v_lshrrev_b32 v{vT}, 4, v{vLANE}",
     f"v_mul_u32_u24 v{vXR}, 1152, v{vT}",
     f"s_and_b32 s{sS0}, s{sW}, 1",
     f"s_lshl_b32 s{sS0}, s{sS0}, 2",
     f"v_add_u32 v{vT}, s{sS0}, v{vT}",
     f"v_bfe_u32 v{vT+1}, v{vLANE}, 1, 3",
     f"v_xor_b32 v{vT+1}, v{vT+1}, v{vT}",
     f"v_lshl_add_u32 v{vXR}, v{vT+1}, 5, v{vXR}",
     f"v_and_b32 v{vT+1}, 1, v{vLANE}",
     f"v_lshl_add_u32 v{vXR}, v{vT+1}, 4, v{vXR}",
     f"v_lshrrev_b32 v{vT}, 1, v{vLANE}",
     f"v_mul_u32_u24 v{vXR+2}, 1152, v{vT}",
     f"v_lshl_add_u32 v{vXR+2}, v{vT+1}, 4, v{vXR+2}"]

vW2E = 166
def p2_misc_l():
    return [
     f"v_lshlrev_b32 v{vL16}, 4, v{vLANE}",
     f"v_lshlrev_b32 v{vFLA}, 2, v{vLANE}",
     f"v_bfe_u32 v{vP2T+1}, v{vLANE}, 4, 1",
     f"v_bfe_u32 v{vP2T+2}, v{vLANE}, 2, 2",
     f"v_lshl_add_u32 v{vP2T+1}, v{vP2T+1}, 2, v{vP2T+2}",
     f"v_lshrrev_b32 v{vP2T}, 5, v{vLANE}",
     f"v_lshl_add_u32 v{vP2T}, v{vP2T}, 4, v{vP2T+1}",
     f"v_and_b32 v{vP2T+2}, 3, v{vLANE}",
     f"v_lshlrev_b32 v{vP2T+2}, 3, v{vP2T+2}",
     f"v_lshl_add_u32 v{vW2R}, v{vP2T}, 8, v{vP2T+2}",
     f"v_lshl_add_u32 v{vW2R}, v{vP2T+1}, 5, v{vW2R}",
     f"s_lshl_b32 s{sS0}, s{sGRP}, 14",
     f"v_add_u32 v{vW2R}, s{sS0}, v{vW2R}",
     f"v_lshl_add_u32 v{vW2E}, v{vP2T}, 5, v{vP2T+2}",
     f"s_lshl_b32 s{sS0}, s{sGRP}, 11",
     f"s_add_u32 s{sS0}, s{sS0}, 32768",
     f"v_add_u32 v{vW2E}, s{sS0}, v{vW2E}"]

def poll0_l():
    return [f"buffer_load_dword v{vPOLL}, v{vFLA}, {srd(sWS)}, s{sFLC} offen sc1"]

class Side:
    def __init__(self): self.q = []
    def add(self, min_step, instrs):
        for i in instrs: self.q.append((min_step, i))
    def emit(self, step, n):
        k = 0
        while self.q and k < n and self.q[0][0] <= step:
            a(self.q.pop(0)[1]); k += 1
    def flush(self):
        while self.q: a(self.q.pop(0)[1])

def block2(stA, stB, dma0, dma1, side, at={}, wmid=None, wend=None):
    a(f"v_add_u32 v{vCUR}, {(stA%4)*SLOT}, v{vW1R}")
    a(f"v_add_u32 v{vCUR+1}, {(stA%4)*SLOT}, v{vW1R+1}")
    for ins in blk_reads(0, 2, 128, 18): a(ins)
    for ins in blk_reads(1, 2, 128, 18): a(ins)
    dq = list(dma0)
    for ks in range(36):
        nxt = ks + 2
        if nxt == 18:
            vwait(wmid, "lgkmcnt(0)")
            a("s_barrier")
            a(f"v_add_u32 v{vCUR}, {(stB%4)*SLOT}, v{vW1R}")
            a(f"v_add_u32 v{vCUR+1}, {(stB%4)*SLOT}, v{vW1R+1}")
            dq = list(dma1)
        if nxt == 36:
            vwait(wend, "lgkmcnt(0)")
            a("s_barrier")
        for ins in at.get(ks, []): a(ins)
        pend = blk_reads(nxt, 2, 128, 18) if nxt < 36 else []
        buf = ks % 3
        for tl in range(2):
            acc = vACC2 + 16*tl
            af = vAF + buf*8 + tl*4
            nx1 = 4 if ks + 1 < 36 else 0
            nx2 = 2 if (tl == 1 and nxt < 36) else 0
            a(f"s_waitcnt lgkmcnt({(2 if tl == 0 else 0) + nx1 + nx2})")
            a(f"v_mfma_f32_32x32x16_bf16 {vr(acc,16)}, {vr(af)}, {vr(vX+4*ks)}, {vr(acc,16) if ks else 0}")
            for ins in (pend[:2] if tl == 0 else pend[2:]): a(ins)
            if tl == 1 and dq:
                for ins in dq.pop(0): a(ins)
            else:
                side.emit(ks, 3)
    side.flush()

_pc = [0]
def snap_l(tag="snap"):
    return [f"buffer_load_dword v{vPOLL}, v{vFLA}, {srd(sWS)}, s{sFLC} offen sc1 ;@{tag}"]

def snap_check(tiles):
    _pc[0] += 1
    n = _pc[0]
    lo = sum(0xF << (4*t) for t in tiles if t < 8)
    hi = 0xF if 8 in tiles else 0
    def chk():
        a(f"v_cmp_ne_u32 vcc, s{sNONCE}, v{vPOLL}")
        a(f"s_and_b32 s{sT0}, vcc_lo, 0x{lo:x}")
        if hi:
            a(f"s_and_b32 s{sT1}, vcc_hi, 0x{hi:x}")
            a(f"s_or_b32 s{sT0}, s{sT0}, s{sT1}")
    chk()
    a(f"s_cbranch_scc0 L_ok_{n}")
    a(f"s_mov_b32 s{sSPIN}, 0")
    lab(f"L_spin_{n}")
    for ins in snap_l("skip"): a(ins)
    a(f"s_add_u32 s{sSPIN}, s{sSPIN}, 1")
    a(f"s_cmp_gt_u32 s{sSPIN}, {SPIN_MAX}")
    a(f"s_cbranch_scc1 L_ok_{n}")
    a("s_waitcnt vmcnt(0)")
    chk()
    a(f"s_cbranch_scc1 L_spin_{n}")
    lab(f"L_ok_{n}")

def h_issue(tile, hset):
    d = vHS + 16*hset
    if isinstance(tile, int):
        a(f"s_add_u32 s{sT0}, s{sHL}, {tile*2048}")
    else:
        a(f"s_lshl_b32 s{sT0}, {tile}, 11")
        a(f"s_add_u32 s{sT0}, s{sT0}, s{sHL}")
    a(f"s_add_u32 s{sT1}, s{sT0}, {9*2048}")
    a(f"buffer_load_dwordx4 {vr(d)}, v{vL16}, {srd(sWS)}, s{sT0} offen sc1")
    a(f"buffer_load_dwordx4 {vr(d+4)}, v{vL16}, {srd(sWS)}, s{sT0} offen offset:1024 sc1")
    a(f"buffer_load_dwordx4 {vr(d+8)}, v{vL16}, {srd(sWS)}, s{sT1} offen sc1")
    a(f"buffer_load_dwordx4 {vr(d+12)}, v{vL16}, {srd(sWS)}, s{sT1} offen offset:1024 sc1")

def h_issue_base(base_sgpr_expr, tile, hset):
    d = vHS + 16*hset
    a(f"s_add_u32 s{sT0}, s{sHL}, {tile*2048 + base_sgpr_expr}" if tile*2048 + base_sgpr_expr >= 0 else f"s_sub_u32 s{sT0}, s{sHL}, {-(tile*2048 + base_sgpr_expr)}")
    a(f"s_add_u32 s{sT1}, s{sT0}, {9*2048}")
    a(f"buffer_load_dwordx4 {vr(d)}, v{vL16}, {srd(sWS)}, s{sT0} offen sc1")
    a(f"buffer_load_dwordx4 {vr(d+4)}, v{vL16}, {srd(sWS)}, s{sT0} offen offset:1024 sc1")
    a(f"buffer_load_dwordx4 {vr(d+8)}, v{vL16}, {srd(sWS)}, s{sT1} offen sc1")
    a(f"buffer_load_dwordx4 {vr(d+12)}, v{vL16}, {srd(sWS)}, s{sT1} offen offset:1024 sc1")

def zero_accp_l():
    return [f"v_mov_b32 v{vACCP+r}, 0" for r in range(72)]

cm("---- path A")
vmA = VM(["d10"]*4 + ["d11"]*4)
CUR["vm"] = vmA
sd = Side()
sd.add(0, w2offs3_l())
block2(9, 10, dma_x_4w(12, 192), dma_x_4w(13, 384), sd, wmid=["d10"], wend=["d11"])
stamp(3)
epi(vACC1+16, 1, 1)
for ins in p2_misc_l(): a(ins)
for ins in snap_l(): a(ins)
epi(vACC1, 1, 0)
vwait(["d12", "snap"])
stamp(4)
a("s_barrier")
snap_check([2, 3])
epi(vACC2, 2, 4, side=h_groups(18*2048, TORDER[0], 2, "h0x") + h_groups(0, TORDER[0], 0, "h0"), per=1)
vwait(["st0", "st1", "d13"])
flags(0, 2)
stamp(5)
a("s_barrier")
stamp(6)
stamp(7)
a("s_branch L_p2")

lab("L_pathB")
cm("---- path B")
vmB = VM(["d10"]*4 + ["d11"]*4)
CUR["vm"] = vmB
a("s_nop 7")
epi(vACC1, 2, 2)
vwait(["d10"])
stamp(3)
a("s_barrier")
for ins in w2offs3_l(): a(ins)
for ins in [f"v_lshrrev_b32 v{vT}, 5, v{vLANE}",
            f"v_bfe_u32 v{vT+1}, v{vLANE}, 2, 2",
            f"v_lshl_add_u32 v{vT}, v{vT}, 3, v{vT+1}",
            f"v_lshlrev_b32 v{vT}, 6, v{vT}",
            f"v_bfe_u32 v{vT+1}, v{vLANE}, 4, 1",
            f"v_lshlrev_b32 v{vT+1}, 5, v{vT+1}",
            f"v_and_b32 v{vT+2}, 3, v{vLANE}",
            f"v_lshlrev_b32 v{vT+2}, 3, v{vT+2}",
            f"v_add3_u32 v{vWR}, v{vT}, v{vT+1}, v{vT+2}",
            f"v_add_u32 v{vWR}, 24576, v{vWR}"]: a(ins)
a("s_waitcnt vmcnt(0)")
vmB.q = []
flags(2, 2)
pf_emit("b10")
stamp(4)
a("s_barrier")
stamp(5)
vAFX = 160
def b3_set(stage):
    sl = (stage % 4)*SLOT
    a(f"v_add_u32 v{vCUR}, {sl}, v{vW1R}")
    a(f"v_add_u32 v{vCUR+1}, {sl}, v{vW1R+1}")
    a(f"v_add_u32 v{vWR+1}, {sl}, v{vWR}")
def b3_reads(ks):
    sp, buf = ks % 12, ks % 3
    R = []
    for tl in range(2):
        for e4 in range(2):
            d = vAF + buf*8 + tl*4 + e4*2
            R.append(f"ds_read_b64_tr_b16 v[{d}:{d+1}], v{vCUR+tl} offset:{(16*sp + 4*e4)*128}")
    for e4 in range(2):
        d = vAFX + buf*4 + e4*2
        R.append(f"ds_read_b64_tr_b16 v[{d}:{d+1}], v{vWR+1} offset:{(16*sp + 4*e4)*64}")
    return R
b3_set(11)
for ins in b3_reads(0): a(ins)
for ins in b3_reads(1): a(ins)
dq = dma_p2_4w(14, vXR)
for ks in range(36):
    nxt = ks + 2
    if nxt == 12:
        a("s_waitcnt lgkmcnt(0)")
        a("s_barrier")
        b3_set(12)
        dq = dma_p2_4w(15, vXR)
    if nxt == 24:
        vwait(["d14"], "lgkmcnt(0)")
        a("s_barrier")
        b3_set(13)
        dq = dma_p2_4w(16, vXR)
    if nxt == 36:
        vwait(["d15"], "lgkmcnt(0)")
        a("s_barrier")
    pend = b3_reads(nxt) if nxt < 36 else []
    buf = ks % 3
    for tl in range(3):
        acc = (vACC2 + 16*tl) if tl < 2 else vACC1
        af = (vAF + buf*8 + tl*4) if tl < 2 else (vAFX + buf*4)
        nx1 = 6 if ks + 1 < 36 else 0
        nx2 = 2*tl if nxt < 36 else 0
        a(f"s_waitcnt lgkmcnt({min(15, 2*(2 - tl) + nx1 + nx2)})")
        a(f"v_mfma_f32_32x32x16_bf16 {vr(acc,16)}, {vr(af)}, {vr(vX+4*ks)}, {vr(acc,16) if ks else 0}")
        for ins in pend[2*tl:2*tl+2]: a(ins)
        if tl == 2 and dq:
            for ins in dq.pop(0): a(ins)
stamp(6)
def dmaB_part(T): return p2_main(T, 1)
for ins in p2_misc_l(): a(ins)
epi(vACC2, 1, 6, side=[snap_l()] + dmaB_part(17), per=2)
epi(vACC2+16, 1, 7)
vwait(["d16", "snap"])
a("s_barrier")
snap_check([0, 1, 4, 5])
epi(vACC1, 1, 8, side=h_groups(0, TORDER[3], 0, "h3") + dmaB_part(18) + h_groups(0, TORDER[4], 1, "h4"), per=3)
vwait(["d17"])
a("s_barrier")
emit_groups(dmaB_part(19))
stamp(7)

vRA = 176
vRE = 192
def p2_reads(idx, sl, hoff):
    st, jn = idx // 9, idx % 9
    d = (196 if DEEP else vAF2) + (idx % RING)*4
    so = (sl % 2)*SLOT
    if jn < 8:
        return [f"ds_read_b64_tr_b16 v[{d+2*e4}:{d+2*e4+1}], v{vRA + 8*(sl//2) + jn} offset:{so + hoff*16384 + st*8192 + e4*2048}" for e4 in range(2)]
    return [f"ds_read_b64_tr_b16 v[{d+2*e4}:{d+2*e4+1}], v{vRE + sl//2} offset:{so + hoff*2048 + st*1024 + e4*256}" for e4 in range(2)]

def p2_unrolled(G):
    tg = "AB"[G]
    for jn in range(8):
        a(f"v_xor_b32 v{vRA+jn}, {jn << 5}, v{vW2R}")
        a(f"v_add_u32 v{vRA+8+jn}, {2*SLOT}, v{vRA+jn}")
    a(f"v_mov_b32 v{vRE}, v{vW2E}")
    a(f"v_add_u32 v{vRE+1}, {2*SLOT}, v{vW2E}")
    a(f"s_add_u32 s95, s{sHL}, {9*2048}")
    if G == 0:
        segs = [(0, "x", 2, "h0x"), (0, "o", 0, "h0"), (1, "x", 3, "h1x"), (1, "o", 1, "h1"), (2, "x", 0, "h2x"), (2, "o", 2, "h2")] + [(s_, "o", (s_ % 3) if s_ != 3 else 3, f"h{s_}") for s_ in range(3, 9)]
    else:
        segs = [(s_, "o", s_ % 3, f"h{s_}") for s_ in range(3, 9)]
    def rd(si, idx):
        stage, kind, _, _ = segs[si]
        return p2_reads(idx, (14 + stage) % 4, 1 if kind == "x" else 0)
    for i in range(LA):
        for ins in rd(0, i): a(ins)
    for si, (s_, kind, hset, hname) in enumerate(segs):
        ev = {}
        def add(pos, blk): ev.setdefault(pos, []).append(blk)
        def add_h(pos, sh, hs=None, other=False):
            t2 = TORDER[sh]
            d = hreg(sh % 3 if hs is None else hs)
            for k in range(4):
                blk = []
                if k % 2 == 0:
                    blk.append(f"s_add_u32 s{sT1}, {'s95' if k >= 2 else f's{sHL}'}, {t2*2048 + (18*2048 if other else 0)}")
                blk += [f"buffer_load_dwordx4 {vr(d+4*k)}, v{vL16}, {srd(sWS)}, s{sT1} offen offset:{1024*(k%2)} sc1"]
                add(pos + k, blk)
        def add_d(dpos, T):
            for aa, g_ in enumerate(p2_main(T, G)):
                add(dpos + aa, g_)
            if G == 0:
                add(dpos + 4, p2_extra(T))
        p0 = 0 if G == 0 else 9
        if G == 0 and s_ <= 2:
            if (s_, kind) == (0, "x"):
                add_h(1, 1, hs=3, other=True)
                add_h(6, 1, hs=1)
                add(12, snap_l())
            if (s_, kind) == (0, "o"):
                add(2, [("WAIT", ["st4", "st5"]), ("FLAGS", 4, 2)])
                add(9, [("WAIT", ["snap"]), ("CHK", [0, 1])])
                add_h(10, 2, hs=2)
            if (s_, kind) == (1, "x"):
                add_h(1, 2, hs=0, other=True)
                add_d(5, 17)
            if (s_, kind) == (1, "o"):
                add_h(1, 3, hs=3)
                add(8, snap_l())
            if (s_, kind) == (2, "x"):
                add(0, [("WAIT", ["snap"]), ("CHK", [4, 5])])
                add_h(1, 4, hs=1)
                add_d(5, 18)
        else:
            if s_ + 2 <= 8:
                if G == 1 and s_ == 3:
                    add(0, [("WAIT", ["st6", "st7", "st8"]), ("FLAGS", 6, 3)])
                if s_ == 4:
                    add(10, snap_l())
                elif s_ == 5:
                    add(0, [("WAIT", ["snap"]), ("CHK", [6, 7, 8])])
                    add_h(1, 6)
                    add_h(10, 7)
                else:
                    add_h(p0 + 1, s_ + 2)
            T = 16 + G + s_
            if T <= 22:
                add_d(5 if G == 0 else 14, T)
        if PROF2 and kind == "o": stamp(1 + s_, 2)
        vwait([hname])
        last = (si == len(segs) - 1)
        for idx in range(18):
            st, jn = idx // 9, idx % 9
            if idx == 18 - LA and kind == "o" and s_ < 8:
                vwait([f"d{15+s_}"])
                a("s_barrier")
            nout = 2*(LA - 1) if not last else 2*min(LA - 1, 17 - idx)
            a(f"s_waitcnt lgkmcnt({nout})")
            af = (196 if DEEP else vAF2) + (idx % RING)*4
            nx = idx + LA
            r_ = rd(si, nx) if nx < 18 else (rd(si+1, nx - 18) if not last else [None, None])
            for mh in range(2):
                acc = vACCP + (jn*2 + mh)*4
                hf = hreg(hset) + st*8 + mh*4
                a(f"v_mfma_f32_16x16x32_bf16 {vr(acc)}, {vr(af)}, {vr(hf)}, {vr(acc) if not (si == 0 and st == 0) else 0}")
                if r_[mh]: a(r_[mh])
            for blk in ev.get(idx, []):
                for ins in blk:
                    if isinstance(ins, tuple):
                        if ins[0] == "CHK": snap_check(ins[1])
                        elif ins[0] == "WAIT": vwait(ins[1])
                        elif ins[0] == "FLAGS": flags(ins[1], ins[2], tmp=vP2T)
                    else: a(ins)

stamp(8)
CUR["vm"] = vmB
p2_unrolled(1)
a("s_branch L_p2_done")
lab("L_p2")
stamp(8)
CUR["vm"] = vmA
p2_unrolled(0)
CUR["vm"] = None
lab("L_p2_done")
stamp(9)
if PROF4: a("s_memrealtime s[64:65]")
a(f"s_mul_i32 s{sT0}, s{sW}, 9216")
a(f"v_add_u32 v{vP2T+1}, s{sT0}, v{vL16}")
a(f"v_add_u32 v{vP2T}, {3*SLOT}, v{vP2T+1}")
a(f"s_lshl_b32 s{sT2}, s{sMT}, 2")
a(f"s_add_u32 s{sT2}, s{sT2}, s{sNB}")
a(f"s_lshl_b32 s{sT2}, s{sT2}, 2")
a(f"s_add_u32 s{sT2}, s{sT2}, s{sW}")
a(f"s_lshl_b32 s{sT2}, s{sT2}, 1")
a(f"s_add_u32 s{sT2}, s{sT2}, s{sGRP}")
a(f"s_mul_i32 s{sT2}, s{sT2}, {4*6*1024}")
a(f"s_add_u32 s{sHL}, s{sT2}, {WS_RS}")
a(f"s_cmp_lg_u32 s{sGRP}, 0")
a("s_cbranch_scc1 L_rsB")

def rs_path(tag, send, keep, send_addr, recv_addr):
    for i, t in enumerate(send):
        a(f"ds_write_b128 v{send_addr}, {vr(vACCP+4*t)} offset:{i*1024}")
    a("s_waitcnt lgkmcnt(0)")
    a("s_barrier")
    for i, t in enumerate(keep):
        a(f"ds_read_b128 {vr(72+4*i)}, v{recv_addr} offset:{i*1024}")
    Q = 176
    for k in range(6):
        a(f"v_mov_b32 v{Q+4*k+3}, s{sNONCE}")
    for i, t in enumerate(keep):
        a(f"s_waitcnt lgkmcnt({len(keep)-1-i})")
        for r in range(4):
            a(f"v_add_f32 v{vACCP+4*t+r}, v{vACCP+4*t+r}, v{72+4*i+r}")
    if PROF4: stamp(10)
    K0 = vACCP + 4*keep[0]
    a(f"s_cmp_eq_u32 s{sW}, s{sG}")
    a(f"s_cbranch_scc1 L_rs_own_{tag}")
    a(f"s_mul_i32 s{sT0}, s{sG}, {6*1024}")
    a(f"s_add_u32 s{sT0}, s{sT0}, s{sHL}")
    a(f"s_add_u32 s{sT1}, s{sT0}, 4096")
    for k in range(6):
        for i in range(3):
            d = 3*k + i
            a(f"v_cvt_pk_bf16_f32 v{Q+4*k+i}, v{K0+2*d}, v{K0+2*d+1}")
        a(f"buffer_store_dwordx4 {vr(Q+4*k)}, v{vL16}, {srd(sWS)}, s{sT0 if k < 4 else sT1} offen offset:{(k%4)*1024} sc1")
    a("s_branch L_end")
    lab(f"L_rs_own_{tag}")
    a(f"v_and_b32 v{vP2T+2}, 15, v{vLANE}")
    a(f"v_mul_u32_u24 v{vP2T+2}, 1152, v{vP2T+2}")
    a(f"v_lshrrev_b32 v{vP2T+3}, 4, v{vLANE}")
    a(f"v_lshl_add_u32 v{vP2T+2}, v{vP2T+3}, 3, v{vP2T+2}")
    a(f"s_mul_i32 s{sT4}, s{sW}, {32*1152}")
    a(f"s_add_u32 s{sT4}, s{sT4}, s{sXB}")
    a(f"s_lshl_b32 s{sT5}, s{sNB}, 5")
    a(f"s_add_u32 s{sT6}, s{sT4}, s{sT5}")
    a(f"s_add_u32 s{sT6}, s{sT6}, 1024")
    a(f"s_add_u32 s{sT7}, s{sT6}, {16*1152}")
    a(f"s_lshl_b32 s{sT5}, s{sNB}, 8")
    a(f"s_add_u32 s{sT4}, s{sT4}, s{sT5}")
    a(f"s_add_u32 s{sT5}, s{sT4}, {16*1152}")
    R = 72
    for p in range(1, 4):
        a(f"s_add_u32 s{sT0}, s{sG}, {p}")
        a(f"s_and_b32 s{sT0}, s{sT0}, 3")
        a(f"s_mul_i32 s{sT0}, s{sT0}, {6*1024}")
        a(f"s_add_u32 s{93+p}, s{sT0}, s{sHL}")
    a(f"v_mov_b32 v{vP2T+4}, {5*1024 + 63*16 + 12}")
    a(f"s_mov_b32 s{sSPIN}, 0")
    lab(f"L_rs_poll_{tag}")
    for p in range(3):
        a(f"buffer_load_dword v{R+p}, v{vP2T+4}, {srd(sWS)}, s{94+p} offen sc1")
    a(f"s_add_u32 s{sSPIN}, s{sSPIN}, 1")
    a(f"s_cmp_gt_u32 s{sSPIN}, {SPIN_MAX}")
    a(f"s_cbranch_scc1 L_rs_spin_{tag}")
    a(f"s_mov_b64 s[{sT2}:{sT2+1}], 0")
    a("s_waitcnt vmcnt(0)")
    for p in range(3):
        a(f"v_cmp_ne_u32 vcc, s{sNONCE}, v{R+p}")
        a(f"s_or_b64 s[{sT2}:{sT2+1}], s[{sT2}:{sT2+1}], vcc")
    a(f"s_cbranch_scc1 L_rs_poll_{tag}")
    lab(f"L_rs_spin_{tag}")
    for p in range(1, 4):
        a(f"s_add_u32 s{sT1}, s{93+p}, 4096")
        for k in range(6):
            a(f"buffer_load_dwordx4 {vr(R+24*(p-1)+4*k)}, v{vL16}, {srd(sWS)}, s{93+p if k < 4 else sT1} offen offset:{(k%4)*1024} sc1")
    a(f"s_add_u32 s{sSPIN}, s{sSPIN}, 1")
    a(f"s_cmp_gt_u32 s{sSPIN}, {SPIN_MAX}")
    a(f"s_cbranch_scc1 L_rs_spin_out_{tag}")
    a(f"s_mov_b64 s[{sT2}:{sT2+1}], 0")
    TS = 196
    T = vP2T + 4
    for q in range(18):
        p, k = q // 6, q % 6
        a(f"s_waitcnt vmcnt({17-q})")
        a(f"v_cmp_ne_u32 vcc, s{sNONCE}, v{R+4*q+3}")
        for i in range(3):
            d = 3*k + i
            src = R + 4*q + i
            if p == 0:
                a(f"v_lshlrev_b32 v{TS+2*d}, 16, v{src}")
                a(f"v_and_b32 v{TS+2*d+1}, 0xffff0000, v{src}")
            else:
                a(f"v_lshlrev_b32 v{T}, 16, v{src}")
                a(f"v_and_b32 v{T+1}, 0xffff0000, v{src}")
                a(f"v_add_f32 v{TS+2*d}, v{TS+2*d}, v{T}")
                a(f"v_add_f32 v{TS+2*d+1}, v{TS+2*d+1}, v{T+1}")
        a(f"s_or_b64 s[{sT2}:{sT2+1}], s[{sT2}:{sT2+1}], vcc")
    a(f"s_cbranch_scc1 L_rs_spin_{tag}")
    lab(f"L_rs_spin_out_{tag}")
    a("s_waitcnt vmcnt(0)")
    if PROF4: stamp(11)
    for r in range(36):
        a(f"v_add_f32 v{K0+r}, v{K0+r}, v{TS+r}")
    if PROF4: stamp(12)
    for i, t in enumerate(keep):
        jn, mh = t // 2, t % 2
        d = Q + 2*(i % 8)
        a(f"v_cvt_pk_bf16_f32 v{d}, v{vACCP+4*t}, v{vACCP+4*t+1}")
        a(f"v_cvt_pk_bf16_f32 v{d+1}, v{vACCP+4*t+2}, v{vACCP+4*t+3}")
        if jn < 8:
            a(f"buffer_store_dwordx2 v[{d}:{d+1}], v{vP2T+2}, {srd(sOUT)}, s{sT5 if mh else sT4} offen offset:{jn*32}")
        else:
            a(f"buffer_store_dwordx2 v[{d}:{d+1}], v{vP2T+2}, {srd(sOUT)}, s{sT7 if mh else sT6} offen")
    a("s_branch L_end")

rs_path("A", list(range(9, 18)), list(range(0, 9)), vP2T, vP2T+1)
lab("L_rsB")
rs_path("B", list(range(0, 9)), list(range(9, 18)), vP2T+1, vP2T)

lab("L_end")
if PROF:
    stamp(15)
    a("s_memrealtime s[96:97]")
    a("s_mov_b64 exec, -1")
    a("s_cmp_ge_u32 s2, 256")
    a("s_cbranch_scc1 L_end2")
    a("s_waitcnt lgkmcnt(0)")
    for i in range(1, 16):
        a(f"s_sub_u32 s{64+2*(i-1)}, s{64+2*(i-1)}, s100")
    a(f"v_mov_b32 v0, 0")
    for i in range(1, 16):
        a(f"v_writelane_b32 v0, s{64+2*(i-1)}, {i}")
    if PROF4:
        a("s_add_u32 s64, s64, s100")
        a("s_and_b32 s64, s64, 0xfffff")
        a("v_writelane_b32 v0, s64, 1")
        a("s_and_b32 s66, s98, 0xfffff")
        a("v_writelane_b32 v0, s66, 2")
        a("s_and_b32 s66, s96, 0xfffff")
        a("v_writelane_b32 v0, s66, 3")
    a("s_sub_u32 s96, s96, s98")
    a("v_writelane_b32 v0, s96, 14")
    a(f"s_lshl_b32 s{sT0}, s2, 3")
    a(f"s_add_u32 s{sT0}, s{sT0}, s{sWV}")
    a(f"s_lshl_b32 s{sT0}, s{sT0}, 6")
    a(f"s_add_u32 s{sT0}, s{sT0}, {WS_PROF}")
    a(f"v_lshlrev_b32 v1, 2, v{vLANE}")
    a(f"v_cmp_gt_u32 vcc, 16, v{vLANE}")
    a(f"s_and_saveexec_b64 s[{sEX}:{sEX+1}], vcc")
    a(f"buffer_store_dword v0, v1, {srd(sWS)}, s{sT0} offen")
    if PROFDBG:
        a(f"s_cmp_lg_u32 s{sT0}, {WS_PROF}")
        a("s_cbranch_scc1 L_end2")
        a(f"buffer_store_dword v0, v1, {srd(sDBG)}, 0 offen")
    lab("L_end2")
a("s_endpgm")

hdr = [
 f"; @launch grid=(256,1,1) block=(512,1,1) lds={LDS_SIZE}",
 '.amdgcn_target "amdgcn-amd-amdhsa--gfx950"',
 ".text",
 f".globl {KNAME}",
 ".p2align 8",
 f".type {KNAME},@function",
]
ftr = [
 '.section .rodata,"a"',
 ".p2align 6",
 f".amdhsa_kernel {KNAME}",
 "  .amdhsa_next_free_vgpr 256",
 "  .amdhsa_next_free_sgpr 102",
 "  .amdhsa_accum_offset 256",
 "  .amdhsa_group_segment_fixed_size 0",
 "  .amdhsa_kernarg_size 48",
 "  .amdhsa_user_sgpr_count 2",
 "  .amdhsa_user_sgpr_kernarg_segment_ptr 1",
 "  .amdhsa_system_sgpr_workgroup_id_x 1",
 ".end_amdhsa_kernel",
]
if ROT:
    L2 = []
    for i, l in enumerate(L):
        if " lds" in l and "s[8:11]" in l:
            L2.append(f"    s_sub_u32 s{sS1}, s{sT1}, {576*9216}")
            L2.append(f"    s_cselect_b32 s{sT1}, s{sT1}, s{sS1}")
        L2.append(l)
    L = L2
if "--nt" in sys.argv:
    L = [ (l.replace(" offen lds", " offen nt lds") if (" lds" in l and ("s[4:7]" in l or "s[8:11]" in l)) else l) for l in L]
if "--nt2" in sys.argv:
    L = [ (l.replace(" offen lds", " offen nt lds") if (" lds" in l) else l) for l in L]
print("\n".join(hdr + L + ftr))
```
